```python
import torch

def _softmax(x, axis=-1):
    return torch.softmax(x, dim=axis)
def _gelu(x):
    return torch.nn.functional.gelu(x, approximate="tanh")
def _silu(x):
    return torch.nn.functional.silu(x)
def _sigmoid(x):
    return torch.sigmoid(x)
def _layernorm(x, axis=-1, eps=1e-5):
    m = x.mean(dim=axis, keepdim=True)
    v = x.var(dim=axis, keepdim=True, unbiased=False)
    return (x - m) / torch.sqrt(v + eps)
def _scatter_add(tgt, idx, src, axis=0):
    return tgt.clone().index_add_(axis, idx, src)
def _segment_sum(src, seg, n):
    out = torch.zeros((n,) + src.shape[1:], dtype=src.dtype)
    return out.index_add_(0, seg, src)
def _pad(x, pw):
    flat = tuple(v for pair in reversed(pw) for v in pair)
    return torch.nn.functional.pad(x, flat)

kernel_name = 'gather_scatter__mpnn_edge_mlp__graph'

def setup_inputs():

    _w = (lambda a: (lambda t: t.to(torch.bfloat16) if t.is_floating_point() else t)(torch.as_tensor(a)))
    N, deg, D, De = 12500, 32, 128, max(16, 1)
    E = N * deg
    return {
        "x": _w((lambda *s: torch.randn(*s, dtype=torch.bfloat16) * 0.05)(N, D)),
        "e_attr": _w((lambda *s: torch.randn(*s, dtype=torch.bfloat16) * 0.4)(E, De)),
        "src": _w((lambda lo, hi, *s: torch.randint(lo, hi, s))(0, N, E).to(torch.int64)),
        "dst": _w((lambda lo, hi, *s: torch.randint(lo, hi, s))(0, N, E).to(torch.int64)),
        "w_msg": _w((lambda *s: torch.randn(*s, dtype=torch.bfloat16) * 0.4)(2 * D + De, D)),
        "w_upd": _w((lambda *s: torch.randn(*s, dtype=torch.bfloat16) * 0.05)(2 * D, D)),
    }

def reference(x, e_attr, src, dst, w_msg, w_upd):
    N, D = x.shape
    m_in = torch.concatenate([x[src], x[dst], e_attr], axis=-1)
    msg = _silu(m_in @ w_msg)
    agg = _segment_sum(msg, dst, N)
    return _silu(torch.concatenate([x, agg], axis=-1) @ w_upd)
```

```python
import re
class Asm:
    def __init__(self):
        self.lines = []
    def __call__(self, s):
        for l in s.split('\n'):
            l = l.strip()
            if l: self.lines.append(l)
    def label(self, n): self.lines.append(n + ':')
    def nop(self, n):
        while n > 0:
            k = min(n, 16); self.lines.append('s_nop %d' % (k-1)); n -= k
    def text(self):
        out = []
        for l in self.lines:
            if l.endswith(':') or l.startswith('.') or l.startswith(';'): out.append(l)
            else: out.append('    ' + l)
        return '\n'.join(out) + '\n'

def vr(a, n=1):
    return 'v%d' % a if n == 1 else 'v[%d:%d]' % (a, a+n-1)
def sr(a, n=1):
    return 's%d' % a if n == 1 else 's[%d:%d]' % (a, a+n-1)

TRANS = ('v_exp_f32','v_rcp_f32','v_log_f32','v_rsq_f32','v_sqrt_f32','v_sin_f32','v_cos_f32')
def _regs(tok):
    tok = tok.strip().lstrip('-').replace('|','')
    m = re.match(r'^abs\((.*)\)$', tok)
    if m: tok = m.group(1)
    m = re.match(r'^([vsa])(\d+)$', tok)
    if m: return [(m.group(1), int(m.group(2)))]
    m = re.match(r'^([vsa])\[(\d+):(\d+)\]$', tok)
    if m: return [(m.group(1), i) for i in range(int(m.group(2)), int(m.group(3))+1)]
    if tok == 'vcc': return [('s', 106), ('s', 107)]
    if tok == 'exec': return [('s', 126), ('s', 127)]
    if tok == 'm0': return [('s', 124)]
    return []
def parse(line):
    line = line.split(';')[0].strip()
    if not line or line.endswith(':') or line.startswith('.'): return None
    parts = line.split(None, 1)
    op = parts[0]
    ops = []
    mods = ''
    if len(parts) > 1:
        toks = [t.strip() for t in parts[1].split(',')]
        last = toks[-1].split()
        toks[-1] = last[0] if last else ''
        mods = ' '.join(last[1:])
        ops = toks
    d = dict(op=op, ops=ops, mods=mods, line=line)
    w, r = [], []
    isv = op.startswith('v_')
    if op.startswith('v_mfma'):
        d['k'] = 'mfma'; w = _regs(ops[0]); d['A'] = _regs(ops[1]); d['B'] = _regs(ops[2]); d['C'] = _regs(ops[3]); r = d['A']+d['B']+d['C']
        d['passes'] = 8 if '32x32' in op else 4
    elif isv:
        d['k'] = 'valu'
        if op.startswith('v_cmp'):
            w = _regs(ops[0]); r = sum((_regs(o) for o in ops[1:]), [])
            if op.startswith('v_cmpx'): w += _regs('exec')
        elif op in ('v_add_co_u32','v_sub_co_u32','v_addc_co_u32'):
            w = _regs(ops[0])+_regs(ops[1]); r = sum((_regs(o) for o in ops[2:]), [])
        elif op.startswith('v_permlane') and 'swap' in op:
            w = _regs(ops[0])+_regs(ops[1]); r = list(w)
        else:
            w = _regs(ops[0]); r = sum((_regs(o) for o in ops[1:]), [])
            if op.startswith('v_fmac') or 'dpp' in op or op.startswith('v_writelane'): r += _regs(ops[0])
    elif op.startswith('ds_'):
        d['k'] = 'ds'
        if op.startswith(('ds_read','ds_bpermute','ds_permute','ds_swizzle')) or '_rtn' in op:
            w = _regs(ops[0]); r = sum((_regs(o) for o in ops[1:]), [])
        else: r = sum((_regs(o) for o in ops), [])
    elif op.startswith(('buffer_','global_')):
        d['k'] = 'vmem'
        if 'lds' in mods.split():
            r = sum((_regs(o) for o in ops), []) + _regs('m0'); d['dma'] = True
        elif '_load' in op: w = _regs(ops[0]); r = sum((_regs(o) for o in ops[1:]), [])
        else:
            r = sum((_regs(o) for o in ops), [])
            if op.endswith(('x3','x4')): d['wide'] = _regs(ops[0] if op.startswith('buffer') else ops[1])
    elif op.startswith('s_'):
        d['k'] = 'salu'
        if op.startswith(('s_cmp','s_cbranch','s_branch','s_waitcnt','s_barrier','s_nop','s_setprio','s_endpgm','s_sleep','s_bitcmp')): r = sum((_regs(o) for o in ops), [])
        else:
            w = _regs(ops[0]); r = sum((_regs(o) for o in ops[1:]), [])
            if 'saveexec' in op: w += _regs('exec')
    else: d['k'] = '?'
    d['w'] = set(w); d['r'] = set(r)
    d['ws'] = (int(ops[0])+1) if op == 's_nop' else 1
    return d
def check(lines):
    ins = [p for p in (parse(l) for l in lines) if p]
    errs = []
    for i, c in enumerate(ins):
        dist = 0
        j = i-1
        while j >= 0 and dist < 24:
            p = ins[j]
            need = 0; why = ''
            def upd(n, y):
                nonlocal need, why
                if n > need: need, why = n, y
            pw = p['w']
            if p['k'] == 'valu':
                vw = {x for x in pw if x[0] in 'va'}; sw = {x for x in pw if x[0] == 's'}
                if c['k'] == 'mfma' and vw & c['r']: upd(2, 'valu->mfma')
                if c['k'] == 'valu':
                    if p['op'].replace('_e32','').replace('_e64','') in TRANS and c['op'] not in TRANS and vw & c['r']: upd(1, 'trans->valu')
                    if 'dpp' in c['op'] and vw & c['r']: upd(2, 'valu->dpp')
                    if c['op'].startswith(('v_readfirstlane','v_readlane')) and vw & c['r']: upd(1, 'valu->readlane')
                    if c['op'].startswith('v_permlane') and vw & c['r']: upd(2, 'valu->permlane')
                    if sw & c['r']: upd(4 if c['op'].startswith(('v_readlane','v_writelane')) else 2, 'valu sgpr->valu')
                    if 'sdwa' in p['op'] and vw & (c['r']|c['w']): upd(1, 'sdwa')
                if c['k'] == 'vmem' and sw & c['r']: upd(5, 'valu sgpr->vmem')
            if p['k'] == 'salu' and ('s',124) in pw and c.get('dma'): upd(1, 'm0->dma')
            if p['k'] == 'vmem' and 'wide' in p and set(p['wide']) & c['w']: upd(2, 'wide store war')
            if p['k'] == 'mfma':
                big = p['passes'] == 8
                if c['k'] == 'mfma':
                    if pw & set(c['C']):
                        if set(c['C']) != pw or c['passes'] != p['passes']: upd(10 if big else 6, 'mfma->mfma C overlap')
                    if pw & (set(c['A'])|set(c['B'])): upd(12 if big else 8, 'mfma->mfma AB')
                    if pw & c['w'] and not (pw & set(c['C'])): upd(10 if big else 6, 'mfma->mfma WAW(conservative)')
                elif c['k'] in ('valu','ds','vmem'):
                    if pw & (c['r']|c['w']): upd(12 if big else 8, 'mfma D->use')
                    if c['k'] == 'valu' and set(p['C']) & c['w']: upd(7 if big else 3, 'mfma C war')
            if need > dist: errs.append('HAZARD %s need %d have %d: [%s] -> [%s]' % (why, need, dist, p['line'], c['line']))
            dist += p['ws']
            if p['op'] in ('s_branch','s_endpgm'): break
            j -= 1
    return errs
```

```python
import sys, struct
from asmlib import *

STAMP = '--stamp' in sys.argv
OUTF = [a for a in sys.argv[1:] if not a.startswith('--')][0]

N, E = 12500, 400000
NPB = 49
NCH, CH = 125, 3200
WS_P = 4096
WS_CELLS = 0x400000
WS_FRAG = 0x800000
WS_OVFLEN = 0x900000
WS_OVFREC = 0x910000
WS_OVFBKT = 0xB00000
WS_STAMP = 0xD00000
WS_SIZE = 0x1000000
NEGLOG2E = struct.unpack('<I', struct.pack('<f', -1.4426950408889634))[0]
NEGLN2 = struct.unpack('<I', struct.pack('<f', -0.6931471805599453))[0]
PADV = 0x40004000
NGEMM = 196
PRE_WGS = NCH + NGEMM + 4

a = Asm()
def srd(d, base, size):
    a(f's_mov_b32 s{d}, s{base}')
    a(f's_and_b32 s{d+1}, s{base+1}, 0xffff')
    a(f's_mov_b32 s{d+2}, {size:#x}')
    a(f's_mov_b32 s{d+3}, 0x20000')

a('.globl pre_kernel\n.p2align 8\n.type pre_kernel,@function')
a.label('pre_kernel')
a(f's_cmp_ge_u32 s2, {PRE_WGS}')
a('s_cbranch_scc1 L_pre_end')
a('s_load_dwordx4 s[4:7], s[0:1], 0')
a('s_load_dwordx4 s[8:11], s[0:1], 16')
a('s_load_dwordx4 s[12:15], s[0:1], 32')
a('s_load_dwordx2 s[16:17], s[0:1], 64')
a('v_lshlrev_b32 v1, 4, v0')
a('v_lshrrev_b32 v2, 6, v0')
a('v_and_b32 v3, 63, v0')
a('v_readfirstlane_b32 s3, v2')
a('s_waitcnt lgkmcnt(0)')
X, SRC, DST, W, WS = 20, 24, 28, 32, 36
srd(X, 4, N*256); srd(SRC, 8, E*4); srd(DST, 10, E*4); srd(WS, 16, WS_SIZE)
a(f's_sub_u32 s40, s2, {NCH+NGEMM+1}')
a('s_cmp_lt_u32 s40, 2')
a(f's_cselect_b32 s{W}, s14, s12')
a(f's_cselect_b32 s{W+1}, s15, s13')
a(f's_cselect_b32 s{W+2}, 0x10000, {272*256:#x}') if False else None
a(f's_mov_b32 s41, {272*256:#x}')
a(f's_cselect_b32 s{W+2}, 0x10000, s41')
a(f's_and_b32 s{W+1}, s{W+1}, 0xffff')
a(f's_mov_b32 s{W+3}, 0x20000')
a(f's_cmp_ge_u32 s2, {NCH}')
a('s_cbranch_scc1 L_pre_gemm')
D0, S0, B4, RK = 8, 16, 24, 32
a(f's_mul_i32 s40, s2, {CH*4}')
a('s_add_u32 s41, s40, 8192')
a(f'buffer_load_dwordx4 v[8:11], v1, s[{DST}:{DST+3}], s40 offen')
a(f'buffer_load_dwordx4 v[16:19], v1, s[{SRC}:{SRC+3}], s40 offen')
a('v_cmp_gt_u32 vcc, 288, v0')
a('s_mov_b64 s[42:43], vcc')
a('s_mov_b64 exec, vcc')
a('s_cbranch_execz L_p_no2')
a(f'buffer_load_dwordx4 v[12:15], v1, s[{DST}:{DST+3}], s41 offen')
a(f'buffer_load_dwordx4 v[20:23], v1, s[{SRC}:{SRC+3}], s41 offen')
a.label('L_p_no2')
a('s_mov_b64 exec, -1')
for i in range(4): a(f'v_mov_b32 v{4+i}, -1')
for k in range(4): a(f'ds_write_b128 v1, v[4:7] offset:{8192*k}')
a('v_lshlrev_b32 v40, 2, v0')
a('v_mov_b32 v41, 0')
a('ds_write_b32 v40, v41 offset:32768')
for k in range(4, 8): a(f'v_mov_b32 v{RK+k}, 0')
a('v_mov_b32 v42, 1')
a('v_lshlrev_b32 v43, 16, v0')
a('v_add_u32 v43, 16, v43')
a('s_waitcnt lgkmcnt(0)')
a('s_barrier')
a('s_waitcnt vmcnt(0)')
def part1(k):
    d, s, b = D0+k, S0+k, B4+k
    a(f'v_mul_u32_u24 v{b}, 85599, v{d}')
    a(f'v_lshrrev_b32 v{b}, 22, v{b}')
    a(f'v_mul_u32_u24 v44, 49, v{b}')
    a(f'v_lshlrev_b32 v{b}, 2, v{b}')
    a(f'ds_add_rtn_u32 v{RK+k}, v{b}, v42 offset:32768')
    a(f'v_sub_u32 v44, v{d}, v44')
    a(f'v_lshl_add_u32 v{s}, v44, 26, v{s}')
    ec = ((k & 3) + (2048 if k >= 4 else 0)) << 14
    a(f'v_add_u32 v{s}, v{s}, v43')
    if ec: a(f'v_add_u32 v{s}, {ec:#x}, v{s}')
def part2(k):
    a(f'v_min_u32 v44, 31, v{RK+k}')
    a('v_and_b32 v45, 3, v44')
    a('v_and_b32 v44, 0x1c, v44')
    a('v_lshl_or_b32 v44, v45, 5, v44')
    a(f'v_lshl_add_u32 v44, v{B4+k}, 5, v44')
    a(f'ds_write_b32 v44, v{S0+k}')
for k in range(4): part1(k)
a('s_mov_b64 exec, s[42:43]')
a('s_cbranch_execz L_p_no2b')
for k in range(4, 8): part1(k)
a('s_waitcnt lgkmcnt(0)')
for k in range(4, 8): part2(k)
a.label('L_p_no2b')
a('s_mov_b64 exec, -1')
a('s_waitcnt lgkmcnt(0)')
for k in range(4): part2(k)
a(f'v_max3_u32 v44, v{RK}, v{RK+1}, v{RK+2}')
a(f'v_max3_u32 v44, v44, v{RK+3}, v{RK+4}')
a(f'v_max3_u32 v44, v44, v{RK+5}, v{RK+6}')
a(f'v_max_u32 v44, v44, v{RK+7}')
a('v_cmp_lt_u32 vcc, 30, v44')
a('s_cbranch_vccz L_p_noovf')
a(f's_add_u32 s44, s40, {WS_OVFREC:#x}')
a(f's_add_u32 s45, s40, {WS_OVFBKT:#x}')
a(f'v_mov_b32 v46, {32768+1024}')
for k in range(8):
    a(f'v_cmp_lt_u32 vcc, 30, v{RK+k}')
    a('s_mov_b64 exec, vcc')
    a(f's_cbranch_execz L_p_ov{k}')
    a('ds_add_rtn_u32 v44, v46, v42')
    a(f'v_lshrrev_b32 v45, 2, v{B4+k}')
    a('s_waitcnt lgkmcnt(0)')
    a('v_lshlrev_b32 v44, 2, v44')
    a(f'buffer_store_dword v{S0+k}, v44, s[{WS}:{WS+3}], s44 offen')
    a(f'buffer_store_dword v45, v44, s[{WS}:{WS+3}], s45 offen')
    a('s_waitcnt vmcnt(0)')
    a.label(f'L_p_ov{k}')
    a('s_mov_b64 exec, -1')
a.label('L_p_noovf')
a('v_lshrrev_b32 v44, 3, v0')
a('v_lshlrev_b32 v45, 2, v44')
a('v_and_b32 v46, 7, v0')
a('v_lshlrev_b32 v47, 14, v44')
a('v_lshl_add_u32 v47, v46, 4, v47')
a('v_cmp_eq_u32 vcc, 7, v46')
a(f's_lshl_b32 s44, s2, 7')
a(f's_add_u32 s44, s44, {WS_CELLS:#x}')
a('s_waitcnt lgkmcnt(0)')
a('s_barrier')
for k in range(4):
    a(f'ds_read_b128 v[{8+4*k}:{11+4*k}], v1 offset:{8192*k}')
    a(f'ds_read_b32 v{24+k}, v45 offset:{32768+256*k}')
a('ds_read_b32 v28, v41 offset:33792')
for k in range(4):
    a(f's_waitcnt lgkmcnt({7-2*k})')
    a(f'v_cndmask_b32 v{11+4*k}, v{11+4*k}, v{24+k}, vcc')
    a(f'buffer_store_dwordx4 v[{8+4*k}:{11+4*k}], v47, s[{WS}:{WS+3}], s44 offen')
    if k < 3: a('s_add_u32 s44, s44, 0x100000')
a('s_cmp_lg_u32 s3, 0')
a('s_cbranch_scc1 L_pre_end')
a('s_lshl_b32 s44, s2, 2')
a(f's_add_u32 s44, s44, {WS_OVFLEN:#x}')
a('s_mov_b64 exec, 1')
a('s_waitcnt lgkmcnt(0)')
a(f'buffer_store_dword v28, v41, s[{WS}:{WS+3}], s44 offen')
a('s_endpgm')

a.label('L_pre_gemm')
a(f's_sub_u32 s40, s2, {NCH}')
a(f's_sub_u32 s41, s40, {NGEMM}')
a('s_mov_b32 s42, 0')
a('s_cmp_eq_u32 s41, 0')
a('s_cselect_b32 s42, 0x8000, s42')
a('s_cmp_eq_u32 s41, 2')
a('s_cselect_b32 s42, 0x8000, s42')
a('s_cmp_eq_u32 s41, 3')
a('s_cselect_b32 s42, 0x10000, s42')
a('v_lshrrev_b32 v4, 4, v3')
a('v_and_b32 v5, 15, v3')
a('v_lshlrev_b32 v6, 2, v4')
a('v_xor_b32 v6, v6, v5')
a('v_lshlrev_b32 v6, 4, v6')
a('v_lshl_add_u32 v6, v4, 8, v6')
a('s_lshl_b32 s43, s3, 12')
a('s_mov_b32 m0, s43')
a('s_add_u32 s42, s42, s43')
for i in range(4): a(f'buffer_load_dwordx4 v6, s[{W}:{W+3}], s42 offen offset:{1024*i} lds')
a(f's_cmp_lt_u32 s40, {NGEMM}')
a('s_cbranch_scc0 L_g_nox')
a('s_lshl_b32 s44, s3, 3')
a('v_add_u32 v7, s44, v4')
a('v_and_b32 v8, 15, v7')
a('v_xor_b32 v8, v8, v5')
a('v_lshlrev_b32 v8, 4, v8')
a('v_lshl_add_u32 v8, v7, 8, v8')
a('v_xor_b32 v9, 64, v8')
a('s_lshl_b32 s44, s3, 11')
a('s_add_u32 s44, s44, 32768')
a('s_mov_b32 m0, s44')
a('s_lshl_b32 s45, s40, 14')
a(f'buffer_load_dwordx4 v8, s[{X}:{X+3}], s45 offen lds')
a(f'buffer_load_dwordx4 v9, s[{X}:{X+3}], s45 offen offset:1024 lds')
a.label('L_g_nox')
a('s_and_b32 s46, s3, 3')
a('s_lshr_b32 s47, s3, 2')
a('v_lshrrev_b32 v10, 5, v3')
a('v_and_b32 v11, 1, v4')
a('v_bfe_u32 v12, v3, 2, 2')
a('v_and_b32 v13, 1, v3')
a('v_bfe_u32 v14, v3, 1, 1')
a('v_lshl_add_u32 v15, v13, 1, v11')
a('v_lshl_add_u32 v16, v11, 1, v14')
a('s_cmp_eq_u32 s41, 3')
a('s_cselect_b64 vcc, -1, 0')
a('v_cndmask_b32 v15, v15, v16, vcc')
a('v_cndmask_b32 v16, v14, v13, vcc')
a('v_xor_b32 v17, s46, v12')
a('v_lshl_add_u32 v15, v17, 2, v15')
a('v_lshlrev_b32 v15, 4, v15')
a('v_lshl_add_u32 v15, v16, 3, v15')
a('v_lshl_add_u32 v17, v10, 3, v12')
a('v_lshl_add_u32 v15, v17, 8, v15')
a('v_and_b32 v18, 31, v3')
a('s_waitcnt vmcnt(0)')
a('s_barrier')
a(f's_cmp_lt_u32 s40, {NGEMM}')
a('s_cbranch_scc0 L_g_frag')
WF, XF, ACC = 32, 64, 96
for s in range(8):
    for u in range(2): a(f'ds_read_b64_tr_b16 v[{WF+4*s+2*u}:{WF+4*s+2*u+1}], v15 offset:{4096*s+1024*u}')
    if s == 3: a('s_waitcnt lgkmcnt(0)')
a('s_lshl_b32 s48, s47, 5')
a('v_add_u32 v19, s48, v18')
a('v_and_b32 v20, 15, v18')
a('v_xor_b32 v20, v20, v10')
a('v_lshlrev_b32 v20, 4, v20')
a('v_lshl_add_u32 v20, v19, 8, v20')
a('s_waitcnt lgkmcnt(0)')
for s in range(8):
    a(f'v_xor_b32 v21, {32*s}, v20')
    a(f'ds_read_b128 v[{XF+4*s}:{XF+4*s+3}], v21 offset:32768')
for s in range(8):
    a(f's_waitcnt lgkmcnt({7-s})')
    c = '0' if s == 0 else f'v[{ACC}:{ACC+15}]'
    a(f'v_mfma_f32_32x32x16_bf16 v[{ACC}:{ACC+15}], v[{WF+4*s}:{WF+4*s+3}], v[{XF+4*s}:{XF+4*s+3}], {c}')
a('v_lshlrev_b32 v22, 8, v19')
a('v_lshl_add_u32 v22, v10, 5, v22')
a('s_lshl_b32 s48, s46, 6')
a('s_add_u32 s48, s48, s45')
a(f's_add_u32 s48, s48, {WS_P}')
a.nop(8)
for r in range(16): a(f'v_mul_f32 v{ACC+r}, {NEGLOG2E:#x}, v{ACC+r}')
for r in range(8): a(f'v_cvt_pk_bf16_f32 v{24+r}, v{ACC+2*r}, v{ACC+2*r+1}')
a(f'buffer_store_dwordx4 v[24:27], v22, s[{WS}:{WS+3}], s48 offen')
a(f'buffer_store_dwordx4 v[28:31], v22, s[{WS}:{WS+3}], s48 offen offset:16')
a('s_endpgm')
a.label('L_g_frag')
a('v_lshlrev_b32 v22, 4, v3')
a('s_cmp_eq_u32 s41, 3')
a('s_cbranch_scc1 L_g_w3')
a('s_lshl_b32 s48, s47, 14')
a('v_add_u32 v15, s48, v15')
for s in range(4):
    for u in range(2): a(f'ds_read_b64_tr_b16 v[{WF+4*s+2*u}:{WF+4*s+2*u+1}], v15 offset:{4096*s+1024*u}')
a('s_lshl_b32 s48, s41, 15')
a('s_lshl_b32 s49, s46, 13')
a('s_add_u32 s48, s48, s49')
a('s_lshl_b32 s49, s47, 12')
a('s_add_u32 s48, s48, s49')
a(f's_add_u32 s48, s48, {WS_FRAG:#x}')
a('s_waitcnt lgkmcnt(0)')
for s in range(4): a(f'buffer_store_dwordx4 v[{WF+4*s}:{WF+4*s+3}], v22, s[{WS}:{WS+3}], s48 offen offset:{1024*s}')
a('s_endpgm')
a.label('L_g_w3')
a('s_cmp_lg_u32 s47, 0')
a('s_cbranch_scc1 L_pre_end')
for u in range(2): a(f'ds_read_b64_tr_b16 v[{WF+2*u}:{WF+2*u+1}], v15 offset:{1024*u}')
a('s_lshl_b32 s48, s46, 10')
a(f's_add_u32 s48, s48, {WS_FRAG+3*32768:#x}')
a('s_waitcnt lgkmcnt(0)')
for r in range(4):
    a(f'v_lshlrev_b32 v40, 16, v{WF+r}')
    a(f'v_and_b32 v41, 0xffff0000, v{WF+r}')
    a(f'v_mul_f32 v40, {NEGLOG2E:#x}, v40')
    a(f'v_mul_f32 v41, {NEGLOG2E:#x}, v41')
    a(f'v_cvt_pk_bf16_f32 v{WF+r}, v40, v41')
a(f'buffer_store_dwordx4 v[{WF}:{WF+3}], v22, s[{WS}:{WS+3}], s48 offen')
a.label('L_pre_end')
a('s_endpgm')

CAPT = 69
L_EM, L_PT = 0, 72*256
L_QT = L_PT + 72*128
L_QW = L_QT + 72*32
L_QK = L_QW + 72*32
L_HIST = L_QK + 72*32
L_MISC = L_HIST + 256
L_NODE = L_MISC + 64
NSTR = 1104
DUMMY = 49*NSTR
L_STG = 90112
LDS_MAIN = L_STG + 65536
assert L_NODE + 50*NSTR <= L_STG and L_NODE % 16 == 0

ZB = [16, 32]; U = 48; NF = 64; D = 68; RC = 72; M = 76; G = 80
PA = [84, 100]; QB = [116, 120]; EC = 124; EN = 128; TM = 132; TC = 136
I0 = 140; I1 = 144; W3 = 148; R = 164; WU2 = 180; REC = 212
vEM, vPT, vQA, vQ2 = 220, 221, 222, 223
LC = 224; RA = 228; AA = 232; DA = 236; TA = 240; QAr = 244; PTr = 248
Q2r = 242; EOr = 252; MKr = 253; EV = 254; CB = 255
CA, CT, H16, NL = 12, 13, 14, 15
LANE, MM, HH = 1, 2, 3
KK = 4; ACC = [8, 9, 82, 83]
XF, W2F, WU1F = 16, 48, 84
HA, RKm = 116, 124
PS, WSd, Ed, Xd, Od = 8, 12, 16, 20, 24
sW, sB, sA, sNODE0, sT, sTC, sSAFE, sRM, sFIRST, sBML, sM0A, sM0B, s128, sNZ = 28, 29, 30, 31, 32, 33, 34, 35, 36, 37, 38, 39, 56, 57
XM = 40
sSLOW, sN, sPASS = 64, 65, 66
BM = 60
nstamp = [0]
def stamp():
    if STAMP:
        a(f's_memtime s[{70+2*nstamp[0]}:{71+2*nstamp[0]}]'); nstamp[0] += 1

a('.globl main_kernel\n.p2align 8\n.type main_kernel,@function')
a.label('main_kernel')
a('s_cmp_ge_u32 s2, 256')
a('s_cbranch_scc1 L_main_end')
stamp()
a('s_load_dwordx4 s[4:7], s[0:1], 0')
a('s_load_dwordx2 s[64:65], s[0:1], 48')
a('s_load_dwordx2 s[66:67], s[0:1], 64')
a(f'v_lshrrev_b32 v4, 6, v0')
a(f'v_and_b32 v{LANE}, 63, v0')
a(f'v_readfirstlane_b32 s{sW}, v4')
a(f'v_and_b32 v{MM}, 31, v0')
a(f'v_bfe_u32 v{HH}, v0, 5, 1')
a(f'v_lshlrev_b32 v5, 5, v0')
a(f's_mul_i32 s{sNODE0}, s2, {NPB*256}')
a(f's_and_b32 s{sB}, s{sW}, 3')
a(f's_lshr_b32 s{sA}, s{sW}, 2')
a(f's_mov_b32 s{sSAFE}, 0')
a(f's_mov_b32 s{sFIRST}, 1')
a(f's_mov_b32 s{s128}, 128')
a(f's_lshl_b32 s{sM0A}, s{sW}, 13')
a(f's_add_u32 s{sM0A}, s{sM0A}, {L_STG}')
a(f's_add_u32 s{sM0B}, s{sM0A}, 4096')
a('s_waitcnt lgkmcnt(0)')
srd(WSd, 66, WS_SIZE); srd(PS, 66, WS_P + N*256); srd(Ed, 6, E*32); srd(Xd, 4, N*256); srd(Od, 64, N*256)
a.label('L_cells')
for k in range(8): a(f'v_mov_b32 v{REC+k}, -1')
a('v_lshlrev_b32 v5, 5, v0')
a('s_lshl_b32 s58, s2, 14')
a(f's_add_u32 s58, s58, {WS_CELLS:#x}')
a('v_cmp_gt_u32 vcc, 500, v0')
a('s_mov_b64 exec, vcc')
a(f'buffer_load_dwordx4 v[{REC}:{REC+3}], v5, s[{WSd}:{WSd+3}], s58 offen')
a(f'buffer_load_dwordx4 v[{REC+4}:{REC+7}], v5, s[{WSd}:{WSd+3}], s58 offen offset:16')
a('s_mov_b64 exec, -1')
a(f's_mov_b32 s{sRM}, 0')
a(f's_mov_b32 s{sBML}, 0')
a(f's_mov_b32 s{sPASS}, 0')
a(f's_cmp_eq_u32 s{sFIRST}, 0')
a('s_cbranch_scc1 L_skipfirst')
a(f'v_lshrrev_b32 v4, 4, v{LANE}')
a(f'v_and_b32 v5, 15, v{LANE}')
a(f's_lshl_b32 s58, s{sW}, 3')
a('v_add_u32 v6, s58, v4')
a('v_and_b32 v7, 15, v6')
a('v_xor_b32 v7, v7, v5')
a('v_lshlrev_b32 v7, 4, v7')
a('v_lshl_add_u32 v7, v6, 8, v7')
a('v_xor_b32 v8, 64, v7')
a(f's_lshl_b32 s58, s{sW}, 11')
a(f's_add_u32 s58, s58, {L_STG}')
a('s_mov_b32 m0, s58')
a(f'v_lshlrev_b32 v9, 4, v{LANE}')
a(f'buffer_load_dwordx4 v7, s[{Xd}:{Xd+3}], s{sNODE0} offen lds')
a(f'buffer_load_dwordx4 v8, s[{Xd}:{Xd+3}], s{sNODE0} offen offset:1024 lds')
a(f's_lshl_b32 s58, s{sB}, 13')
a(f's_add_u32 s58, s58, {WS_FRAG:#x}')
def loadfrag(dst):
    for s in range(8):
        if s == 4: a('s_add_u32 s58, s58, 4096')
        a(f'buffer_load_dwordx4 v[{dst+4*s}:{dst+4*s+3}], v9, s[{WSd}:{WSd+3}], s58 offen offset:{1024*(s&3)}')
loadfrag(W2F)
a(f's_mov_b32 s59, {WS_FRAG+3*32768:#x}')
for b in range(4): a(f'buffer_load_dwordx4 v[{W3+4*b}:{W3+4*b+3}], v9, s[{WSd}:{WSd+3}], s59 offen offset:{1024*b}')
a(f's_add_u32 s58, s58, {32768-4096}')
loadfrag(WU1F)
a(f's_add_u32 s58, s58, {32768-4096}')
loadfrag(WU2)
NFIRST = 8+4+8+8
a(f'v_bfe_u32 v4, v{MM}, 2, 1')
a(f'v_lshrrev_b32 v5, 3, v{MM}')
a('v_lshl_add_u32 v4, v4, 2, v5')
a(f'v_and_b32 v5, 3, v{MM}')
a('v_lshl_add_u32 v10, v4, 2, v5')
a(f'v_lshrrev_b32 v6, 4, v{MM}')
a('v_lshl_or_b32 v6, v6, 2, v5')
a(f'v_xor_b32 v6, v6, v{HH}')
a('v_lshlrev_b32 v6, 4, v6')
a('v_lshl_add_u32 v6, v4, 7, v6')
a('v_lshl_add_u32 v6, v5, 10, v6')
a(f'v_add_u32 v{RA}, s{sM0A}, v6')
for x in range(1, 4): a(f'v_xor_b32 v{RA+x}, {32*x}, v{RA}')
def onehot(dst, vj):
    a(f'v_and_b32 v7, 1, v{vj}')
    a('v_lshlrev_b32 v7, 4, v7')
    a('v_mov_b32 v8, 0x3f80')
    a('v_lshlrev_b32 v8, v7, v8')
    a(f'v_lshrrev_b32 v7, 1, v{vj}')
    for r in range(4):
        a(f'v_cmp_eq_u32 vcc, {r}, v7')
        a.nop(2)
        a(f'v_cndmask_b32 v{dst+r}, 0, v8, vcc')
a(f'v_bfe_u32 v5, v{MM}, 3, 1')
a(f'v_bfe_u32 v6, v{MM}, 2, 1')
a('v_lshlrev_b32 v5, 2, v5')
a('v_lshl_add_u32 v5, v6, 1, v5')
a(f'v_lshrrev_b32 v6, 4, v{MM}')
a('v_add_u32 v4, v5, v6')
onehot(TC, 4)
a(f'v_lshlrev_b32 v5, 3, v{HH}')
a(f'v_sub_u32 v5, v{MM}, v5')
onehot(I0, 5)
a('v_subrev_u32 v5, 16, v5')
onehot(I1, 5)
a(f'v_and_b32 v4, 7, v{LANE}')
a(f'v_bfe_u32 v5, v{LANE}, 4, 1')
a('v_lshlrev_b32 v5, 2, v5')
a('v_xor_b32 v4, v4, v5')
a('v_lshlrev_b32 v4, 4, v4')
for i in range(4):
    a(f'v_xor_b32 v{LC+i}, {16*i}, v4')
    if i: a(f'v_subrev_u32 v{LC+i}, {1024*i}, v{LC+i}')
a(f'v_lshlrev_b32 v{CA}, 2, v{MM}')
a(f'v_add_u32 v{CA}, {L_NODE}, v{CA}')
a(f'v_bfe_u32 v4, v{LANE}, 4, 1')
a(f'v_and_b32 v5, 3, v{LANE}')
a('v_lshlrev_b32 v5, 3, v5')
a('v_lshl_add_u32 v5, v4, 5, v5')
a(f'v_lshl_add_u32 v5, v{HH}, 8, v5')
a(f'v_add_u32 v{CT}, {L_NODE+512}, v5')
a(f'v_lshlrev_b32 v{H16}, 4, v{HH}')
a(f's_lshl_b32 s58, s{sA}, 5')
a(f'v_add_u32 v{NL}, s58, v{MM}')
a.label('L_skipfirst')
a('v_lshrrev_b32 v4, 2, v0')
a(f'v_mul_u32_u24 v{CB}, {CH*32}, v4')
for i in range(4): a(f'v_mov_b32 v{PTr+i}, 0')
a('v_lshrrev_b32 v4, 5, v0')
a(f'v_mul_u32_u24 v4, {NSTR}, v4')
a(f'v_lshl_add_u32 v4, v{MM}, 4, v4')
a(f'v_add_u32 v4, {L_NODE}, v4')
for k in range(3): a(f'ds_write_b128 v4, v[{PTr}:{PTr+3}] offset:{16*NSTR*k}')
a('v_cmp_gt_u32 vcc, 32, v0')
a('s_mov_b64 exec, vcc')
a(f'ds_write_b128 v4, v[{PTr}:{PTr+3}] offset:{16*NSTR*3}')
a(f'ds_write_b128 v4, v[{PTr}:{PTr+3}] offset:{49*NSTR+512}')
a('s_mov_b64 exec, -1')
a(f'v_mov_b32 v{G}, 0')
a(f'v_mov_b32 v{G+1}, 0')
a(f's_mov_b32 s{sNZ}, {(L_NODE-L_QK)//16}')
a.label('L_reinit')
for i in range(4): a(f'v_mov_b32 v{PTr+i}, 0')
for i in range(4): a(f'v_mov_b32 v{QAr+i}, {PADV:#x}')
a('v_lshlrev_b32 v4, 4, v0')
for k in range(3): a(f'ds_write_b128 v4, v[{QAr}:{QAr+3}] offset:{8192*k}')
a(f'v_cmp_gt_u32 vcc, {L_QT//16-1536}, v0')
a('s_mov_b64 exec, vcc')
a(f'ds_write_b128 v4, v[{QAr}:{QAr+3}] offset:{8192*3}')
a('s_mov_b64 exec, -1')
a(f'v_cmp_gt_u32 vcc, s{sNZ}, v0')
a('s_mov_b64 exec, vcc')
a(f'ds_write_b128 v4, v[{PTr}:{PTr+3}] offset:{L_QK}')
a('s_mov_b64 exec, -1')
for i in range(4): a(f'v_mov_b32 v{DA+i}, {DUMMY}')
a(f'v_cmp_gt_u32 vcc, {(L_QK-L_QT)//16}, v0')
a('s_mov_b64 exec, vcc')
a(f'ds_write_b128 v4, v[{DA}:{DA+3}] offset:{L_QT}')
a('s_mov_b64 exec, -1')
a(f's_mov_b32 s{sNZ}, {(L_MISC-L_QK)//16}')
a(f's_cmp_eq_u32 s{sFIRST}, 0')
a('s_cbranch_scc1 L_w0')
a(f's_waitcnt vmcnt({NFIRST})')
a('s_branch L_w1')
a.label('L_w0')
a('s_waitcnt vmcnt(0)')
a.label('L_w1')
a('s_waitcnt lgkmcnt(0)')
stamp()
a('s_barrier')
a(f's_or_b32 s58, s{sBML}, s{sRM}')
a('s_cmp_lg_u32 s58, 0')
a('s_cbranch_scc1 L_nohdr')
a('s_mov_b32 s58, 0x88888888')
a('s_mov_b32 s59, 0x88888888')
a(f'v_cmp_lt_i32 vcc, 31, v{REC+7}')
a('s_and_b64 exec, vcc, s[58:59]')
a('s_cbranch_execz L_noovf')
a('v_lshrrev_b32 v4, 2, v0')
a('v_lshrrev_b32 v5, 5, v4')
a('v_lshlrev_b32 v5, 2, v5')
a('v_lshlrev_b32 v4, v4, 1') if False else None
a('v_mov_b32 v6, 1')
a('v_lshlrev_b32 v4, v4, v6')
a(f'ds_or_b32 v5, v4 offset:{L_MISC}')
a.label('L_noovf')
a('s_mov_b64 exec, s[58:59]')
a(f'v_mov_b32 v{REC+7}, -1')
a('s_mov_b64 exec, -1')
a.label('L_nohdr')
a('v_mov_b32 v11, 1')
for k in range(8):
    a(f'v_cmp_ne_u32 s[{XM+2*k}:{XM+2*k+1}], -1, v{REC+k}')
    a(f'v_lshrrev_b32 v{HA+k}, 24, v{REC+k}')
    a(f'v_and_b32 v{HA+k}, 0xfc, v{HA+k}')
a(f's_cmp_eq_u32 s{sRM}, 0')
a('s_cbranch_scc1 L_rm0')
a(f's_cmp_eq_u32 s{sRM}, 1')
a('s_cbranch_scc1 L_rm1')
for k in range(4): a(f's_mov_b64 s[{XM+2*k}:{XM+2*k+1}], 0')
a('s_branch L_rm0')
a.label('L_rm1')
for k in range(4, 8): a(f's_mov_b64 s[{XM+2*k}:{XM+2*k+1}], 0')
a.label('L_rm0')
for k in range(8):
    a(f's_mov_b64 exec, s[{XM+2*k}:{XM+2*k+1}]')
    a(f'ds_add_rtn_u32 v{RKm+k}, v{HA+k}, v11 offset:{L_HIST}')
a('s_mov_b64 exec, -1')
a(f's_cmp_eq_u32 s{sFIRST}, 0')
a('s_cbranch_scc1 L_noxf')
a(f'v_and_b32 v4, 15, v{MM}')
a(f'v_xor_b32 v4, v4, v{HH}')
a('v_lshlrev_b32 v4, 4, v4')
a(f'v_lshl_add_u32 v4, v{NL}, 8, v4')
a(f'v_add_u32 v4, {L_STG}, v4')
a('s_waitcnt lgkmcnt(4)')
for s in range(8):
    a(f'v_xor_b32 v5, {32*s}, v4')
    a(f'ds_read_b128 v[{XF+4*s}:{XF+4*s+3}], v5')
a.label('L_noxf')
a(f'v_lshlrev_b32 v4, 2, v{LANE}')
a('s_waitcnt lgkmcnt(0)')
a('s_barrier')
a(f'ds_read_b32 v5, v4 offset:{L_HIST}')
a('s_waitcnt lgkmcnt(0)')
a('v_add_u32 v5, 3, v5')
a('v_and_b32 v5, -4, v5')
a('v_mov_b32 v6, v5')
for sh in ('row_shr:1 row_mask:0xf', 'row_shr:2 row_mask:0xf', 'row_shr:4 row_mask:0xf', 'row_shr:8 row_mask:0xf', 'row_bcast:15 row_mask:0xa', 'row_bcast:31 row_mask:0xc'):
    a.nop(2)
    a(f'v_add_u32_dpp v6, v6, v6 {sh} bank_mask:0xf')
a('v_sub_u32 v7, v6, v5')
a(f'v_readlane_b32 s{sT}, v6, 63')
for k in range(8): a(f'ds_bpermute_b32 v{QAr+k}, v{HA+k}, v7')
a(f's_add_u32 s{sN}, s{sT}, 255')
a(f's_lshr_b32 s{sN}, s{sN}, 8')
a(f's_cmp_gt_u32 s{sN}, 9')
a('s_cbranch_scc0 L_fits')
a(f's_mov_b32 s{sRM}, 1')
a('s_waitcnt lgkmcnt(0)')
a('s_barrier')
a('s_branch L_reinit')
a.label('L_fits')
a(f's_lshl_b32 s58, s{sN}, 4')
a('v_cmp_lt_u32 vcc, s58, v5')
a(f's_or_b32 s{sSLOW}, s{sSAFE}, s{sPASS}')
a('s_cmp_lg_u64 vcc, 0')
a(f's_cselect_b32 s{sSLOW}, 1, s{sSLOW}')
a(f's_mov_b32 s{sPASS}, 1')
a(f'v_mul_u32_u24 v8, {NSTR}, v{LANE}')
a(f'v_mov_b32 v9, {DUMMY}')
a(f's_cmp_lg_u32 s{sSLOW}, 0')
a('s_cselect_b64 vcc, -1, 0')
a('s_cselect_b32 s67, 0, -1')
a('v_cndmask_b32 v9, v9, v8, vcc')
a(f's_lshl_b32 s58, s{sW}, 2')
a.label('L_qf')
a('v_cmp_lt_u32 vcc, s58, v5')
a('s_and_b64 exec, exec, vcc')
a('s_cbranch_execz L_qfd')
a('s_add_u32 s59, s58, 4')
a('v_cmp_eq_u32 vcc, s59, v5')
a('s_cmp_eq_u32 s58, 0')
a('s_cselect_b32 s59, 0, s67')
a('v_add_u32 v4, s58, v7')
a('v_mov_b32 v11, s59')
a('v_cndmask_b32 v6, v9, v8, vcc')
a(f'ds_write_b32 v4, v8 offset:{L_QT}')
a(f'ds_write_b32 v4, v11 offset:{L_QK}')
a(f'ds_write_b32 v4, v6 offset:{L_QW}')
a('s_add_u32 s58, s58, 32')
a('s_waitcnt lgkmcnt(6)')
a('s_branch L_qf')
a.label('L_qfd')
a('s_mov_b64 exec, -1')
a('v_mov_b32 v11, -1')
a('s_waitcnt lgkmcnt(0)')
for k in range(8):
    a(f's_mov_b64 exec, s[{XM+2*k}:{XM+2*k+1}]')
    if k >= 3: a(f's_cbranch_execz L_sc{k}')
    a(f'v_add_u32 v4, v{QAr+k}, v{RKm+k}')
    a(f'v_lshlrev_b32 v5, 8, v{REC+k}')
    a('v_and_b32 v5, 0x3fff00, v5')
    a('v_lshlrev_b32 v6, 2, v4')
    a(f'ds_write_b32 v6, v5 offset:{L_PT}')
    a(f'v_bfe_u32 v7, v{REC+k}, 14, 12')
    a(f'v_lshl_add_u32 v7, v7, 5, v{CB}')
    a('v_lshlrev_b32 v8, 3, v4')
    a('ds_write2_b32 v8, v7, v11 offset0:0 offset1:1')
    if k == 5: a('s_waitcnt lgkmcnt(4)')
    if k >= 3: a.label(f'L_sc{k}')
a('s_mov_b64 exec, -1')
a(f's_lshl_b32 s58, s{sN}, 4')
a(f's_mul_i32 s59, s58, s{sW}')
a('s_lshl_b32 s59, s59, 1')
a(f's_mov_b32 s{sTC}, s59')
a('v_lshrrev_b32 v4, 4, v10')
a('v_mul_u32_u24 v4, s58, v4')
a('v_and_b32 v5, 15, v10')
a('v_add3_u32 v4, v4, v5, s59')
a(f'v_lshlrev_b32 v{vEM}, 3, v4')
a(f'v_mul_u32_u24 v4, s58, v{HH}')
a('v_add_u32 v4, s59, v4')
a(f'v_add_u32 v{vQA}, {L_QT}, v4')
a(f'v_bfe_u32 v5, v{LANE}, 3, 2')
a('v_lshl_add_u32 v4, v5, 2, v4')
a(f'v_lshlrev_b32 v{vPT}, 2, v4')
a(f'v_bfe_u32 v4, v{LANE}, 3, 1')
a('v_mul_u32_u24 v4, s58, v4')
a(f'v_and_b32 v5, 4, v{LANE}')
a('v_lshl_add_u32 v4, v5, 1, v4')
a(f'v_add_u32 v{vQ2}, s59, v4')
a(f's_mov_b32 s{PS+2}, {WS_P+N*256:#x}')
a(f's_mov_b32 s{Ed+2}, {E*32:#x}')
a('s_waitcnt lgkmcnt(0)')
stamp()
a('s_barrier')
a(f'ds_read_b128 v[{PTr}:{PTr+3}], v{vPT} offset:{L_PT}')
a(f'ds_read_b64 v[{EOr}:{MKr}], v{vEM}')
a(f'ds_read_b128 v[{QAr}:{QAr+3}], v{vPT} offset:{L_PT+64}')
a(f'ds_read_b32 v4, v{vEM} offset:128')
a(f'ds_read_b64 v[{Q2r}:{Q2r+1}], v{vQ2} offset:{L_QT}')
a(f's_mov_b32 m0, s{sM0A}')
a('s_waitcnt lgkmcnt(3)')
a(f'v_add_u32 v{EV}, v{EOr}, v{H16}')
for i in range(4): a(f'v_add_u32 v{DA+i}, v{PTr+i}, v{LC+i}')
def dma(half):
    so = '0' if half == 0 else f's{s128}'
    return [f'buffer_load_dwordx4 v{DA+i}, s[{PS}:{PS+3}], {so} offen offset:{1024*i} lds' for i in range(4)]
def eload(dst): return f'buffer_load_dwordx4 v[{dst}:{dst+3}], v{EV}, s[{Ed}:{Ed+3}], 0 offen'
a(eload(EC))
for l in dma(0): a(l)
a(f's_mov_b32 m0, s{sM0B}')
a('s_nop 0')
for l in dma(1): a(l)
a('s_waitcnt lgkmcnt(0)')
for i in range(4): a(f'v_add_u32 v{DA+i}, v{QAr+i}, v{LC+i}')
a(f'v_add_u32 v{EV}, v4, v{H16}')
for i in range(4): a(f'v_and_b32 v{TM+i}, v{TC+i}, v{MKr}')
for i in range(2): a(f'v_add_u32 v{TA+i}, v{Q2r+i}, v{CT}')
a(f's_cmp_eq_u32 s{sFIRST}, 0')
a('s_cbranch_scc1 L_noq')
a(f's_waitcnt vmcnt({9+8+8+4})')
QACC = R
for s in range(8):
    c = '0' if s == 0 else f'v[{QACC}:{QACC+15}]'
    a(f'v_mfma_f32_32x32x16_bf16 v[{QACC}:{QACC+15}], v[{W2F+4*s}:{W2F+4*s+3}], v[{XF+4*s}:{XF+4*s+3}], {c}')
a(f'v_mul_u32_u24 v4, {NSTR}, v{NL}')
a(f'v_lshl_add_u32 v4, v{HH}, 5, v4')
a(f's_lshl_b32 s58, s{sB}, 6')
a(f's_add_u32 s58, s58, {L_NODE+512}')
a('v_add_u32 v4, s58, v4')
a(f'v_cmp_gt_u32 vcc, {NPB}, v{NL}')
a.nop(6)
QT_ = W2F
for r in range(16): a(f'v_mul_f32 v{QT_+r}, {NEGLOG2E:#x}, v{QACC+r}')
a(f's_waitcnt vmcnt({9+8})')
a.nop(3)
for s in range(8):
    c = '0' if s == 0 else f'v[{R}:{R+15}]'
    a(f'v_mfma_f32_32x32x16_bf16 v[{R}:{R+15}], v[{WU1F+4*s}:{WU1F+4*s+3}], v[{XF+4*s}:{XF+4*s+3}], {c}')
for r in range(8): a(f'v_cvt_pk_bf16_f32 v{QT_+16+r}, v{QT_+2*r}, v{QT_+2*r+1}')
for r in range(8):
    a(f'v_lshlrev_b32 v5, 16, v{QT_+16+r}')
    a(f'v_and_b32 v6, 0xffff0000, v{QT_+16+r}')
    a(f'v_sub_f32 v5, v{QT_+2*r}, v5')
    a(f'v_sub_f32 v6, v{QT_+2*r+1}, v6')
    a(f'v_cvt_pk_bf16_f32 v{QT_+24+r}, v5, v6')
a('s_mov_b64 exec, vcc')
a(f'ds_write_b128 v4, v[{QT_+16}:{QT_+19}]')
a(f'ds_write_b128 v4, v[{QT_+20}:{QT_+23}] offset:16')
a(f'ds_write_b128 v4, v[{QT_+24}:{QT_+27}] offset:256')
a(f'ds_write_b128 v4, v[{QT_+28}:{QT_+31}] offset:272')
a('s_mov_b64 exec, -1')
a(f's_mov_b32 s{sFIRST}, 0')
a('s_waitcnt lgkmcnt(0)')
a('s_barrier')
a.label('L_noq')
def qbread(buf, beta):
    return [f'ds_read_b64_tr_b16 v[{QB[buf]+2*u}:{QB[buf]+2*u+1}], v{TA+u} offset:{64*beta}' for u in range(2)]
def paread(half):
    return [f'ds_read_b128 v[{PA[half]+4*x}:{PA[half]+4*x+3}], v{RA+x} offset:{4096*half}' for x in range(4)]
def mfmas(beta):
    z = ZB[beta & 1]; zz = f'v[{z}:{z+15}]'
    q = QB[beta & 1]; p = PA[beta >> 1] + 8*(beta & 1)
    return [f'v_mfma_f32_32x32x16_bf16 {zz}, v[{TM}:{TM+3}], v[{q}:{q+3}], 0',
            f'v_mfma_f32_32x32x16_bf16 {zz}, v[{EC}:{EC+3}], v[{W3+4*beta}:{W3+4*beta+3}], {zz}',
            f'v_mfma_f32_32x32x16_bf16 {zz}, v[{p}:{p+3}], v[{I0}:{I0+3}], {zz}',
            f'v_mfma_f32_32x32x16_bf16 {zz}, v[{p+4}:{p+7}], v[{I1}:{I1+3}], {zz}']
for l in qbread(0, 0) + qbread(1, 1): a(l)
for i in range(4):
    a(f'v_add_u32 v{AA+i}, {DUMMY}, v{CA}')
    a(f'v_mov_b32 v{ACC[i]}, 0')
    a(f'v_mov_b32 v{KK+i}, 0')
a(f's_cmp_gt_u32 s{sN}, 1')
a(f's_cselect_b32 s{PS+2}, s{PS+2}, 0')
a(f's_cselect_b32 s{Ed+2}, s{Ed+2}, 0')
a(f's_mov_b32 m0, s{sM0A}')
a('s_waitcnt vmcnt(4)')
stamp()
for l in paread(0): a(l)
for i in range(4):
    a(f'v_mov_b32 v{NF+i}, 0')
    a(f'v_mov_b32 v{M+i}, 0')
    a(f'v_mov_b32 v{D+i}, 1.0')
a('s_waitcnt lgkmcnt(0)')
for l in dma(0): a(l)
a(eload(EN))
for l in mfmas(0): a(l)
a(f's_cmp_ge_u32 s{sTC}, s{sT}')
a('s_mov_b64 s[68:69], 0')
a('s_cbranch_scc1 L_done')
a(f's_mov_b32 s{sTC}, 2')
a.nop(10)
a(f's_cmp_lg_u32 s{sSLOW}, 0')
a('s_cbranch_scc1 L_loop_s')

def dsadds(beta, safe):
    op = 'ds_add_f32' if safe else 'ds_write_b32'
    return [f'{op} v{AA+q}, v{M+q if q < 3 else ACC[beta]} offset:{128*beta}' for q in range(4)]
def mchain(beta):
    A = ACC[beta]
    return [f'v_and_b32 v{M}, v{A}, v{KK}', f'v_fmac_f32 v{M}, v{NF}, v{RC}',
            f'v_and_b32 v{M+1}, v{M}, v{KK+1}', f'v_fmac_f32 v{M+1}, v{NF+1}, v{RC+1}',
            f'v_and_b32 v{M+2}, v{M+1}, v{KK+2}', f'v_fmac_f32 v{M+2}, v{NF+2}, v{RC+2}',
            f'v_and_b32 v{A}, v{M+2}, v{KK+3}', f'v_fmac_f32 v{A}, v{NF+3}, v{RC+3}']
def loop(safe):
    sfx = '_s' if safe else '_f'
    a('.p2align 6') if not safe else None
    a.label('L_loop' + sfx)
    for beta in range(4):
        z = ZB[beta & 1]
        tr = [f'v_rcp_f32 v{RC+q}, v{D+q}' for q in range(4)] + [f'v_exp_f32 v{U+r}, v{z+r}' for r in range(16)]
        mf = mfmas((beta+1) & 3)
        fill = dsadds((beta-2) & 3, safe) + qbread(beta & 1, (beta+2) & 3)
        pre = []
        if beta == 0:
            fill += ['s_waitcnt vmcnt(5)'] + paread(1)
            fill += [f'ds_read_b128 v[{QAr}:{QAr+3}], v{vQA} offset:{L_QW-L_QT}', f'ds_read_b64 v[{Q2r}:{Q2r+1}], v{vQ2} offset:{L_QT+16}']
        if beta == 1:
            fill = [f's_mov_b32 m0, s{sM0B}', f'ds_read_b128 v[{KK}:{KK+3}], v{vQA} offset:{L_QK-L_QT}'] + dma(1) + fill
            fill += [f'ds_read_b128 v[{PTr}:{PTr+3}], v{vPT} offset:{L_PT+128}', f'ds_read_b32 v{EOr}, v{vEM} offset:256', f'ds_read_b32 v{MKr}, v{vEM} offset:132', 's_waitcnt lgkmcnt(9)']
        if beta == 2:
            fill += [f's_cmp_lt_u32 s{sTC}, s{sN}', f's_cselect_b32 s{PS+2}, s{PS+2}, 0', f's_cselect_b32 s{Ed+2}, s{Ed+2}, 0', 's_waitcnt vmcnt(5)'] + paread(0) + ['s_waitcnt vmcnt(4)']
        if beta == 3:
            fill = [f's_mov_b32 m0, s{sM0A}'] + fill[:1] + dma(0) + [eload(EN)] + fill[1:]
            fill += [f's_add_u32 s{sTC}, s{sTC}, 1', f's_sub_u32 s58, s{sTC}, 2', f's_cmp_lt_u32 s58, s{sN}']
        a('s_setprio 1')
        a('s_waitcnt lgkmcnt(0)')
        fi = 0; mi = 0
        for idx, t in enumerate(tr):
            a(t)
            if idx % 4 == 0 and mi < 4:
                a(mf[mi]); mi += 1
            elif fi < len(fill):
                a(fill[fi]); fi += 1
        assert fi == len(fill), (beta, fi, len(fill))
        a('s_setprio 0')
        mc = mchain((beta-1) & 3)
        if not safe:
            pl = [f'v_add_f32 v{D+q}, 1.0, v{U+4*q}' for q in range(4)]
            for st in range(1, 4):
                for q in range(4):
                    dst = NF+q if st == 3 else z+4*q+st
                    pl.append(f'v_fma_f32 v{dst}, v{z+4*q+st}, v{D+q}, v{z+4*q+st-1}')
                for q in range(4):
                    dst = NF+q if st == 3 else z+4*q+st
                    pl.append(f'v_fmac_f32 v{dst}, v{z+4*q+st-1}, v{U+4*q+st}')
                for q in range(4): pl.append(f'v_fmac_f32 v{D+q}, v{D+q}, v{U+4*q+st}')
            pl += [f'v_fmac_f32 v{G}, v{D}, v{D+1}', f'v_fmac_f32 v{G+1}, v{D+2}, v{D+3}']
            ci = 0
            for idx, l in enumerate(pl):
                if idx % 3 == 0 and ci < 8: a(mc[ci]); ci += 1
                a(l)
        else:
            for l in mc: a(l)
            for r in range(16): a(f'v_add_f32 v{U+r}, 1.0, v{U+r}')
            for r in range(16): a(f'v_rcp_f32 v{U+r}, v{U+r}')
            for q in range(4): a(f'v_mul_f32 v{NF+q}, v{z+4*q}, v{U+4*q}')
            for st in range(1, 4):
                for q in range(4): a(f'v_fmac_f32 v{NF+q}, v{z+4*q+st}, v{U+4*q+st}')
        if beta == 1:
            for q in range(4): a(f'v_add_u32 v{AA+q}, v{QAr+q}, v{CA}')
            for u in range(2): a(f'v_add_u32 v{TA+u}, v{Q2r+u}, v{CT}')
        if beta == 2:
            for i in range(4): a(f'v_and_b32 v{TM+i}, v{TC+i}, v{MKr}')
            for i in range(4): a(f'v_mov_b32 v{EC+i}, v{EN+i}')
            for i in range(4): a(f'v_add_u32 v{DA+i}, v{PTr+i}, v{LC+i}')
            a(f'v_add_u32 v{EV}, v{EOr}, v{H16}')
        if beta == 3:
            a(f'v_add_u32 v{vQA}, 16, v{vQA}')
            a(f'v_add_u32 v{vQ2}, 16, v{vQ2}')
            a(f'v_add_u32 v{vPT}, 64, v{vPT}')
            a(f'v_add_u32 v{vEM}, 128, v{vEM}')
    a(f's_cbranch_scc1 L_loop{sfx}')
    for l in dsadds(2, safe): a(l)
    a(f'v_subrev_u32 v{vQA}, 4, v{vQA}')
    for q in range(4): a(f'v_rcp_f32 v{RC+q}, v{D+q}')
    a(f'ds_read_b32 v{QAr}, v{vQA}')
    a('s_waitcnt lgkmcnt(0)')
    for l in mchain(3): a(l)
    for l in dsadds(3, safe): a(l)
    if not safe:
        a(f'v_add_u32 v{QAr+1}, {DUMMY}, v{CA}')
        a(f'v_add_u32 v{QAr}, v{QAr}, v{CA}')
        a(f'v_cmp_eq_u32 s[68:69], v{QAr+1}, v{AA+3}')
loop(False)
a('s_branch L_done')
loop(True)
a.label('L_done')
stamp()
a('s_waitcnt vmcnt(0) lgkmcnt(0)')
a('s_barrier')
a('s_mov_b64 exec, s[68:69]')
a('s_cbranch_execz L_nolo')
for b in range(4): a(f'ds_read_b32 v{PTr+b}, v{QAr} offset:{128*b}')
for b in range(4):
    a(f's_waitcnt lgkmcnt(3)')
    a(f'v_add_f32 v{PTr+b}, v{PTr+b}, v{ACC[b]}')
    a(f'ds_write_b32 v{QAr}, v{PTr+b} offset:{128*b}')
a('s_waitcnt lgkmcnt(0)')
a.label('L_nolo')
a('s_mov_b64 exec, -1')
a('s_barrier')
stamp()
a(f's_cmp_eq_u32 s{sRM}, 1')
a('s_cbranch_scc0 L_np1')
a(f's_mov_b32 s{sRM}, 2')
a('s_branch L_reinit')
a.label('L_np1')
a(f's_mov_b32 s{sRM}, 0')
a(f's_cmp_eq_u32 s{sBML}, 0')
a('s_cbranch_scc0 L_np2')
a('v_mov_b32 v4, 0')
a(f'ds_read_b128 v[{QAr}:{QAr+3}], v4 offset:{L_MISC}')
a(f's_mov_b32 s{sBML}, 1')
a('s_waitcnt lgkmcnt(0)')
for i in range(4): a(f'v_readfirstlane_b32 s{BM+i}, v{QAr+i}')
a.label('L_np2')
a(f's_or_b64 s[58:59], s[{BM}:{BM+1}], s[{BM+2}:{BM+3}]')
a('s_cbranch_scc0 L_epi')
a(f's_ff1_i32_b64 s58, s[{BM}:{BM+1}]')
a('s_cmp_eq_i32 s58, -1')
a('s_cbranch_scc1 L_pophi')
a(f's_bitset0_b64 s[{BM}:{BM+1}], s58')
a('s_branch L_popped')
a.label('L_pophi')
a(f's_ff1_i32_b64 s58, s[{BM+2}:{BM+3}]')
a(f's_bitset0_b64 s[{BM+2}:{BM+3}], s58')
a('s_add_u32 s58, s58, 64')
a.label('L_popped')
a(f's_mul_i32 s59, s58, {CH*32}')
a(f'v_mov_b32 v{CB}, s59')
a(f's_mul_i32 s59, s58, {CH*4}')
a('s_lshl_b32 s58, s58, 2')
a(f's_add_u32 s58, s58, {WS_OVFLEN:#x}')
a('v_mov_b32 v4, 0')
a('v_lshlrev_b32 v5, 5, v0')
a(f'buffer_load_dword v6, v4, s[{WSd}:{WSd+3}], s58 offen')
a(f's_add_u32 s58, s59, {WS_OVFREC:#x}')
a(f'buffer_load_dwordx4 v[{REC}:{REC+3}], v5, s[{WSd}:{WSd+3}], s58 offen')
a(f'buffer_load_dwordx4 v[{REC+4}:{REC+7}], v5, s[{WSd}:{WSd+3}], s58 offen offset:16')
a(f's_add_u32 s58, s59, {WS_OVFBKT:#x}')
a(f'buffer_load_dwordx4 v[{U}:{U+3}], v5, s[{WSd}:{WSd+3}], s58 offen')
a(f'buffer_load_dwordx4 v[{U+4}:{U+7}], v5, s[{WSd}:{WSd+3}], s58 offen offset:16')
a('v_lshlrev_b32 v7, 3, v0')
a('s_waitcnt vmcnt(0)')
for k in range(8):
    a(f'v_add_u32 v8, {k}, v7')
    a('v_cmp_lt_u32 vcc, v8, v6')
    a(f'v_cmp_eq_u32 s[58:59], s2, v{U+k}')
    a('s_and_b64 vcc, vcc, s[58:59]')
    a.nop(1)
    a(f'v_cndmask_b32 v{REC+k}, -1, v{REC+k}, vcc')
a('s_branch L_reinit')
a.label('L_epi')
AG = 16
AB = 84
EACC = 116
a(f'v_mul_u32_u24 v4, {NSTR}, v{NL}')
a(f'v_lshl_add_u32 v4, v{HH}, 5, v4')
a(f'v_add_u32 v4, {L_NODE}, v4')
for s in range(8):
    for u in range(2): a(f'ds_read_b128 v[{AG+8*s+4*u}:{AG+8*s+4*u+3}], v4 offset:{64*s+16*u}')
    if s == 6: a('s_waitcnt lgkmcnt(12)')
a(f'v_lshlrev_b32 v5, 8, v{NL}')
a(f'v_lshl_add_u32 v5, v{HH}, 5, v5')
a(f's_lshl_b32 s58, s{sB}, 6')
a(f's_add_u32 s58, s58, s{sNODE0}')
for s in range(8):
    a(f's_waitcnt lgkmcnt({14-2*s})')
    for r in range(4): a(f'v_cvt_pk_bf16_f32 v{AB+4*s+r}, v{AG+8*s+2*r}, v{AG+8*s+2*r+1}')
    if s > 0:
        c = '0' if s == 1 else f'v[{EACC}:{EACC+15}]'
        a(f'v_mfma_f32_32x32x16_bf16 v[{EACC}:{EACC+15}], v[{WU2+4*(s-1)}:{WU2+4*(s-1)+3}], v[{AB+4*(s-1)}:{AB+4*(s-1)+3}], {c}')
a.nop(2)
a(f'v_mfma_f32_32x32x16_bf16 v[{EACC}:{EACC+15}], v[{WU2+28}:{WU2+31}], v[{AB+28}:{AB+31}], v[{EACC}:{EACC+15}]')
a(f'v_add_f32 v6, v{G}, v{G+1}')
a('v_mov_b32 v7, 0x71800000')
a('v_cmp_nlt_f32 s[68:69], v6, v7')
a(f'v_cmp_gt_u32 vcc, {NPB}, v{NL}')
a('v_mov_b32 v7, 0x207')
a.nop(8)
a('s_mov_b64 exec, vcc')
a(f'v_cmp_class_f32 vcc, v{EACC}, v7')
Y = 16
for r in range(16): a(f'v_fmamk_f32 v{Y+r}, v{EACC+r}, {NEGLN2:#x}, v{R+r}')
a('s_or_b64 s[68:69], s[68:69], vcc')
for r in range(16): a(f'v_mul_f32 v{Y+16+r}, {NEGLOG2E:#x}, v{Y+r}')
for r in range(16): a(f'v_exp_f32 v{Y+16+r}, v{Y+16+r}')
for r in range(16): a(f'v_add_f32 v{Y+16+r}, 1.0, v{Y+16+r}')
for r in range(16): a(f'v_rcp_f32 v{Y+16+r}, v{Y+16+r}')
for r in range(16): a(f'v_mul_f32 v{Y+r}, v{Y+r}, v{Y+16+r}')
for r in range(8): a(f'v_cvt_pk_bf16_f32 v{Y+32+r}, v{Y+2*r}, v{Y+2*r+1}')
a(f'buffer_store_dwordx4 v[{Y+32}:{Y+35}], v5, s[{Od}:{Od+3}], s58 offen')
a(f'buffer_store_dwordx4 v[{Y+36}:{Y+39}], v5, s[{Od}:{Od+3}], s58 offen offset:16')
a('s_mov_b64 exec, -1')
stamp()
if STAMP:
    a('s_waitcnt vmcnt(0) lgkmcnt(0)')
    stamp()
    a('s_waitcnt lgkmcnt(0)')
    a(f's_lshl_b32 s58, s2, 3')
    a(f's_add_u32 s58, s58, s{sW}')
    a('s_lshl_b32 s58, s58, 7')
    a(f's_add_u32 s58, s58, {WS_STAMP:#x}')
    a('v_mov_b32 v4, 0')
    a('s_mov_b64 exec, 1')
    for i in range(nstamp[0]):
        a(f'v_mov_b32 v6, s{70+2*i}')
        a(f'buffer_store_dword v6, v4, s[{WSd}:{WSd+3}], s58 offen offset:{4*i}')
    a(f'v_mov_b32 v6, s{sT}')
    a(f'buffer_store_dword v6, v4, s[{WSd}:{WSd+3}], s58 offen offset:60')
    a('s_mov_b64 exec, -1')
a(f's_cmp_lg_u32 s{sSAFE}, 0')
a('s_cbranch_scc1 L_main_end')
a('v_mov_b32 v4, 0')
a('s_cmp_eq_u64 s[68:69], 0')
a('s_cbranch_scc1 L_good')
a('v_mov_b32 v6, 1')
a(f'ds_write_b32 v4, v6 offset:{L_MISC+16}')
a('s_waitcnt lgkmcnt(0)')
a.label('L_good')
a('s_barrier')
a(f'ds_read_b32 v6, v4 offset:{L_MISC+16}')
a('s_waitcnt lgkmcnt(0)')
a('v_readfirstlane_b32 s58, v6')
a('s_cmp_eq_u32 s58, 0')
a('s_cbranch_scc1 L_main_end')
a(f's_mov_b32 s{sSAFE}, 1')
a('s_waitcnt vmcnt(0)')
a('s_barrier')
a('s_branch L_cells')
a.label('L_main_end')
a('s_endpgm')

hdr = open('gather_scatter__mpnn_edge_mlp__graph.s.ref').read().split('; Override')[0]
hdr += f'; @launch kernel=pre_kernel grid=({PRE_WGS},1,1) block=(512,1,1) lds=49152\n'
hdr += f'; @launch kernel=main_kernel grid=(256,1,1) block=(512,1,1) lds={LDS_MAIN}\n'
hdr += '.amdgcn_target "amdgcn-amd-amdhsa--gfx950"\n.text\n'
def kd(name, vg):
    return f'''.amdhsa_kernel {name}
  .amdhsa_next_free_vgpr {vg}
  .amdhsa_next_free_sgpr 102
  .amdhsa_accum_offset {vg}
  .amdhsa_group_segment_fixed_size 0
  .amdhsa_kernarg_size 72
  .amdhsa_user_sgpr_count 2
  .amdhsa_user_sgpr_kernarg_segment_ptr 1
  .amdhsa_system_sgpr_workgroup_id_x 1
  .amdhsa_float_denorm_mode_32 3
.end_amdhsa_kernel
'''
tail = '.section .rodata,"a"\n.p2align 6\n' + kd('pre_kernel', 112) + '.p2align 6\n' + kd('main_kernel', 256)
open(OUTF, 'w').write(hdr + a.text() + tail)
for e in check(a.lines): print(e)
print('lines', len(a.lines))
```

```python
import sys
src, dst, A, B, K = sys.argv[1], sys.argv[2], int(sys.argv[3]), int(sys.argv[4]), int(sys.argv[5])
s = open(src).read()
def probe(idx, tag):
    return f'''
    s_cmp_lg_u32 s2, 0
    s_cbranch_scc1 L_rt{tag}
    s_memrealtime s[90:91]
    s_load_dwordx2 s[92:93], s[0:1], 64
    s_waitcnt lgkmcnt(0)
    s_and_b32 s93, s93, 0xffff
    s_mov_b32 s94, 0x1000000
    s_mov_b32 s95, 0x20000
    v_mov_b32 v1, s90
    v_mov_b32 v2, 0xE00000
    buffer_store_dword v1, v2, s[92:95], 0 offen offset:{4*idx}
    s_waitcnt vmcnt(0)
L_rt{tag}:
'''
names = [l.split('kernel=')[1].split()[0] for l in s.split('\n') if l.startswith('; @launch kernel=')]
for i, n in enumerate(names): s = s.replace(f'\n{n}:\n', f'\n{n}:' + probe(i, n))
last = [l for l in s.split('\n') if l.startswith('; @launch kernel=')][-1]
s = s.replace(last, last + '\n; @launch kernel=rep_kernel grid=(1,1,1) block=(64,1,1) lds=0')
nk = len(names)
rep = f'''.globl rep_kernel
.p2align 8
.type rep_kernel,@function
rep_kernel:
    s_cmp_lg_u32 s2, 0
    s_cbranch_scc1 L_repend
    s_memrealtime s[20:21]
    s_load_dwordx2 s[4:5], s[0:1], 64
    s_waitcnt lgkmcnt(0)
    s_add_u32 s4, s4, 0xE00000
    s_addc_u32 s5, s5, 0
    s_load_dwordx8 s[8:15], s[4:5], 0
    s_waitcnt lgkmcnt(0)
    s_mov_b32 s{8+nk}, s20
    s_sub_u32 s16, s{8+B}, s{8+A}
    s_min_u32 s16, s16, 20000
    s_mul_i32 s16, s16, {K}
L_spin:
    s_memrealtime s[22:23]
    s_waitcnt lgkmcnt(0)
    s_sub_u32 s17, s22, s20
    s_cmp_lt_u32 s17, s16
    s_cbranch_scc1 L_spin
L_repend:
    s_endpgm
'''
kd = '''.p2align 6
.amdhsa_kernel rep_kernel
  .amdhsa_next_free_vgpr 8
  .amdhsa_next_free_sgpr 32
  .amdhsa_accum_offset 8
  .amdhsa_group_segment_fixed_size 0
  .amdhsa_kernarg_size 72
  .amdhsa_user_sgpr_count 2
  .amdhsa_user_sgpr_kernarg_segment_ptr 1
  .amdhsa_system_sgpr_workgroup_id_x 1
.end_amdhsa_kernel
'''
s = s.replace('.section .rodata', rep + '.section .rodata') + kd
open(dst, 'w').write(s)
```

```python
import sys, struct
from asmlib import *

STAMP = '--stamp' in sys.argv
OUTF = [a for a in sys.argv[1:] if not a.startswith('--')][0]

N, E = 12500, 400000
NPB = 49
NCH, CH = 125, 3200
WS_P = 4096
WS_CELLS = 0x400000
WS_FRAG = 0x800000
WS_OVFLEN = 0x900000
WS_OVFREC = 0x910000
WS_OVFBKT = 0xB00000
WS_STAMP = 0xD00000
WS_SIZE = 0x1000000
NEGLOG2E = struct.unpack('<I', struct.pack('<f', -1.4426950408889634))[0]
NEGLN2 = struct.unpack('<I', struct.pack('<f', -0.6931471805599453))[0]
PADV = 0x80000000
NGEMM = 196
PRE_WGS = NCH + NGEMM + 4

a = Asm()
def srd(d, base, size):
    a(f's_mov_b32 s{d}, s{base}')
    a(f's_and_b32 s{d+1}, s{base+1}, 0xffff')
    a(f's_mov_b32 s{d+2}, {size:#x}')
    a(f's_mov_b32 s{d+3}, 0x20000')

PST = '--pstamp' in sys.argv
def ps(i):
    if PST: a(f's_memtime s[{70+2*i}:{71+2*i}]')
def pend():
    if PST:
        ps(4)
        a('s_waitcnt vmcnt(0) lgkmcnt(0)')
        ps(5)
        a('s_memrealtime s[84:85]')
        a('s_waitcnt lgkmcnt(0)')
        a('s_lshl_b32 s58, s2, 3')
        a('s_add_u32 s58, s58, s3')
        a('s_lshl_b32 s58, s58, 6')
        a(f's_add_u32 s58, s58, {0xD80000:#x}')
        a('v_mov_b32 v4, 0')
        a('s_mov_b64 exec, 1')
        for i in range(8):
            a(f'v_mov_b32 v6, s{70+2*i}')
            a(f'buffer_store_dword v6, v4, s[36:39], s58 offen offset:{4*i}')
        a('s_mov_b64 exec, -1')
a('.globl pre_kernel\n.p2align 8\n.type pre_kernel,@function')
a.label('pre_kernel')
a(f's_cmp_ge_u32 s2, {PRE_WGS}')
a('s_cbranch_scc1 L_pre_end')
ps(0)
if PST: a('s_memrealtime s[82:83]')
a('s_load_dwordx4 s[4:7], s[0:1], 0')
a('s_load_dwordx4 s[8:11], s[0:1], 16')
a('s_load_dwordx4 s[12:15], s[0:1], 32')
a('s_load_dwordx2 s[16:17], s[0:1], 64')
a('v_lshlrev_b32 v1, 4, v0')
a('v_lshrrev_b32 v2, 6, v0')
a('v_and_b32 v3, 63, v0')
a('v_readfirstlane_b32 s3, v2')
a('s_waitcnt lgkmcnt(0)')
ps(1)
X, SRC, DST, W, WS = 20, 24, 28, 32, 36
srd(X, 4, N*256); srd(SRC, 8, E*4); srd(DST, 10, E*4); srd(WS, 16, WS_SIZE)
a(f's_sub_u32 s40, s2, {NCH+NGEMM+1}')
a('s_cmp_lt_u32 s40, 2')
a(f's_cselect_b32 s{W}, s14, s12')
a(f's_cselect_b32 s{W+1}, s15, s13')
a(f's_cselect_b32 s{W+2}, 0x10000, {272*256:#x}') if False else None
a(f's_mov_b32 s41, {272*256:#x}')
a(f's_cselect_b32 s{W+2}, 0x10000, s41')
a(f's_and_b32 s{W+1}, s{W+1}, 0xffff')
a(f's_mov_b32 s{W+3}, 0x20000')
a(f's_cmp_ge_u32 s2, {NCH}')
a('s_cbranch_scc1 L_pre_gemm')
D0, S0, B4, RK = 8, 16, 24, 32
a(f's_mul_i32 s40, s2, {CH*4}')
a('s_add_u32 s41, s40, 8192')
a(f'buffer_load_dwordx4 v[8:11], v1, s[{DST}:{DST+3}], s40 offen')
a(f'buffer_load_dwordx4 v[16:19], v1, s[{SRC}:{SRC+3}], s40 offen')
a('v_cmp_gt_u32 vcc, 288, v0')
a('s_mov_b64 s[42:43], vcc')
a('s_mov_b64 exec, vcc')
a('s_cbranch_execz L_p_no2')
a(f'buffer_load_dwordx4 v[12:15], v1, s[{DST}:{DST+3}], s41 offen')
a(f'buffer_load_dwordx4 v[20:23], v1, s[{SRC}:{SRC+3}], s41 offen')
a.label('L_p_no2')
a('s_mov_b64 exec, -1')
for i in range(4): a(f'v_mov_b32 v{4+i}, -1')
for k in range(4): a(f'ds_write_b128 v1, v[4:7] offset:{8192*k}')
a('v_lshlrev_b32 v40, 2, v0')
a('v_mov_b32 v41, 0')
a('ds_write_b32 v40, v41 offset:32768')
for k in range(4, 8): a(f'v_mov_b32 v{RK+k}, 0')
a('v_mov_b32 v42, 1')
a('v_lshlrev_b32 v43, 16, v0')
a('v_add_u32 v43, 0x4000000, v43')
a('s_waitcnt lgkmcnt(0)')
a('s_barrier')
a('s_waitcnt vmcnt(0)')
ps(2)
def part1(k):
    d, s, b = D0+k, S0+k, B4+k
    a(f'v_mul_u32_u24 v{b}, 85599, v{d}')
    a(f'v_lshrrev_b32 v{b}, 22, v{b}')
    a(f'v_mul_u32_u24 v44, 49, v{b}')
    a(f'v_lshlrev_b32 v{b}, 2, v{b}')
    a(f'ds_add_rtn_u32 v{RK+k}, v{b}, v42 offset:32768')
    a(f'v_sub_u32 v44, v{d}, v44')
    a(f'v_lshl_add_u32 v{s}, v44, 26, v{s}')
    ec = ((k & 3) + (2048 if k >= 4 else 0)) << 14
    a(f'v_add_u32 v{s}, v{s}, v43')
    if ec: a(f'v_add_u32 v{s}, {ec:#x}, v{s}')
def part2(k):
    a(f'v_min_u32 v44, 31, v{RK+k}')
    a('v_and_b32 v45, 3, v44')
    a('v_and_b32 v44, 0x1c, v44')
    a('v_lshl_or_b32 v44, v45, 5, v44')
    a(f'v_lshl_add_u32 v44, v{B4+k}, 5, v44')
    a(f'ds_write_b32 v44, v{S0+k}')
for k in range(4): part1(k)
a('s_mov_b64 exec, s[42:43]')
a('s_cbranch_execz L_p_no2b')
for k in range(4, 8): part1(k)
a('s_waitcnt lgkmcnt(0)')
for k in range(4, 8): part2(k)
a.label('L_p_no2b')
a('s_mov_b64 exec, -1')
a('s_waitcnt lgkmcnt(0)')
for k in range(4): part2(k)
a(f'v_max3_u32 v44, v{RK}, v{RK+1}, v{RK+2}')
a(f'v_max3_u32 v44, v44, v{RK+3}, v{RK+4}')
a(f'v_max3_u32 v44, v44, v{RK+5}, v{RK+6}')
a(f'v_max_u32 v44, v44, v{RK+7}')
a('v_cmp_lt_u32 vcc, 30, v44')
a('s_cbranch_vccz L_p_noovf')
a(f's_add_u32 s44, s40, {WS_OVFREC:#x}')
a(f's_add_u32 s45, s40, {WS_OVFBKT:#x}')
a(f'v_mov_b32 v46, {32768+1024}')
for k in range(8):
    a(f'v_cmp_lt_u32 vcc, 30, v{RK+k}')
    a('s_mov_b64 exec, vcc')
    a(f's_cbranch_execz L_p_ov{k}')
    a('ds_add_rtn_u32 v44, v46, v42')
    a(f'v_lshrrev_b32 v45, 2, v{B4+k}')
    a('s_waitcnt lgkmcnt(0)')
    a('v_lshlrev_b32 v44, 2, v44')
    a(f'buffer_store_dword v{S0+k}, v44, s[{WS}:{WS+3}], s44 offen')
    a(f'buffer_store_dword v45, v44, s[{WS}:{WS+3}], s45 offen')
    a('s_waitcnt vmcnt(0)')
    a.label(f'L_p_ov{k}')
    a('s_mov_b64 exec, -1')
a.label('L_p_noovf')
a('v_lshrrev_b32 v44, 3, v0')
a('v_lshlrev_b32 v45, 2, v44')
a('v_and_b32 v46, 7, v0')
a('v_lshlrev_b32 v47, 14, v44')
a('v_lshl_add_u32 v47, v46, 4, v47')
a('v_cmp_eq_u32 vcc, 7, v46')
a(f's_lshl_b32 s44, s2, 7')
a(f's_add_u32 s44, s44, {WS_CELLS:#x}')
a('s_waitcnt lgkmcnt(0)')
a('s_barrier')
ps(3)
for k in range(4):
    a(f'ds_read_b128 v[{8+4*k}:{11+4*k}], v1 offset:{8192*k}')
    a(f'ds_read_b32 v{24+k}, v45 offset:{32768+256*k}')
a('ds_read_b32 v28, v41 offset:33792')
for k in range(4):
    a(f's_waitcnt lgkmcnt({7-2*k})')
    a(f'v_cndmask_b32 v{11+4*k}, v{11+4*k}, v{24+k}, vcc')
    a(f'buffer_store_dwordx4 v[{8+4*k}:{11+4*k}], v47, s[{WS}:{WS+3}], s44 offen')
    if k < 3: a('s_add_u32 s44, s44, 0x100000')
pend()
a('s_cmp_lg_u32 s3, 0')
a('s_cbranch_scc1 L_pre_end')
a('s_lshl_b32 s44, s2, 2')
a(f's_add_u32 s44, s44, {WS_OVFLEN:#x}')
a('s_mov_b64 exec, 1')
a('s_waitcnt lgkmcnt(0)')
a(f'buffer_store_dword v28, v41, s[{WS}:{WS+3}], s44 offen')
a('s_endpgm')

a.label('L_pre_gemm')
a(f's_sub_u32 s40, s2, {NCH}')
a(f's_sub_u32 s41, s40, {NGEMM}')
a('s_mov_b32 s42, 0')
a('s_cmp_eq_u32 s41, 0')
a('s_cselect_b32 s42, 0x8000, s42')
a('s_cmp_eq_u32 s41, 2')
a('s_cselect_b32 s42, 0x8000, s42')
a('s_cmp_eq_u32 s41, 3')
a('s_cselect_b32 s42, 0x10000, s42')
a('v_lshrrev_b32 v4, 4, v3')
a('v_and_b32 v5, 15, v3')
a('v_lshlrev_b32 v6, 2, v4')
a('v_xor_b32 v6, v6, v5')
a('v_lshlrev_b32 v6, 4, v6')
a('v_lshl_add_u32 v6, v4, 8, v6')
a('s_lshl_b32 s43, s3, 12')
a('s_mov_b32 m0, s43')
a('s_add_u32 s42, s42, s43')
for i in range(4): a(f'buffer_load_dwordx4 v6, s[{W}:{W+3}], s42 offen offset:{1024*i} lds')
a(f's_cmp_lt_u32 s40, {NGEMM}')
a('s_cbranch_scc0 L_g_nox')
a('s_lshl_b32 s44, s3, 3')
a('v_add_u32 v7, s44, v4')
a('v_and_b32 v8, 15, v7')
a('v_xor_b32 v8, v8, v5')
a('v_lshlrev_b32 v8, 4, v8')
a('v_lshl_add_u32 v8, v7, 8, v8')
a('v_xor_b32 v9, 64, v8')
a('s_lshl_b32 s44, s3, 11')
a('s_add_u32 s44, s44, 32768')
a('s_mov_b32 m0, s44')
a('s_lshl_b32 s45, s40, 14')
a(f'buffer_load_dwordx4 v8, s[{X}:{X+3}], s45 offen lds')
a(f'buffer_load_dwordx4 v9, s[{X}:{X+3}], s45 offen offset:1024 lds')
a.label('L_g_nox')
a('s_and_b32 s46, s3, 3')
a('s_lshr_b32 s47, s3, 2')
a('v_lshrrev_b32 v10, 5, v3')
a('v_and_b32 v11, 1, v4')
a('v_bfe_u32 v12, v3, 2, 2')
a('v_and_b32 v13, 1, v3')
a('v_bfe_u32 v14, v3, 1, 1')
a('v_lshl_add_u32 v15, v13, 1, v11')
a('v_lshl_add_u32 v16, v11, 1, v14')
a('s_cmp_eq_u32 s41, 3')
a('s_cselect_b64 vcc, -1, 0')
a('v_cndmask_b32 v15, v15, v16, vcc')
a('v_cndmask_b32 v16, v14, v13, vcc')
a('v_xor_b32 v17, s46, v12')
a('v_lshl_add_u32 v15, v17, 2, v15')
a('v_lshlrev_b32 v15, 4, v15')
a('v_lshl_add_u32 v15, v16, 3, v15')
a('v_lshl_add_u32 v17, v10, 3, v12')
a('v_lshl_add_u32 v15, v17, 8, v15')
a('v_and_b32 v18, 31, v3')
a('s_waitcnt vmcnt(0)')
ps(2)
a('s_barrier')
ps(3)
a(f's_cmp_lt_u32 s40, {NGEMM}')
a('s_cbranch_scc0 L_g_frag')
WF, XF, ACC = 32, 64, 96
for s in range(8):
    for u in range(2): a(f'ds_read_b64_tr_b16 v[{WF+4*s+2*u}:{WF+4*s+2*u+1}], v15 offset:{4096*s+1024*u}')
    if s == 3: a('s_waitcnt lgkmcnt(0)')
a('s_lshl_b32 s48, s47, 5')
a('v_add_u32 v19, s48, v18')
a('v_and_b32 v20, 15, v18')
a('v_xor_b32 v20, v20, v10')
a('v_lshlrev_b32 v20, 4, v20')
a('v_lshl_add_u32 v20, v19, 8, v20')
a('s_waitcnt lgkmcnt(0)')
for s in range(8):
    a(f'v_xor_b32 v21, {32*s}, v20')
    a(f'ds_read_b128 v[{XF+4*s}:{XF+4*s+3}], v21 offset:32768')
for s in range(8):
    a(f's_waitcnt lgkmcnt({7-s})')
    c = '0' if s == 0 else f'v[{ACC}:{ACC+15}]'
    a(f'v_mfma_f32_32x32x16_bf16 v[{ACC}:{ACC+15}], v[{WF+4*s}:{WF+4*s+3}], v[{XF+4*s}:{XF+4*s+3}], {c}')
a('v_lshlrev_b32 v22, 8, v19')
a('v_lshl_add_u32 v22, v10, 5, v22')
a('s_lshl_b32 s48, s46, 6')
a('s_add_u32 s48, s48, s45')
a(f's_add_u32 s48, s48, {WS_P}')
a.nop(8)
for r in range(16): a(f'v_mul_f32 v{ACC+r}, {NEGLOG2E:#x}, v{ACC+r}')
for r in range(8): a(f'v_cvt_pk_bf16_f32 v{24+r}, v{ACC+2*r}, v{ACC+2*r+1}')
a(f'buffer_store_dwordx4 v[24:27], v22, s[{WS}:{WS+3}], s48 offen')
a(f'buffer_store_dwordx4 v[28:31], v22, s[{WS}:{WS+3}], s48 offen offset:16')
pend()
a('s_endpgm')
a.label('L_g_frag')
a('v_lshlrev_b32 v22, 4, v3')
a('s_cmp_eq_u32 s41, 3')
a('s_cbranch_scc1 L_g_w3')
a('s_lshl_b32 s48, s3, 1')
a('v_add_u32 v15, s48, v14')
a('s_cmp_eq_u32 s41, 2')
a('s_cbranch_scc1 L_g_wu2')
a('v_lshlrev_b32 v16, 2, v12')
a('v_xor_b32 v16, v16, v15')
a('v_lshlrev_b32 v16, 4, v16')
a('v_lshl_add_u32 v16, v13, 3, v16')
a('v_lshl_add_u32 v17, v4, 3, v12')
a('v_lshl_add_u32 v16, v17, 8, v16')
for s in range(4):
    for u in range(2): a(f'ds_read_b64_tr_b16 v[{WF+4*s+2*u}:{WF+4*s+2*u+1}], v16 offset:{8192*s+1024*u}')
a('s_branch L_g_fst')
a.label('L_g_wu2')
for u in range(2):
    a(f'v_lshl_add_u32 v17, v4, 1, {u}')
    a('v_and_b32 v16, 3, v17')
    a('v_lshlrev_b32 v16, 2, v16')
    a('v_xor_b32 v16, v16, v15')
    a('v_lshlrev_b32 v16, 4, v16')
    a('v_lshl_add_u32 v16, v13, 3, v16')
    a('v_lshl_add_u32 v17, v12, 5, v17')
    a('v_lshl_add_u32 v16, v17, 8, v16')
    for s in range(4): a(f'ds_read_b64_tr_b16 v[{WF+4*s+2*u}:{WF+4*s+2*u+1}], v16 offset:{2048*s}')
a.label('L_g_fst')
a('s_lshl_b32 s48, s41, 15')
a('s_lshl_b32 s49, s3, 12')
a('s_add_u32 s48, s48, s49')
a(f's_add_u32 s48, s48, {WS_FRAG:#x}')
a('s_waitcnt lgkmcnt(0)')
for s in range(4): a(f'buffer_store_dwordx4 v[{WF+4*s}:{WF+4*s+3}], v22, s[{WS}:{WS+3}], s48 offen offset:{1024*s}')
a('s_endpgm')
a.label('L_g_w3')
a('s_cmp_lg_u32 s47, 0')
a('s_cbranch_scc1 L_pre_end')
for u in range(2): a(f'ds_read_b64_tr_b16 v[{WF+2*u}:{WF+2*u+1}], v15 offset:{1024*u}')
a('s_lshl_b32 s48, s46, 10')
a(f's_add_u32 s48, s48, {WS_FRAG+3*32768:#x}')
a('s_waitcnt lgkmcnt(0)')
for r in range(4):
    a(f'v_lshlrev_b32 v40, 16, v{WF+r}')
    a(f'v_and_b32 v41, 0xffff0000, v{WF+r}')
    a(f'v_mul_f32 v40, {NEGLOG2E:#x}, v40')
    a(f'v_mul_f32 v41, {NEGLOG2E:#x}, v41')
    a(f'v_cvt_pk_bf16_f32 v{WF+r}, v40, v41')
a(f'buffer_store_dwordx4 v[{WF}:{WF+3}], v22, s[{WS}:{WS+3}], s48 offen')
a.label('L_pre_end')
a('s_endpgm')

X = lambda f: ('--x-'+f) in sys.argv
opt = lambda n, d: int(([x.split('=')[1] for x in sys.argv if x.startswith('--'+n+'=')] or [d])[0])
BENCH = '--bench' in sys.argv
RSTR = 272
L_PT = 0
L_EO = 54*256
L_QS = 108*256
QSTR = 14*256
L_QT = L_QS + QSTR; L_QW = L_QT + QSTR; L_QK = L_QW + QSTR
L_HIST = L_QK + QSTR
L_MISC = L_HIST + 256
L_ZERO = L_MISC + 64
L_CARRY = L_ZERO + 512
L_NODE = L_CARRY + 8192
NSTR = 832
L_STG = (L_NODE + 50*NSTR + 255) // 256 * 256
HB = 4160
LDS_MAIN = L_STG + 16*HB
assert LDS_MAIN <= 163840 and L_NODE % 16 == 0 and L_EO + 50*RSTR <= L_QS

class RA_:
    def __init__(s, st): s.n = st
    def __call__(s, k=1, al=1):
        s.n = (s.n + al - 1)//al*al; r = s.n; s.n += k; return r
al = RA_(16)
ZB = [al(16), al(16)]; U = al(16); PA = [al(16), al(16)]
NF = al(4); D = al(4); RC = al(4); MB = al(16); KK = al(4); AA = al(4); DA = al(4); PTr = al(4)
EC = al(4); EN = al(4); QB = [al(2), al(2)]; TM = al(2); TC = al(2)
I0 = al(4); I1 = al(4); W3 = al(16); R = al(16); WU2 = al(16); REC = al(8)
G = al(2); RA = al(2); TA = al(); TAr = al(); SP = al(); SE = al(); EOr = al(); EV = al(); MK = al(); CB = al()
vQA = al(); vQ1 = al(); vQP = al(); vQE = al()
LC = al(); CA = al(); CT = al(); H16 = al(); I4 = al(); CIr = al(2)
NVG = al.n
assert NVG <= 256
LANE, MM, HH = 1, 2, 3
XF = 16
W2F = 80
WU1F = 96
QACC = 112
HA, RK, PV, EVv = 16, 24, 32, 40
PS, WSd, Ed, Xd, Od = 8, 12, 16, 20, 24
sW, sNODE0, sT, sTC, sSAFE, sMORE, sFIRST, sBML, sM0A, sM0B, sNZ = 28, 29, 30, 31, 32, 33, 34, 35, 36, 37, 38
XM = 40
SO = 92
BM = 60
sSLOW, sN, sPASS = 64, 65, 66
nstamp = [0]
def stamp():
    if STAMP and nstamp[0] < 11:
        a(f's_memtime s[{70+2*nstamp[0]}:{71+2*nstamp[0]}]'); nstamp[0] += 1
FINE = opt('fine', 0)
def st(level):
    if FINE == level: stamp()

a('.globl main_kernel\n.p2align 8\n.type main_kernel,@function')
a.label('main_kernel')
a('s_cmp_ge_u32 s2, 256')
a('s_cbranch_scc1 L_main_end')
stamp()
a('s_load_dwordx2 s[66:67], s[0:1], 64')
a('s_load_dwordx4 s[4:7], s[0:1], 0')
a('s_load_dwordx2 s[64:65], s[0:1], 48')
a(f'v_lshrrev_b32 v4, 6, v0')
a(f'v_and_b32 v{LANE}, 63, v0')
a(f'v_readfirstlane_b32 s{sW}, v4')
a(f'v_and_b32 v{MM}, 31, v0')
a(f'v_bfe_u32 v{HH}, v0, 5, 1')
a(f's_mul_i32 s{sNODE0}, s2, {NPB*256}')
a(f's_mov_b32 s{sSAFE}, 0')
a(f's_mov_b32 s{sFIRST}, 1')
a(f's_mul_i32 s{sM0A}, s{sW}, {2*HB}')
a(f's_add_u32 s{sM0A}, s{sM0A}, {L_STG}')
a(f's_add_u32 s{sM0B}, s{sM0A}, {HB}')
for i in range(8): a(f's_mov_b32 s{SO+i}, {3120-1040*(i&3)+128*(i>>2)}')
a(f'v_lshrrev_b32 v4, 4, v{LANE}')
a(f'v_and_b32 v5, 15, v{LANE}')
a(f's_lshl_b32 s58, s{sW}, 3')
a('v_add_u32 v6, s58, v4')
a('v_and_b32 v7, 15, v6')
a('v_xor_b32 v7, v7, v5')
a('v_lshlrev_b32 v7, 4, v7')
a('v_lshl_add_u32 v7, v6, 8, v7')
a('v_xor_b32 v8, 64, v7')
a(f's_lshl_b32 s58, s{sW}, 11')
a(f's_add_u32 s58, s58, {L_STG}')
a('s_mov_b32 m0, s58')
a(f's_mov_b32 s{WSd+2}, {WS_SIZE:#x}'); a(f's_mov_b32 s{WSd+3}, 0x20000')
a(f's_mov_b32 s{Xd+2}, {N*256:#x}'); a(f's_mov_b32 s{Xd+3}, 0x20000')
a(f's_mov_b32 s{PS+2}, 0'); a(f's_mov_b32 s{PS+3}, 0x20000')
a(f's_mov_b32 s{Ed+2}, 0'); a(f's_mov_b32 s{Ed+3}, 0x20000')
a(f's_mov_b32 s{Od+2}, {N*256:#x}'); a(f's_mov_b32 s{Od+3}, 0x20000')
a('s_waitcnt lgkmcnt(0)')
st(1)
a(f's_mov_b32 s{WSd}, s66'); a(f's_and_b32 s{WSd+1}, s67, 0xffff')
a(f's_mov_b32 s{Xd}, s4'); a(f's_and_b32 s{Xd+1}, s5, 0xffff')
a(f's_add_u32 s{PS}, s66, {WS_P-3120}'); a(f's_addc_u32 s{PS+1}, s67, 0'); a(f's_and_b32 s{PS+1}, s{PS+1}, 0xffff')
a(f's_mov_b32 s{Ed}, s6'); a(f's_and_b32 s{Ed+1}, s7, 0xffff')
a(f's_mov_b32 s{Od}, s64'); a(f's_and_b32 s{Od+1}, s65, 0xffff')
a.label('L_cells')
for k in range(8): a(f'v_mov_b32 v{REC+k}, -1')
a('v_lshlrev_b32 v5, 5, v0')
a('s_lshl_b32 s58, s2, 14')
a(f's_add_u32 s58, s58, {WS_CELLS:#x}')
a('v_cmp_gt_u32 vcc, 500, v0')
a('s_mov_b64 exec, vcc')
a(f'buffer_load_dwordx4 v[{REC}:{REC+3}], v5, s[{WSd}:{WSd+3}], s58 offen')
a(f'buffer_load_dwordx4 v[{REC+4}:{REC+7}], v5, s[{WSd}:{WSd+3}], s58 offen offset:16')
a('s_mov_b64 exec, -1')
a(f's_mov_b32 s{sBML}, 0')
a(f's_mov_b32 s{sPASS}, 0')
a(f's_cmp_eq_u32 s{sFIRST}, 0')
a('s_cbranch_scc1 L_skipfirst')
a(f'buffer_load_dwordx4 v7, s[{Xd}:{Xd+3}], s{sNODE0} offen lds')
a(f'buffer_load_dwordx4 v8, s[{Xd}:{Xd+3}], s{sNODE0} offen offset:1024 lds')
st(1)
a(f'v_bfe_u32 v4, v{MM}, 2, 1')
a(f'v_lshrrev_b32 v5, 3, v{MM}')
a('v_lshl_add_u32 v10, v4, 2, v5')
a(f'v_and_b32 v6, 3, v{MM}')
a(f'v_lshlrev_b32 v{I4}, 2, v6')
a('v_mul_u32_u24 v6, 1040, v6')
a('v_lshl_add_u32 v6, v10, 7, v6')
a(f'v_lshlrev_b32 v{H16}, 4, v{HH}')
a(f'v_add3_u32 v6, v6, v{H16}, s{sM0A}')
a(f'v_and_b32 v7, 16, v{MM}')
a('v_lshlrev_b32 v7, 2, v7')
a(f'v_add_u32 v{RA}, v6, v7')
a('v_xor_b32 v7, 64, v7')
a(f'v_add_u32 v{RA+1}, v6, v7')
a('v_mov_b32 v8, 0x3f80')
a('v_mov_b32 v9, 0')
def onehot4(dst, vj):
    a(f'v_cmp_gt_u32 vcc, 4, v{vj}')
    a(f'v_lshlrev_b32 v7, 4, v{vj}')
    a(f'v_mov_b32 v{dst+1}, 0')
    a(f'v_cndmask_b32 v{dst}, v9, v8, vcc')
    a(f'v_lshlrev_b64 v[{dst}:{dst+1}], v7, v[{dst}:{dst+1}]')
a(f'v_lshlrev_b32 v5, 2, v{HH}')
a('v_sub_u32 v5, v10, v5')
onehot4(TC, 5)
a(f'v_lshlrev_b32 v5, 3, v{HH}')
a(f'v_sub_u32 v5, v{MM}, v5')
onehot4(I0, 5)
a('v_subrev_u32 v5, 4, v5')
onehot4(I0+2, 5)
a('v_subrev_u32 v5, 12, v5')
onehot4(I1, 5)
a('v_subrev_u32 v5, 4, v5')
onehot4(I1+2, 5)
a(f'v_and_b32 v4, 7, v{LANE}')
a(f'v_and_b32 v5, 16, v{LANE}')
a('v_lshlrev_b32 v4, 4, v4')
a('v_lshlrev_b32 v6, 2, v5')
a(f'v_xor_b32 v{LC}, v4, v6')
a(f'v_lshlrev_b32 v{CA}, 4, v{MM}')
a(f'v_add_u32 v{CA}, {L_NODE}, v{CA}')
a(f'v_and_b32 v4, 3, v{LANE}')
a('v_lshlrev_b32 v4, 3, v4')
a('v_lshl_add_u32 v4, v5, 1, v4')
a(f'v_add_u32 v{CT}, {L_NODE+512}, v4')
a.label('L_skipfirst')
st(1)
a('v_lshrrev_b32 v4, 2, v0')
a(f'v_mul_u32_u24 v{CB}, {CH*32}, v4')
for i in range(4): a(f'v_mov_b32 v{12+i}, 0')
a('v_lshrrev_b32 v4, 5, v0')
a(f'v_mul_u32_u24 v4, {NSTR}, v4')
a(f'v_add_u32 v4, v4, v{CA}')
for k in range(3): a(f'ds_write_b128 v4, v[12:15] offset:{NSTR*(16*k+2)}')
a(f's_cmp_lg_u32 s{sW}, 0')
a('s_cbranch_scc1 L_z0')
a(f'v_mul_u32_u24 v5, 320, v{HH}')
a('v_sub_u32 v4, v4, v5')
a('ds_write_b128 v4, v[12:15] offset:320')
a(f'v_min_u32 v4, 49, v{LANE}')
a(f'v_mul_u32_u24 v4, {NSTR}, v4')
a(f'ds_write_b32 v4, v12 offset:{L_NODE+768}')
a.label('L_z0')
a(f'v_mov_b32 v{G}, 0')
a(f'v_mov_b32 v{G+1}, 0')
a(f's_mov_b32 s{sNZ}, {(L_CARRY-L_QS)//16-512}')
a.label('L_reinit')
for i in range(4): a(f'v_mov_b32 v{12+i}, 0')
a('v_lshlrev_b32 v4, 4, v0')
a(f'ds_write_b128 v4, v[12:15] offset:{L_QS}')
a(f'v_cmp_gt_u32 vcc, s{sNZ}, v0')
for i in range(4): a(f'v_bfrev_b32 v{48+i}, 1')
a('s_mov_b64 exec, vcc')
a(f'ds_write_b128 v4, v[12:15] offset:{L_QS+8192}')
a('s_mov_b64 exec, -1')
a(f'v_cmp_gt_u32 vcc, {L_QS//16-1536}, v0')
for k in range(3): a(f'ds_write_b128 v4, v[48:51] offset:{8192*k}')
a('s_mov_b64 exec, vcc')
a(f'ds_write_b128 v4, v[48:51] offset:{8192*3}')
a('s_mov_b64 exec, -1')
a(f's_mov_b32 s{sNZ}, {(L_MISC-L_QS)//16-512}')
a('v_mov_b32 v11, 1')
st(1)
a(f'v_lshlrev_b32 v9, 4, v{LANE}')
a(f's_lshl_b32 s56, s{sW}, 12')
a(f's_add_u32 s56, s56, {WS_FRAG:#x}')
def loadfrag(dst, so):
    for s in range(4): a(f'buffer_load_dwordx4 v[{dst+4*s}:{dst+4*s+3}], v9, s[{WSd}:{WSd+3}], s{so} offen offset:{1024*s}')
a(f's_cmp_eq_u32 s{sFIRST}, 0')
a('s_cbranch_scc1 L_w0')
NT = opt('touch', 0)
def touches():
    if NT:
        a('s_lshr_b32 s39, s2, 3')
        a(f's_mul_i32 s39, s39, {784*128}')
        a(f's_mul_i32 s58, s{sW}, {NT*8192}')
        a('s_add_u32 s39, s39, s58')
        a(f's_add_u32 s39, s39, {WS_P}')
        a(f'v_lshlrev_b32 v13, 7, v{LANE}')
        for i in range(NT):
            a(f'buffer_load_dword v15, v13, s[{WSd}:{WSd+3}], s39 offen')
            a('s_add_u32 s39, s39, 8192')
if X('wlate'):
    a('s_waitcnt vmcnt(2)')
    st(1)
loadfrag(W2F, 56)
a('s_add_u32 s56, s56, 0x8000')
loadfrag(WU1F, 56)
a('s_add_u32 s56, s56, 0x8000')
if not X('wlate'): st(1)
touches()
a(f's_waitcnt vmcnt({10+NT})')
a('s_branch L_w1')
a.label('L_w0')
a('s_waitcnt vmcnt(0)')
a.label('L_w1')
st(1)
a(f's_or_b32 s58, s{sBML}, s{sPASS}')
a('s_mov_b64 s[68:69], 0')
a('s_cmp_lg_u32 s58, 0')
a('s_cbranch_scc1 L_nohdr')
a('s_mov_b32 s58, 0x88888888')
a('s_mov_b32 s59, 0x88888888')
a(f'v_cmp_lt_i32 vcc, 31, v{REC+7}')
a('s_and_b64 s[68:69], vcc, s[58:59]')
a('s_mov_b64 exec, s[58:59]')
a(f'v_mov_b32 v{REC+7}, -1')
a('s_mov_b64 exec, -1')
a.label('L_nohdr')
for k in range(8):
    a(f'v_cmp_ne_u32 s[{XM+2*k}:{XM+2*k+1}], -1, v{REC+k}')
    a(f'v_lshrrev_b32 v{HA+k}, 24, v{REC+k}')
    a(f'v_and_b32 v{HA+k}, 0xfc, v{HA+k}')
a('s_waitcnt lgkmcnt(0)')
st(0); st(1)
a('s_barrier')
st(1); st(2)
for k in range(8):
    a(f's_mov_b64 exec, s[{XM+2*k}:{XM+2*k+1}]')
    if k >= 4: a('s_cbranch_execz L_h%d' % k)
    a(f'ds_add_rtn_u32 v{RK+k}, v{HA+k}, v11 offset:{L_HIST}')
    a(f'v_lshlrev_b32 v{PV+k}, 8, v{REC+k}')
    a(f'v_bfe_u32 v{EVv+k}, v{REC+k}, 14, 12')
    a(f'v_mul_u32_u24 v{HA+k}, {RSTR//4}, v{HA+k}')
    a(f'v_and_b32 v{PV+k}, 0x3fff00, v{PV+k}')
    a(f'v_lshl_add_u32 v{EVv+k}, v{EVv+k}, 5, v{CB}')
    if k >= 4: a.label('L_h%d' % k)
a('s_mov_b64 exec, s[68:69]')
a('s_cbranch_execz L_noovf')
a('v_lshrrev_b32 v4, 2, v0')
a('v_lshrrev_b32 v5, 5, v4')
a('v_lshlrev_b32 v5, 2, v5')
a('v_lshlrev_b32 v4, v4, v11')
a(f'ds_or_b32 v5, v4 offset:{L_MISC}')
a.label('L_noovf')
a('s_waitcnt lgkmcnt(0)')
st(2)
for k in range(8):
    a(f's_mov_b64 exec, s[{XM+2*k}:{XM+2*k+1}]')
    if k >= 4: a('s_cbranch_execz L_s%d' % k)
    a(f'v_min_u32 v4, 64, v{RK+k}')
    a(f'v_lshl_add_u32 v4, v4, 2, v{HA+k}')
    a(f'ds_write2st64_b32 v4, v{PV+k}, v{EVv+k} offset0:0 offset1:{L_EO//256}')
    if k >= 4: a.label('L_s%d' % k)
a('s_mov_b64 exec, -1')
a(f'v_lshlrev_b32 v4, 2, v{LANE}')
a(f's_waitcnt vmcnt({8+NT})')
st(2)
a('s_barrier')
st(2)
a(f'ds_read_b32 v5, v4 offset:{L_HIST}')
a(f's_cmp_eq_u32 s{sFIRST}, 0')
a('s_cbranch_scc1 L_w2')
a(f's_mov_b32 s57, {WS_FRAG+3*32768:#x}')
loadfrag(W3, 57)
a.label('L_w2')
a(f'v_mul_u32_u24 v8, {NSTR}, v{LANE}')
a(f'v_mul_u32_u24 v12, {RSTR}, v{LANE}')
a('s_waitcnt lgkmcnt(0)')
a('v_cmp_lt_u32 vcc, 64, v5')
a('v_min_u32 v5, 64, v5')
a('v_add_u32 v5, 3, v5')
a('v_and_b32 v5, -4, v5')
a('v_mov_b32 v6, v5')
a('s_cmp_lg_u64 vcc, 0')
a(f's_cselect_b32 s{sMORE}, 1, 0')
for sh in ('row_shr:1 row_mask:0xf', 'row_shr:2 row_mask:0xf', 'row_shr:4 row_mask:0xf', 'row_shr:8 row_mask:0xf', 'row_bcast:15 row_mask:0xa', 'row_bcast:31 row_mask:0xc'):
    a(f'v_add_u32_dpp v6, v6, v6 {sh} bank_mask:0xf')
    a.nop(2) if 'bcast:31' not in sh else None
a('v_sub_u32 v7, v6, v5')
a(f'v_readlane_b32 s{sT}, v6, 63')
a('s_cbranch_scc0 L_nomore')
for k in range(8):
    a(f'v_cmp_lt_u32 vcc, 63, v{RK+k}')
    a(f's_and_b64 vcc, vcc, s[{XM+2*k}:{XM+2*k+1}]')
    a.nop(1)
    a(f'v_cndmask_b32 v{REC+k}, -1, v{REC+k}, vcc')
a.label('L_nomore')
a(f's_add_u32 s{sN}, s{sT}, 255')
a(f's_lshr_b32 s{sN}, s{sN}, 8')
a(f's_lshl_b32 s58, s{sW}, 2')
a(f's_or_b32 s{sSLOW}, s{sSAFE}, s{sPASS}')
a('s_cselect_b32 s67, 0, -1')
a('s_cselect_b32 s59, -1, 0')
a('s_cselect_b32 s57, 1, 4')
a(f's_max_u32 s{sN}, s{sN}, s57')
a(f's_lshl_b32 s57, s{sN}, 4')
a(f's_mov_b32 s{sPASS}, 1')
a('v_and_b32 v9, s59, v8')
st(2)
for it in range(2):
    a('v_cmp_lt_u32 vcc, s58, v5')
    a('s_add_u32 s59, s58, 4')
    a('s_and_b64 exec, exec, vcc')
    a('s_cbranch_execz L_qfd')
    a('v_cmp_eq_u32 vcc, s59, v5')
    if it == 0:
        a('s_cmp_eq_u32 s58, 0')
        a('s_cselect_b32 s59, 0, s67')
        a('v_mov_b32 v11, s59')
    else:
        a('v_mov_b32 v11, s67')
    a('v_add_u32 v4, s58, v7')
    a('v_lshl_add_u32 v13, s58, 2, v12')
    a('v_cndmask_b32 v6, v9, v8, vcc')
    a(f'ds_write2st64_b32 v4, v13, v8 offset0:{L_QS//256} offset1:{L_QT//256}')
    a(f'ds_write2st64_b32 v4, v6, v11 offset0:{L_QW//256} offset1:{L_QK//256}')
    if it == 0: a('s_add_u32 s58, s58, 32')
a.label('L_qfd')
a('s_mov_b64 exec, -1')
a(f's_mul_i32 s59, s57, s{sW}')
a('s_lshl_b32 s59, s59, 1')
a(f's_mov_b32 s{sTC}, s59')
a(f'v_mul_u32_u24 v4, s57, v{HH}')
a(f'v_add_u32 v{vQA}, s59, v4')
a(f'v_and_b32 v4, 12, v{LANE}')
a(f'v_add_u32 v{vQ1}, v{vQA}, v4')
a(f'v_bfe_u32 v4, v{LANE}, 3, 2')
a(f'v_lshl_add_u32 v{vQP}, v4, 2, v{vQA}')
a('v_lshrrev_b32 v4, 2, v10')
a('v_mul_u32_u24 v4, s57, v4')
a('v_and_b32 v5, 3, v10')
a('v_lshl_add_u32 v4, v5, 2, v4')
a(f'v_add_u32 v{vQE}, s59, v4')
a(f'v_add_u32 v14, s57, v{vQA}')
a(f's_mov_b32 s{PS+2}, {0 if "--nop" in sys.argv else 3120+N*256:#x}')
a(f's_mov_b32 s{Ed+2}, {0 if "--noe" in sys.argv else E*32:#x}')
a(f's_cmp_eq_u32 s{sFIRST}, 0')
a('s_cbranch_scc1 L_noxf')
a(f'v_and_b32 v4, 15, v{LANE}')
a(f'v_lshrrev_b32 v5, 4, v{LANE}')
a('v_xor_b32 v5, v5, v4')
a('v_lshlrev_b32 v5, 4, v5')
a('v_lshl_add_u32 v5, v4, 8, v5')
a(f'v_add_u32 v5, {L_STG}, v5')
a('s_waitcnt lgkmcnt(0)')
for s in range(4):
    if s: a(f'v_xor_b32 v6, {64*s}, v5')
    for nu in range(4):
        if s == 3 and nu == 3: a('s_waitcnt lgkmcnt(8)')
        a(f'ds_read_b128 v[{XF+16*s+4*nu}:{XF+16*s+4*nu+3}], v{6 if s else 5} offset:{4096*nu}')
a.label('L_noxf')
a(f's_mov_b32 m0, s{sM0A}')
a('s_waitcnt lgkmcnt(0)')
st(0); st(2)
a('s_barrier')
st(2)
a(f'ds_read2_b32 v[4:5], v{vQE} offset0:0 offset1:4') if False else None
a(f'ds_read_b32 v4, v{vQE} offset:{L_QS}')
a(f'ds_read_b32 v5, v{vQP} offset:{L_QS}')
a(f'ds_read_b32 v6, v{vQE} offset:{L_QS+16}')
a(f'ds_read_b32 v7, v{vQP} offset:{L_QS+16}')
a(f'ds_read_b32 v{SE}, v{vQE} offset:{L_QS+32}')
a(f'ds_read_b32 v{SP}, v{vQP} offset:{L_QS+32}')
a(f'ds_read_b32 v{TA}, v{vQ1} offset:{L_QT}')
a(f'ds_read_b32 v12, v14 offset:{L_QT-4}')
a(f'ds_read_b32 v13, v14 offset:{L_QW-4}')
a('s_waitcnt lgkmcnt(7)')
a(f'v_add_u32 v4, v4, v{I4}')
a(f'ds_read_b32 v{EV}, v4 offset:{L_EO}')
a(f'ds_read_b128 v[{DA}:{DA+3}], v5')
a('s_waitcnt lgkmcnt(7)')
a(f'v_add_u32 v6, v6, v{I4}')
a(f'ds_read_b32 v{EOr}, v6 offset:{L_EO}')
a(f'ds_read_b128 v[{PTr}:{PTr+3}], v7')
a('s_waitcnt lgkmcnt(2)')
a(f'v_add_u32 v{EV}, v{EV}, v{H16}')
for i in range(4): a(f'v_add_u32 v{DA+i}, v{DA+i}, v{LC}')
def dma(half):
    return [f'buffer_load_dwordx4 v{DA+i}, s[{PS}:{PS+3}], s{SO+4*half+i} offen offset:{1040*i} lds' for i in range(4)]
def eload(dst): return f'buffer_load_dwordx4 v[{dst}:{dst+3}], v{EV}, s[{Ed}:{Ed+3}], 0 offen'
a(eload(EC))
for l in dma(0): a(l)
st(2)
a(f'v_ashrrev_i32 v{MK}, 31, v{EV}')
a(f'v_add_u32 v{TA}, v{TA}, v{CT}')
a(f'v_not_b32 v{MK}, v{MK}')
a('v_cmp_eq_u32 vcc, 0, v13')
a(f's_lshl_b32 s58, s{sW}, 10')
a('s_add_u32 s58, s58, 512')
a(f'v_lshl_add_u32 v4, v{HH}, 9, s58')
for i in range(2): a(f'v_and_b32 v{TM+i}, v{TC+i}, v{MK}')
a('s_mov_b64 exec, vcc')
a(f'ds_write_b32 v12, v4 offset:{L_NODE+768}')
a('s_mov_b64 exec, -1')
a(f's_mov_b32 m0, s{sM0B}')
a(f's_cmp_eq_u32 s{sFIRST}, 0')
a('s_cbranch_scc1 L_noq')
a(f's_waitcnt vmcnt({5+4+NT})')
for s in range(4):
    for nu in range(4):
        c = '0' if s == 0 else f'v[{QACC+4*nu}:{QACC+4*nu+3}]'
        a(f'v_mfma_f32_16x16x32_bf16 v[{QACC+4*nu}:{QACC+4*nu+3}], v[{W2F+4*s}:{W2F+4*s+3}], v[{XF+16*s+4*nu}:{XF+16*s+4*nu+3}], {c}')
for s in range(4):
    for nu in range(4):
        c = '0' if s == 0 else f'v[{R+4*nu}:{R+4*nu+3}]'
        a(f'v_mfma_f32_16x16x32_bf16 v[{R+4*nu}:{R+4*nu+3}], v[{WU1F+4*s}:{WU1F+4*s+3}], v[{XF+16*s+4*nu}:{XF+16*s+4*nu+3}], {c}')
        if s >= 2:
            for r in range(2):
                rr = QACC + (s-2)*8 + nu*2 + r
                a(f'v_mul_f32 v{rr}, {NEGLOG2E:#x}, v{rr}')
a(f'v_and_b32 v4, 15, v{LANE}')
a(f'v_mul_u32_u24 v5, {NSTR}, v4')
a(f'v_lshrrev_b32 v6, 4, v{LANE}')
a('v_lshl_add_u32 v5, v6, 3, v5')
a(f's_lshl_b32 s58, s{sW}, 5')
a(f's_add_u32 s58, s58, {L_NODE+NSTR+512}')
a('v_add_u32 v5, s58, v5')
a('v_cmp_eq_u32 vcc, 0, v4')
for r in range(8): a(f'v_cvt_pk_bf16_f32 v{W2F+r}, v{QACC+2*r}, v{QACC+2*r+1}')
for nu in range(4):
    if nu == 3: a('s_mov_b64 exec, vcc')
    a(f'ds_write_b64 v5, v[{W2F+2*nu}:{W2F+2*nu+1}] offset:{16*NSTR*nu}')
a('s_mov_b64 exec, -1')
for l in dma(1): a(l)
a(f'v_lshlrev_b32 v9, 4, v{LANE}')
loadfrag(WU2, 56)
a(f's_mov_b32 s{sFIRST}, 0')
a('s_waitcnt lgkmcnt(0)')
st(2)
a('s_barrier')
a('s_waitcnt vmcnt(8)')
a('s_branch L_q1')
a.label('L_noq')
for l in dma(1): a(l)
a('s_waitcnt vmcnt(4)')
a.label('L_q1')
st(0); st(2)
def qbread(buf, beta):
    return [f'ds_read_b64_tr_b16 v[{QB[buf]}:{QB[buf]+1}], v{TA} offset:{64*beta}']
def paread(half):
    return [f'ds_read_b128 v[{PA[half]+4*x}:{PA[half]+4*x+3}], v{RA+(x>>1)} offset:{HB*half+32*(x&1)}' for x in range(4)]
def mfmas(beta):
    z = ZB[beta & 1]; zz = f'v[{z}:{z+15}]'
    q = QB[beta & 1]; p = PA[beta >> 1] + 8*(beta & 1)
    return [f'v_mfma_f32_32x32x8_bf16 {zz}, v[{TM}:{TM+1}], v[{q}:{q+1}], 0',
            f'v_mfma_f32_32x32x16_bf16 {zz}, v[{EC}:{EC+3}], v[{W3+4*beta}:{W3+4*beta+3}], {zz}',
            f'v_mfma_f32_32x32x16_bf16 {zz}, v[{p}:{p+3}], v[{I0}:{I0+3}], {zz}',
            f'v_mfma_f32_32x32x16_bf16 {zz}, v[{p+4}:{p+7}], v[{I1}:{I1+3}], {zz}']
for l in qbread(0, 0) + paread(0) + qbread(1, 1): a(l)
for i in range(4): a(f'v_add_u32 v{DA+i}, v{PTr+i}, v{LC}')
a(f'v_add_u32 v{EV}, v{EOr}, v{H16}')
a(f's_cmp_gt_u32 s{sN}, 1')
a(f's_cselect_b32 s{PS+2}, s{PS+2}, 0')
a(f's_cselect_b32 s{Ed+2}, s{Ed+2}, 0')
a(f's_mov_b32 m0, s{sM0A}')
for i in range(4):
    a(f'v_mov_b32 v{AA+i}, 0')
    a(f'v_mov_b32 v{KK+i}, 0')
    a(f'v_mov_b32 v{NF+i}, 0')
    a(f'v_mov_b32 v{D+i}, 1.0')
a('s_waitcnt lgkmcnt(0)')
mf0 = mfmas(0)
a(mf0[0])
for i in range(4): a(f'v_mov_b32 v{MB+12+i}, 0')
a(mf0[1])
for l in dma(0): a(l)
a(mf0[2])
a(eload(EN))
a(f'v_ashrrev_i32 v{MK}, 31, v{EV}')
a(mf0[3])
a(f'v_not_b32 v{MK}, v{MK}')
a(f's_cmp_ge_u32 s{sTC}, s{sT}')
a('s_cbranch_scc1 L_done')
a(f's_mov_b32 s{sTC}, 2')
if BENCH: a(f's_mov_b32 s{sN}, 50')
a(f's_cmp_lg_u32 s{sSLOW}, 0')
a('s_cbranch_scc1 L_pre_s')

def dswr(safe):
    if not safe: return [f'ds_write_b128 v{AA+q}, v[{MB+4*q}:{MB+4*q+3}]' for q in range(4)]
    o = []
    for q in range(4):
        o += [f'ds_add_f32 v{AA+q}, v{MB+4*q+b} offset:{4*b}' for b in range(4)] + ['s_waitcnt lgkmcnt(0)']
    return o
def mchain(beta):
    m = [MB+4*q+beta for q in range(4)]
    o = []
    for q in range(4):
        o += [f'v_and_b32 v{m[q]}, v{m[(q-1)&3]}, v{KK+q}', f'v_fmac_f32 v{m[q]}, v{NF+q}, v{RC+q}']
    return o
def loop(safe):
    sfx = '_s' if safe else '_f'
    if safe:
        a.label('L_pre_s')
        for i in range(12): a(f'v_mov_b32 v{MB+i}, 0')
    bz = 0 if BENCH else 16
    body = []; seg1len = 0
    e = body.append
    for beta in range(4):
        z = ZB[beta & 1]
        tr = [f'v_rcp_f32 v{RC+q}, v{D+q}' for q in range(4)] + [f'v_exp_f32 v{U+r}, v{z+r}' for r in range(16)]
        mf = mfmas((beta+1) & 3)
        qb = qbread(beta & 1, (beta+2) & 3)
        if beta == 0:
            fill = qb + [f'ds_read_b128 v[{PTr}:{PTr+3}], v{SP}', f'ds_read_b32 v{TAr}, v{vQ1} offset:{L_QT+16}', 's_waitcnt vmcnt(5)'] + paread(1)
            ext = [f'v_add_u32 v{AA+q}, v{AA+q}, v{CA}' for q in range(4)] + [f'v_add_u32 v{SE}, v{SE}, v{I4}']
        if beta == 1:
            fill = [f's_mov_b32 m0, s{sM0B}', f'ds_read_b128 v[{KK}:{KK+3}], v{vQA} offset:{L_QK}'] + dma(1) + qb + [f'ds_read_b32 v{EOr}, v{SE} offset:{L_EO}'] + dswr(safe) + ['s_waitcnt lgkmcnt(6)']
            ext = [f'v_add_u32 v{DA+i}, v{PTr+i}, v{LC}' for i in range(4)] + [f'v_add_u32 v{TA}, v{TAr}, v{CT}']
        if beta == 2:
            fill = qb + [f's_cmp_lt_u32 s{sTC}, s{sN}', f's_cselect_b32 s{PS+2}, s{PS+2}, 0', f's_cselect_b32 s{Ed+2}, s{Ed+2}, 0', f's_add_u32 s{sTC}, s{sTC}, 1',
                         's_waitcnt vmcnt(5)'] + paread(0) + ['s_waitcnt vmcnt(4)']
            ext = [f'v_and_b32 v{TM+i}, v{TC+i}, v{MK}' for i in range(2)] + [f'v_mov_b32 v{EC+i}, v{EN+i}' for i in range(4)] + [f'v_add_u32 v{EV}, v{EOr}, v{H16}']
        if beta == 3:
            fill = [f's_mov_b32 m0, s{sM0A}'] + qb + dma(0) + [eload(EN), f'ds_read_b128 v[{AA}:{AA+3}], v{vQA} offset:{L_QW}',
                    f'ds_read_b32 v{SP}, v{vQP} offset:{L_QS+48}', f'ds_read_b32 v{SE}, v{vQE} offset:{L_QS+48}',
                    f's_sub_u32 s58, s{sTC}, 2', f's_cmp_lt_u32 s58, s{sN}']
            tr = tr + [f'v_ashrrev_i32 v{MK}, 31, v{EV}']
            ext = [f'v_not_b32 v{MK}, v{MK}'] + [f'v_add_u32 v{p}, {bz}, v{p}' for p in (vQA, vQ1, vQP, vQE)]
        if X('nodsw'): fill = [l for l in fill if not l.startswith('ds_write')]
        if X('nords'): fill = [l for l in fill if not l.startswith('ds_read')]
        if X('nodma'): fill = [l for l in fill if not l.startswith('buffer_')]
        FAT = opt('fat', 4); MSP = opt('msp', 4)
        if X('nowait'): fill = [l for l in fill if not l.startswith(('s_waitcnt', 's_mov', 's_csel'))]
        if X('noext'): ext = []
        e('s_setprio 2')
        if not X('nowait'): e('s_waitcnt lgkmcnt(0)')
        mi = 0
        for idx, t in enumerate(tr):
            e(t)
            if idx % MSP == 0 and mi < 4: e(mf[mi]); mi += 1
            if idx == FAT - 1:
                if beta == 0: seg1len = len(body)
                for l in fill: e(l)
                if not X('nop1'): e('s_setprio 1')
        e('s_setprio 0')
        mc = mchain((beta-1) & 3)
        if not safe:
            pl = [f'v_add_f32 v{D+q}, 1.0, v{U+4*q}' for q in range(4)]
            for stp in range(1, 4):
                for q in range(4):
                    if X('vop3'):
                        dst = NF+q if stp == 3 else z+4*q+stp
                        pl.append(f'v_fma_f32 v{dst}, v{z+4*q+stp}, v{D+q}, v{z+4*q+stp-1}')
                    elif stp < 3: pl.append(f'v_fmac_f32 v{z+4*q}, v{z+4*q}, v{U+4*q+stp}')
                    else: pl.append(f'v_fma_f32 v{NF+q}, v{z+4*q}, v{U+4*q+stp}, v{z+4*q}')
                for q in range(4):
                    if X('vop3'):
                        dst = NF+q if stp == 3 else z+4*q+stp
                        pl.append(f'v_fmac_f32 v{dst}, v{z+4*q+stp-1}, v{U+4*q+stp}')
                    else: pl.append(f'v_fmac_f32 v{NF+q if stp == 3 else z+4*q}, v{z+4*q+stp}, v{D+q}')
                for q in range(4): pl.append(f'v_fmac_f32 v{D+q}, v{D+q}, v{U+4*q+stp}')
            gd = [f'v_fmac_f32 v{G}, v{D}, v{D+1}', f'v_fmac_f32 v{G+1}, v{D+2}, v{D+3}']
            ci = 0
            for idx, l in enumerate(pl):
                if idx % 3 == 0 and ci < 8: e(mc[ci]); ci += 1
                e(l)
            for l in ext + gd: e(l)
        else:
            for l in mc: e(l)
            for r in range(16): e(f'v_add_f32 v{U+r}, 1.0, v{U+r}')
            for r in range(16): e(f'v_rcp_f32 v{U+r}, v{U+r}')
            for q in range(4): e(f'v_mul_f32 v{NF+q}, v{z+4*q}, v{U+4*q}')
            for stp in range(1, 4):
                for q in range(4): e(f'v_fmac_f32 v{NF+q}, v{z+4*q+stp}, v{U+4*q+stp}')
            for l in ext: e(l)
    if X('norot'): seg1len = 0
    for l in body[:seg1len]: a(l)
    if not safe: a('.p2align %d' % opt('al', 6))
    a.label('L_loop' + sfx)
    for l in body[seg1len:] + body[:seg1len]: a(l)
    a(f's_cbranch_scc1 L_loop{sfx}')
    a('s_setprio 0')
    if X('norot'):
        for q in range(4): a(f'v_rcp_f32 v{RC+q}, v{D+q}')
        a('s_waitcnt lgkmcnt(0)')
    for q in range(4): a(f'v_add_u32 v{AA+q}, v{AA+q}, v{CA}')
    for l in mchain(3): a(l)
    for l in dswr(safe): a(l)
    if not safe:
        a(f's_lshl_b32 s58, s{sW}, 10')
        a(f'v_lshl_add_u32 v4, v{LANE}, 4, s58')
        a(f'ds_write_b128 v4, v[{MB+12}:{MB+15}] offset:{L_CARRY}')
loop(False)
a('s_branch L_done')
loop(True)
a.label('L_done')
st(0); st(3)
a('v_lshrrev_b32 v4, 4, v0')
a(f'v_mul_u32_u24 v5, {NSTR}, v4')
a(f'v_add_u32 v5, {L_NODE+NSTR}, v5')
a(f'ds_read_b32 v{CIr}, v5 offset:768')
a(f'ds_read_b32 v{CIr+1}, v5 offset:{768+32*NSTR}')
a('v_mov_b32 v12, 0')
a(f'ds_read_b128 v[{PTr}:{PTr+3}], v12 offset:{L_MISC}')
a('v_and_b32 v6, 15, v0')
a('v_lshl_add_u32 v5, v6, 5, v5')
a('v_and_b32 v7, 15, v4')
a('v_xor_b32 v7, v7, v6')
a('v_lshlrev_b32 v7, 4, v7')
a('v_lshl_add_u32 v7, v4, 8, v7')
a(f'v_add_u32 v7, {L_STG}, v7')
a('s_waitcnt vmcnt(0) lgkmcnt(0)')
a(f'v_lshl_add_u32 v8, v6, 5, v{CIr}')
a(f'v_lshl_add_u32 v9, v6, 5, v{CIr+1}')
a(f's_cmp_eq_u32 s{sBML}, 0')
a('s_cbranch_scc0 L_np2')
a(f's_mov_b32 s{sBML}, 1')
for i in range(4): a(f'v_readfirstlane_b32 s{BM+i}, v{PTr+i}')
a.label('L_np2')
st(3)
a('s_barrier')
st(0); st(3)
a(f's_cmp_lg_u32 s{sMORE}, 0')
a('s_cbranch_scc1 L_reinit')
a(f's_or_b64 s[58:59], s[{BM}:{BM+1}], s[{BM+2}:{BM+3}]')
a('s_cbranch_scc1 L_pop')
AG = 16
a('v_cmp_gt_u32 vcc, 272, v0')
for u in range(2): a(f'ds_read_b128 v[{AG+4*u}:{AG+4*u+3}], v5 offset:{16*u}')
for u in range(2): a(f'ds_read_b128 v[{AG+8+4*u}:{AG+8+4*u+3}], v8 offset:{L_ZERO+16*u}')
a('s_mov_b64 exec, vcc')
for u in range(2): a(f'ds_read_b128 v[{AG+16+4*u}:{AG+16+4*u+3}], v5 offset:{32*NSTR+16*u}')
for u in range(2): a(f'ds_read_b128 v[{AG+24+4*u}:{AG+24+4*u+3}], v9 offset:{L_ZERO+16*u}')
a('s_mov_b64 exec, -1')
a(f'v_and_b32 v4, 15, v{LANE}')
a(f'v_lshrrev_b32 v6, 4, v{LANE}')
a('v_xor_b32 v5, v6, v4')
a('v_lshlrev_b32 v5, 4, v5')
a('v_lshl_add_u32 v5, v4, 8, v5')
a(f'v_add_u32 v5, {L_STG}, v5')
a('s_waitcnt lgkmcnt(4)')
for r in range(8): a(f'v_add_f32 v{AG+r}, v{AG+r}, v{AG+8+r}')
for r in range(4): a(f'v_cvt_pk_bf16_f32 v{AG+8+r}, v{AG+2*r}, v{AG+2*r+1}')
a(f'ds_write_b128 v7, v[{AG+8}:{AG+11}]')
a('s_mov_b64 exec, vcc')
a('s_cbranch_execz L_cv2')
a('s_waitcnt lgkmcnt(1)')
for r in range(8): a(f'v_add_f32 v{AG+16+r}, v{AG+16+r}, v{AG+24+r}')
for r in range(4): a(f'v_cvt_pk_bf16_f32 v{AG+24+r}, v{AG+16+2*r}, v{AG+16+2*r+1}')
a(f'ds_write_b128 v7, v[{AG+24}:{AG+27}] offset:8192')
a.label('L_cv2')
a('s_mov_b64 exec, -1')
for s in range(1, 4): a(f'v_xor_b32 v{11+s}, {64*s}, v5')
a('s_waitcnt lgkmcnt(0)')
st(3)
a('s_barrier')
st(3)
EACC = 96
for s in range(4):
    for nu in range(4):
        if s == 3 and nu == 3: a('s_waitcnt lgkmcnt(14)')
        a(f'ds_read_b128 v[{XF+16*s+4*nu}:{XF+16*s+4*nu+3}], v{11+s if s else 5} offset:{4096*nu}')
a('v_lshlrev_b32 v7, 8, v4')
a('v_lshl_add_u32 v7, v6, 3, v7')
a(f's_lshl_b32 s58, s{sW}, 5')
a(f's_add_u32 s58, s58, s{sNODE0}')
a(f'v_add_f32 v8, v{G}, v{G+1}')
a('v_mov_b32 v9, 0x71800000')
a('v_cmp_nlt_f32 s[68:69], v8, v9')
a('v_cmp_eq_u32 s[56:57], 0, v4')
for s in range(4):
    for nu in range(4):
        a(f's_waitcnt lgkmcnt({15-4*s-nu})')
        c = '0' if s == 0 else f'v[{EACC+4*nu}:{EACC+4*nu+3}]'
        a(f'v_mfma_f32_16x16x32_bf16 v[{EACC+4*nu}:{EACC+4*nu+3}], v[{WU2+4*s}:{WU2+4*s+3}], v[{XF+16*s+4*nu}:{XF+16*s+4*nu+3}], {c}')
a('v_mov_b32 v9, 0x207')
a.nop(4)
st(3)
Y = 16
for r in range(16): a(f'v_fmamk_f32 v{Y+r}, v{EACC+r}, {NEGLN2:#x}, v{R+r}')
for r in range(16): a(f'v_mul_f32 v{Y+16+r}, {NEGLOG2E:#x}, v{Y+r}')
for r in range(16): a(f'v_exp_f32 v{Y+16+r}, v{Y+16+r}')
for r in range(16): a(f'v_add_f32 v{Y+16+r}, 1.0, v{Y+16+r}')
for r in range(16): a(f'v_rcp_f32 v{Y+16+r}, v{Y+16+r}')
for r in range(16): a(f'v_mul_f32 v{Y+r}, v{Y+r}, v{Y+16+r}')
for r in range(8): a(f'v_cvt_pk_bf16_f32 v{Y+32+r}, v{Y+2*r}, v{Y+2*r+1}')
for nu in range(4):
    if nu == 3: a('s_mov_b64 exec, s[56:57]')
    a(f'buffer_store_dwordx2 v[{Y+32+2*nu}:{Y+33+2*nu}], v7, s[{Od}:{Od+3}], s58 offen')
    if nu < 3: a('s_add_u32 s58, s58, 4096')
    a(f'v_cmp_class_f32 vcc, v{EACC+4*nu}, v9')
    a('s_or_b64 s[68:69], s[68:69], vcc')
a('s_mov_b64 exec, -1')
st(0); st(3)
if STAMP:
    a('s_waitcnt vmcnt(0) lgkmcnt(0)')
    stamp()
    a('s_waitcnt lgkmcnt(0)')
    a(f's_lshl_b32 s58, s2, 3')
    a(f's_add_u32 s58, s58, s{sW}')
    a('s_lshl_b32 s58, s58, 7')
    a(f's_add_u32 s58, s58, {WS_STAMP:#x}')
    a('v_mov_b32 v4, 0')
    a('s_mov_b64 exec, 1')
    for i in range(nstamp[0]):
        a(f'v_mov_b32 v6, s{70+2*i}')
        a(f'buffer_store_dword v6, v4, s[{WSd}:{WSd+3}], s58 offen offset:{4*i}')
    a('s_mov_b64 exec, -1')
    print('nstamps', nstamp[0])
if BENCH: a('s_endpgm')
a(f's_cmp_lg_u32 s{sSAFE}, 0')
a('s_cbranch_scc1 L_main_end')
a('v_mov_b32 v4, 0')
a('s_cmp_eq_u64 s[68:69], 0')
a('s_cbranch_scc1 L_good')
a('v_mov_b32 v6, 1')
a(f'ds_write_b32 v4, v6 offset:{L_MISC+16}')
a('s_waitcnt lgkmcnt(0)')
a.label('L_good')
a('s_barrier')
a(f'ds_read_b32 v6, v4 offset:{L_MISC+16}')
a('s_waitcnt lgkmcnt(0)')
a('v_readfirstlane_b32 s58, v6')
a('s_cmp_eq_u32 s58, 0')
a('s_cbranch_scc1 L_main_end')
a(f's_mov_b32 s{sSAFE}, 1')
a('s_waitcnt vmcnt(0)')
a('s_barrier')
a('s_branch L_cells')
a.label('L_pop')
a(f's_ff1_i32_b64 s58, s[{BM}:{BM+1}]')
a('s_cmp_eq_i32 s58, -1')
a('s_cbranch_scc1 L_pophi')
a(f's_bitset0_b64 s[{BM}:{BM+1}], s58')
a('s_branch L_popped')
a.label('L_pophi')
a(f's_ff1_i32_b64 s58, s[{BM+2}:{BM+3}]')
a(f's_bitset0_b64 s[{BM+2}:{BM+3}], s58')
a('s_add_u32 s58, s58, 64')
a.label('L_popped')
a(f's_mul_i32 s59, s58, {CH*32}')
a(f'v_mov_b32 v{CB}, s59')
a(f's_mul_i32 s59, s58, {CH*4}')
a('s_lshl_b32 s58, s58, 2')
a(f's_add_u32 s58, s58, {WS_OVFLEN:#x}')
a('v_mov_b32 v4, 0')
a('v_lshlrev_b32 v5, 5, v0')
a(f'buffer_load_dword v6, v4, s[{WSd}:{WSd+3}], s58 offen')
a(f's_add_u32 s58, s59, {WS_OVFREC:#x}')
a(f'buffer_load_dwordx4 v[{REC}:{REC+3}], v5, s[{WSd}:{WSd+3}], s58 offen')
a(f'buffer_load_dwordx4 v[{REC+4}:{REC+7}], v5, s[{WSd}:{WSd+3}], s58 offen offset:16')
a(f's_add_u32 s58, s59, {WS_OVFBKT:#x}')
a(f'buffer_load_dwordx4 v[{U}:{U+3}], v5, s[{WSd}:{WSd+3}], s58 offen')
a(f'buffer_load_dwordx4 v[{U+4}:{U+7}], v5, s[{WSd}:{WSd+3}], s58 offen offset:16')
a('v_lshlrev_b32 v7, 3, v0')
a('s_waitcnt vmcnt(0)')
for k in range(8):
    a(f'v_add_u32 v8, {k}, v7')
    a('v_cmp_lt_u32 vcc, v8, v6')
    a(f'v_cmp_eq_u32 s[58:59], s2, v{U+k}')
    a('s_and_b64 vcc, vcc, s[58:59]')
    a.nop(1)
    a(f'v_cndmask_b32 v{REC+k}, -1, v{REC+k}, vcc')
a('s_branch L_reinit')
a.label('L_main_end')
a('s_endpgm')
print('vgprs', NVG, 'lds', LDS_MAIN)

hdr = open('gather_scatter__mpnn_edge_mlp__graph.s.ref').read().split('; Override')[0]
hdr += f'; @launch kernel=pre_kernel grid=({PRE_WGS},1,1) block=(512,1,1) lds=49152\n'
hdr += f'; @launch kernel=main_kernel grid=(256,1,1) block=(512,1,1) lds={LDS_MAIN}\n'
hdr += '.amdgcn_target "amdgcn-amd-amdhsa--gfx950"\n.text\n'
def kd(name, vg):
    return f'''.amdhsa_kernel {name}
  .amdhsa_next_free_vgpr {vg}
  .amdhsa_next_free_sgpr 102
  .amdhsa_accum_offset {vg}
  .amdhsa_group_segment_fixed_size 0
  .amdhsa_kernarg_size 72
  .amdhsa_user_sgpr_count 2
  .amdhsa_user_sgpr_kernarg_segment_ptr 1
  .amdhsa_system_sgpr_workgroup_id_x 1
  .amdhsa_float_denorm_mode_32 3
.end_amdhsa_kernel
'''
tail = '.section .rodata,"a"\n.p2align 6\n' + kd('pre_kernel', 112) + '.p2align 6\n' + kd('main_kernel', 256)
open(OUTF, 'w').write(hdr + a.text() + tail)
for e in check(a.lines): print(e)
print('lines', len(a.lines))
```

```python
import sys, struct
from asmlib import *

STAMP = '--stamp' in sys.argv
OUTF = [a for a in sys.argv[1:] if not a.startswith('--')][0]

N, E = 12500, 400000
NPB = 49
NCH, CH = 125, 3200
WS_P = 4096
WS_CELLS = 0x400000
WS_FRAG = 0x800000
WS_OVFLEN = 0x900000
WS_OVFREC = 0x910000
WS_OVFBKT = 0xB00000
WS_STAMP = 0xD00000
WS_SIZE = 0x1000000
NEGLOG2E = struct.unpack('<I', struct.pack('<f', -1.4426950408889634))[0]
NEGLN2 = struct.unpack('<I', struct.pack('<f', -0.6931471805599453))[0]
PADV = 0x80000000
NGEMM = 98
PRE_WGS = NCH + NGEMM + 4

X = lambda f: ('--x-'+f) in sys.argv
opt = lambda n, d: int(([x.split('=')[1] for x in sys.argv if x.startswith('--'+n+'=')] or [d])[0])
LDS_PRE = 98304
a = Asm()
def srd(d, base, size):
    a(f's_mov_b32 s{d}, s{base}')
    a(f's_and_b32 s{d+1}, s{base+1}, 0xffff')
    a(f's_mov_b32 s{d+2}, {size:#x}')
    a(f's_mov_b32 s{d+3}, 0x20000')

PST = '--pstamp' in sys.argv
def ps(i):
    if PST: a(f's_memtime s[{70+2*i}:{71+2*i}]')
def pend():
    if PST:
        ps(4)
        a('s_waitcnt vmcnt(0) lgkmcnt(0)')
        ps(5)
        a('s_memrealtime s[84:85]')
        a('s_waitcnt lgkmcnt(0)')
        a('s_lshl_b32 s58, s2, 3')
        a('s_add_u32 s58, s58, s3')
        a('s_lshl_b32 s58, s58, 6')
        a(f's_add_u32 s58, s58, {0xD80000:#x}')
        a('v_mov_b32 v4, 0')
        a('s_mov_b64 exec, 1')
        for i in range(8):
            a(f'v_mov_b32 v6, s{70+2*i}')
            a(f'buffer_store_dword v6, v4, s[36:39], s58 offen offset:{4*i}')
        a('s_mov_b64 exec, -1')
a('.globl pre_kernel\n.p2align 8\n.type pre_kernel,@function')
a.label('pre_kernel')
a(f's_cmp_ge_u32 s2, {PRE_WGS}')
a('s_cbranch_scc1 L_pre_end')
ps(0)
if PST: a('s_memrealtime s[82:83]')
a('s_load_dwordx4 s[4:7], s[0:1], 0')
a('s_load_dwordx4 s[8:11], s[0:1], 16')
a('s_load_dwordx4 s[12:15], s[0:1], 32')
a('s_load_dwordx2 s[16:17], s[0:1], 64')
a('v_lshlrev_b32 v1, 4, v0')
a('v_lshrrev_b32 v2, 6, v0')
a('v_and_b32 v3, 63, v0')
a('v_readfirstlane_b32 s3, v2')
a('s_waitcnt lgkmcnt(0)')
ps(1)
XS, SRC, DST, W, WS = 20, 24, 28, 32, 36
srd(XS, 4, N*256); srd(SRC, 8, E*4); srd(DST, 10, E*4); srd(WS, 16, WS_SIZE)
a(f's_sub_u32 s40, s2, {NCH+NGEMM+1}')
a('s_cmp_lt_u32 s40, 2')
a(f's_cselect_b32 s{W}, s14, s12')
a(f's_cselect_b32 s{W+1}, s15, s13')
a(f's_cselect_b32 s{W+2}, 0x10000, {272*256:#x}') if False else None
a(f's_mov_b32 s41, {272*256:#x}')
a(f's_cselect_b32 s{W+2}, 0x10000, s41')
a(f's_and_b32 s{W+1}, s{W+1}, 0xffff')
a(f's_mov_b32 s{W+3}, 0x20000')
a(f's_cmp_ge_u32 s2, {NCH}')
a('s_cbranch_scc1 L_pre_gemm')
CS = 132
L_OVC = 256*CS
D0, S0, B4, RK, TK = 8, 16, 24, 32, 48
SC1 = '' if X('nosc1') else ' sc1'
a(f's_mul_i32 s40, s2, {CH*4}')
a('s_add_u32 s41, s40, 8192')
a(f'buffer_load_dwordx4 v[8:11], v1, s[{DST}:{DST+3}], s40 offen')
a('v_mul_u32_u24 v4, 12, v0')
a('s_cmp_ge_u32 s3, 6')
a('s_cbranch_scc1 L_p_no2')
a(f'buffer_load_dwordx3 v[12:14], v4, s[{DST}:{DST+3}], s41 offen')
a(f'buffer_load_dwordx3 v[20:22], v4, s[{SRC}:{SRC+3}], s41 offen')
a.label('L_p_no2')
a(f'buffer_load_dwordx4 v[16:19], v1, s[{SRC}:{SRC+3}], s40 offen')
a('v_min_u32 v40, 256, v0')
a('v_cmp_gt_u32 vcc, 256, v0')
a(f'v_mul_u32_u24 v40, {CS}, v40')
a('v_mov_b32 v42, 4')
a('v_mov_b32 v41, 0')
a('v_cndmask_b32 v43, v41, v42, vcc')
a('ds_write_b32 v40, v43')
for k in range(4, 7): a(f'v_mov_b32 v{RK+k}, 0')
a(f'v_lshlrev_b32 v{TK}, 16, v0')
a(f'v_add_u32 v{TK}, 0x4000000, v{TK}')
for k in range(1, 4): a(f'v_add_u32 v{TK+k}, {k<<14:#x}, v{TK}')
a(f'v_mul_u32_u24 v{TK+4}, {3<<14:#x}, v0')
a(f'v_add_u32 v{TK+4}, {0x4000000+(2048<<14):#x}, v{TK+4}')
for k in range(5, 7): a(f'v_add_u32 v{TK+k}, {(k-4)<<14:#x}, v{TK+4}')
a(f's_mov_b32 s46, {CS}')
a('v_lshrrev_b32 v44, 3, v0')
a('v_and_b32 v46, 7, v0')
a(f'v_mul_u32_u24 v45, {CS}, v44')
a('v_lshlrev_b32 v47, 14, v44')
a('v_lshl_add_u32 v47, v46, 4, v47')
a('v_and_b32 v60, 4, v0')
a('v_lshlrev_b32 v60, 4, v60')
a('v_and_b32 v46, 3, v0')
a('v_lshl_add_u32 v56, v46, 2, v45')
a('v_add_u32 v56, v56, v60')
for k in range(1, 4): a(f'v_add_u32 v{56+k}, {64*CS*k}, v56')
a(f's_lshl_b32 s47, s2, 7')
a(f's_add_u32 s47, s47, {WS_CELLS:#x}')
a('s_waitcnt lgkmcnt(0)')
a('s_barrier')
def part1(k):
    a(f'v_mul_u32_u24_sdwa v{B4+k}, s46, v{D0+k} dst_sel:DWORD dst_unused:UNUSED_PAD src0_sel:DWORD src1_sel:BYTE_0')
    a(f'v_lshlrev_b32_sdwa v{D0+k}, 26, v{D0+k} dst_sel:DWORD dst_unused:UNUSED_PAD src0_sel:DWORD src1_sel:BYTE_1')
    a(f'ds_add_rtn_u32 v{RK+k}, v{B4+k}, v42')
def part2(k):
    a(f'v_add3_u32 v{S0+k}, v{S0+k}, v{D0+k}, v{TK+k}')
def part3(k):
    a(f'v_min_u32 v44, 128, v{RK+k}')
    a(f'v_add_u32 v44, v44, v{B4+k}')
    a(f'ds_write_b32 v44, v{S0+k}')
a('s_cmp_ge_u32 s3, 6')
a('s_cbranch_scc1 L_p_short')
a('s_waitcnt vmcnt(3)')
ps(2)
for k in range(4): part1(k)
a('s_waitcnt vmcnt(2)')
for k in range(4, 7): part1(k)
a('s_waitcnt vmcnt(1)')
for k in range(4, 7): part2(k)
a('s_waitcnt lgkmcnt(0)')
for k in range(4, 7): part3(k)
a('s_branch L_p_join')
a.label('L_p_short')
a('s_waitcnt vmcnt(1)')
ps(2)
for k in range(4): part1(k)
a('s_waitcnt lgkmcnt(0)')
a.label('L_p_join')
a('s_waitcnt vmcnt(0)')
for k in range(4): part2(k)
for k in range(4): part3(k)
a(f'v_max3_u32 v44, v{RK}, v{RK+1}, v{RK+2}')
a(f'v_max3_u32 v44, v44, v{RK+3}, v{RK+4}')
a(f'v_max3_u32 v44, v44, v{RK+5}, v{RK+6}')
a('v_cmp_lt_u32 vcc, 124, v44')
a('s_cbranch_vccz L_p_noovf')
a(f's_add_u32 s44, s40, {WS_OVFREC:#x}')
a(f's_add_u32 s45, s40, {WS_OVFBKT:#x}')
for k in range(7):
    a(f'v_cmp_lt_u32 vcc, 124, v{RK+k}')
    a('s_mov_b64 exec, vcc')
    a(f's_cbranch_execz L_p_ov{k}')
    a(f'ds_add_rtn_u32 v44, v41, v42 offset:{L_OVC}')
    a('s_waitcnt lgkmcnt(0)')
    a(f'buffer_store_dword v{S0+k}, v44, s[{WS}:{WS+3}], s44 offen')
    a(f'buffer_store_dword v{B4+k}, v44, s[{WS}:{WS+3}], s45 offen')
    a('s_waitcnt vmcnt(0)')
    a.label(f'L_p_ov{k}')
    a('s_mov_b64 exec, -1')
a.label('L_p_noovf')
a('s_waitcnt lgkmcnt(0)')
a('s_barrier')
ps(3)
for k in range(4):
    a(f'ds_read_b32 v{24+k}, v45 offset:{64*CS*k}')
    a(f'ds_read2_b32 v[{8+4*k}:{9+4*k}], v{56+k} offset0:0 offset1:4')
    a(f'ds_read2_b32 v[{10+4*k}:{11+4*k}], v{56+k} offset0:8 offset1:12')
a(f'ds_read_b32 v28, v41 offset:{L_OVC}')
for k in range(4):
    a(f's_waitcnt lgkmcnt({10-3*k})')
    if not X('fullcell'):
        a(f'v_cmp_lt_u32 vcc, v60, v{24+k}')
        a('s_mov_b64 exec, vcc')
    a(f'buffer_store_dwordx4 v[{8+4*k}:{11+4*k}], v47, s[{WS}:{WS+3}], s47 offen' + SC1)
    a('s_mov_b64 exec, -1')
    if k < 3: a('s_add_u32 s47, s47, 0x100000')
pend()
a('s_cmp_lg_u32 s3, 0')
a('s_cbranch_scc1 L_pre_end')
a('s_lshl_b32 s44, s2, 2')
a(f's_add_u32 s44, s44, {WS_OVFLEN:#x}')
a('s_mov_b64 exec, 1')
a('s_waitcnt lgkmcnt(0)')
a(f'buffer_store_dword v28, v41, s[{WS}:{WS+3}], s44 offen')
a('s_endpgm')

a.label('L_pre_gemm')
a(f's_sub_u32 s40, s2, {NCH}')
a(f's_sub_u32 s41, s40, {NGEMM}')
a('s_mov_b32 s42, 0')
a('s_cmp_eq_u32 s41, 0')
a('s_cselect_b32 s42, 0x8000, s42')
a('s_cmp_eq_u32 s41, 2')
a('s_cselect_b32 s42, 0x8000, s42')
a('s_cmp_eq_u32 s41, 3')
a('s_cselect_b32 s42, 0x10000, s42')
a('v_lshrrev_b32 v4, 4, v3')
a('v_and_b32 v5, 15, v3')
a('v_lshlrev_b32 v6, 2, v4')
a('v_xor_b32 v6, v6, v5')
a('v_lshlrev_b32 v6, 4, v6')
a('v_lshl_add_u32 v6, v4, 8, v6')
a('s_lshl_b32 s43, s3, 12')
a('s_mov_b32 m0, s43')
a('s_add_u32 s42, s42, s43')
for i in range(4): a(f'buffer_load_dwordx4 v6, s[{W}:{W+3}], s42 offen offset:{1024*i} lds')
a(f's_cmp_lt_u32 s40, {NGEMM}')
a('s_cbranch_scc0 L_g_nox')
a('v_xor_b32 v8, v4, v5')
a('v_lshlrev_b32 v8, 4, v8')
a('v_lshl_add_u32 v8, v4, 8, v8')
a('s_add_u32 s44, s43, 32768')
a('s_mov_b32 m0, s44')
a('s_lshl_b32 s45, s40, 15')
a('s_add_u32 s44, s45, s43')
for i in range(4):
    if i: a(f'v_xor_b32 v9, {64*i}, v8')
    a(f'buffer_load_dwordx4 v{9 if i else 8}, s[{XS}:{XS+3}], s44 offen offset:{1024*i} lds')
a.label('L_g_nox')
a('s_and_b32 s46, s3, 3')
a('s_lshr_b32 s47, s3, 2')
a('s_lshl_b32 s49, s47, 1')
a(f's_cmp_lt_u32 s40, {NGEMM}')
a('s_cselect_b32 s49, s49, s46')
a('v_lshrrev_b32 v10, 5, v3')
a('v_and_b32 v11, 1, v4')
a('v_bfe_u32 v12, v3, 2, 2')
a('v_and_b32 v13, 1, v3')
a('v_bfe_u32 v14, v3, 1, 1')
a('v_lshl_add_u32 v15, v13, 1, v11')
a('v_lshl_add_u32 v16, v11, 1, v14')
a('s_cmp_eq_u32 s41, 3')
a('s_cselect_b64 vcc, -1, 0')
a('v_cndmask_b32 v15, v15, v16, vcc')
a('v_cndmask_b32 v16, v14, v13, vcc')
a('v_xor_b32 v17, s49, v12')
a('v_lshl_add_u32 v15, v17, 2, v15')
a('v_lshlrev_b32 v15, 4, v15')
a('v_lshl_add_u32 v15, v16, 3, v15')
a('v_lshl_add_u32 v17, v10, 3, v12')
a('v_lshl_add_u32 v15, v17, 8, v15')
a('v_and_b32 v18, 31, v3')
WF, XF, ACC = 32, 96, 128
a(f's_cmp_lt_u32 s40, {NGEMM}')
a('s_cbranch_scc1 L_g_go')
a('s_waitcnt vmcnt(0)')
a('s_barrier')
a('s_branch L_g_frag')
a.label('L_g_go')
a('v_xor_b32 v16, 64, v15')
a('s_lshl_b32 s48, s46, 5')
a('v_add_u32 v19, s48, v18')
a('v_and_b32 v20, 15, v18')
a('v_xor_b32 v20, v20, v10')
a('v_lshlrev_b32 v20, 4, v20')
a('v_lshl_add_u32 v20, v19, 8, v20')
a('v_and_b32 v21, 7, v18')
a('v_lshlrev_b32 v22, 1, v10')
a('v_xor_b32 v21, v21, v22')
a('v_lshlrev_b32 v21, 4, v21')
a('v_lshl_add_u32 v21, v18, 7, v21')
a('s_add_u32 s48, s43, 65536')
a('v_add_u32 v21, s48, v21')
a('v_lshrrev_b32 v24, 3, v3')
a('v_and_b32 v25, 7, v3')
a('v_xor_b32 v22, v24, v25')
a('v_lshlrev_b32 v22, 4, v22')
a('v_lshl_add_u32 v22, v24, 7, v22')
a('v_add_u32 v22, s48, v22')
a('v_lshlrev_b32 v23, 4, v25')
a('v_lshl_add_u32 v23, v24, 8, v23')
a('s_lshl_b32 s48, s46, 13')
a('s_add_u32 s48, s48, s45')
a('s_lshl_b32 s49, s47, 7')
a('s_add_u32 s48, s48, s49')
a(f's_add_u32 s48, s48, {WS_P}')
a('s_add_u32 s49, s48, 4096')
a('s_waitcnt vmcnt(4)')
a('s_barrier')
n = 0
for s in range(8):
    for b in range(2):
        for u in range(2):
            a(f'ds_read_b64_tr_b16 v[{WF+32*b+4*s+2*u}:{WF+32*b+4*s+2*u+1}], v{15+b} offset:{4096*s+1024*u}')
            n += 1
            if n % 8 == 0 and n > 8: a('s_waitcnt lgkmcnt(7)') if False else None
    if s in (2, 5): a('s_waitcnt lgkmcnt(2)')
a('s_waitcnt vmcnt(0) lgkmcnt(0)')
ps(2)
a('s_barrier')
ps(3)
for s in range(8):
    if s: a(f'v_xor_b32 v24, {32*s}, v20')
    a(f'ds_read_b128 v[{XF+4*s}:{XF+4*s+3}], v{24 if s else 20} offset:32768')
for s in range(8):
    a(f's_waitcnt lgkmcnt({7-s})')
    for b in range(2):
        c = '0' if s == 0 else f'v[{ACC+16*b}:{ACC+16*b+15}]'
        a(f'v_mfma_f32_32x32x16_bf16 v[{ACC+16*b}:{ACC+16*b+15}], v[{WF+32*b+4*s}:{WF+32*b+4*s+3}], v[{XF+4*s}:{XF+4*s+3}], {c}')
a('v_xor_b32 v24, 16, v21')
a('v_xor_b32 v25, 64, v21')
a('v_xor_b32 v26, 80, v21')
a.nop(9)
for b in range(2):
    for r in range(16): a(f'v_mul_f32 v{ACC+16*b+r}, {NEGLOG2E:#x}, v{ACC+16*b+r}')
    for r in range(8): a(f'v_cvt_pk_bf16_f32 v{WF+8*b+r}, v{ACC+16*b+2*r}, v{ACC+16*b+2*r+1}')
    a(f'ds_write_b128 v{25 if b else 21}, v[{WF+8*b}:{WF+8*b+3}]')
    a(f'ds_write_b128 v{26 if b else 24}, v[{WF+8*b+4}:{WF+8*b+7}]')
for i in range(4): a(f'ds_read_b128 v[{XF+4*i}:{XF+4*i+3}], v22 offset:{1024*i}')
for i in range(4):
    a(f's_waitcnt lgkmcnt({3-i})')
    a(f'buffer_store_dwordx4 v[{XF+4*i}:{XF+4*i+3}], v23, s[{WS}:{WS+3}], s{48+(i>>1)} offen offset:{2048*(i&1)}' + ('' if X('pnosc1') else ' sc1'))
pend()
a('s_endpgm')
a.label('L_g_frag')
a('v_lshlrev_b32 v22, 4, v3')
a('s_cmp_eq_u32 s41, 3')
a('s_cbranch_scc1 L_g_w3')
a('s_lshl_b32 s48, s3, 1')
a('v_add_u32 v15, s48, v14')
a('s_cmp_eq_u32 s41, 2')
a('s_cbranch_scc1 L_g_wu2')
a('v_lshlrev_b32 v16, 2, v12')
a('v_xor_b32 v16, v16, v15')
a('v_lshlrev_b32 v16, 4, v16')
a('v_lshl_add_u32 v16, v13, 3, v16')
a('v_lshl_add_u32 v17, v4, 3, v12')
a('v_lshl_add_u32 v16, v17, 8, v16')
for s in range(4):
    for u in range(2): a(f'ds_read_b64_tr_b16 v[{WF+4*s+2*u}:{WF+4*s+2*u+1}], v16 offset:{8192*s+1024*u}')
a('s_branch L_g_fst')
a.label('L_g_wu2')
for u in range(2):
    a(f'v_lshl_add_u32 v17, v4, 1, {u}')
    a('v_and_b32 v16, 3, v17')
    a('v_lshlrev_b32 v16, 2, v16')
    a('v_xor_b32 v16, v16, v15')
    a('v_lshlrev_b32 v16, 4, v16')
    a('v_lshl_add_u32 v16, v13, 3, v16')
    a('v_lshl_add_u32 v17, v12, 5, v17')
    a('v_lshl_add_u32 v16, v17, 8, v16')
    for s in range(4): a(f'ds_read_b64_tr_b16 v[{WF+4*s+2*u}:{WF+4*s+2*u+1}], v16 offset:{2048*s}')
a.label('L_g_fst')
a('s_lshl_b32 s48, s41, 15')
a('s_lshl_b32 s49, s3, 12')
a('s_add_u32 s48, s48, s49')
a(f's_add_u32 s48, s48, {WS_FRAG:#x}')
a('s_waitcnt lgkmcnt(0)')
for s in range(4): a(f'buffer_store_dwordx4 v[{WF+4*s}:{WF+4*s+3}], v22, s[{WS}:{WS+3}], s48 offen offset:{1024*s}')
a('s_endpgm')
a.label('L_g_w3')
a('s_cmp_lg_u32 s47, 0')
a('s_cbranch_scc1 L_pre_end')
for u in range(2): a(f'ds_read_b64_tr_b16 v[{WF+2*u}:{WF+2*u+1}], v15 offset:{1024*u}')
a('s_lshl_b32 s48, s46, 10')
a(f's_add_u32 s48, s48, {WS_FRAG+3*32768:#x}')
a('s_waitcnt lgkmcnt(0)')
for r in range(4):
    a(f'v_lshlrev_b32 v40, 16, v{WF+r}')
    a(f'v_and_b32 v41, 0xffff0000, v{WF+r}')
    a(f'v_mul_f32 v40, {NEGLOG2E:#x}, v40')
    a(f'v_mul_f32 v41, {NEGLOG2E:#x}, v41')
    a(f'v_cvt_pk_bf16_f32 v{WF+r}, v40, v41')
a(f'buffer_store_dwordx4 v[{WF}:{WF+3}], v22, s[{WS}:{WS+3}], s48 offen')
a.label('L_pre_end')
a('s_endpgm')

BENCH = '--bench' in sys.argv
RSTR = 272
L_PT = 0
L_EO = 54*256
L_QS = 108*256
QSTR = 13*256
L_QT = L_QS + QSTR; L_QW = L_QT + QSTR; L_QK = L_QW + QSTR
L_HIST = L_QK + QSTR
L_MISC = L_HIST + 256
L_ZERO = L_MISC + 64
L_HEAD = L_ZERO + 512
L_CARRY = L_HEAD + 8192
L_XI = L_HEAD
L_NODE = L_CARRY + 15*512
NSTR = 784
L_STG = (L_NODE + 50*NSTR + 255) // 256 * 256
assert L_XI % 64 == 0
HB = 4160
LDS_MAIN = L_STG + 16*HB
assert LDS_MAIN <= 163840 and L_NODE % 16 == 0 and L_EO + 50*RSTR <= L_QS

class RA_:
    def __init__(s, st): s.n = st
    def __call__(s, k=1, al=1):
        s.n = (s.n + al - 1)//al*al; r = s.n; s.n += k; return r
al = RA_(16)
ZB = [al(16), al(16)]; U = al(16); PA = [al(16), al(16)]
NF = al(4); D = al(4); RC = al(4); MB = al(16); KK = al(4); AA = al(4); DA = al(4); PTr = al(4)
EC = al(4); EN = al(4); QB = [al(2), al(2)]; TM = al(2); TC = al(2)
I0 = al(4); I1 = al(4); W3 = al(16); R = al(16); WU2 = al(16); REC = al(8)
G = al(2); RA = al(2); TA = al(); TAr = al(); SP = al(); SE = al(); EOr = al(); EV = al(); MK = al(); CB = al()
vQA = al(); vQ1 = al(); vQP = al(); vQE = al()
LC = al(); CA = al(); CT = al(); H16 = al(); I4 = al(); CIr = al(2)
NVG = al.n
Uq = lambda q, s_: U + 8*(q>>1) + 2*((s_+3)&3) + (1-(q&1))
RCq = lambda q: RC + (q^1)
assert U % 2 == 0 and D % 2 == 0 and NF % 2 == 0 and RC % 2 == 0
assert NVG <= 256
LANE, MM, HH = 1, 2, 3
XF = 16
W2F = 80
WU1F = 96
QACC = 112
HA, RK, PV, EVv = AA, WU2+8, AA+8, WU2
assert AA == 128 and TC >= AA+24
vW, vXF, vQW, cP1, cP2, cP3, cP4, vTCH, vPF = 243, 244, 248, 249, 252, 253, 254, 251, 255
sQM = 100
PS, WSd, Ed, Xd, Od = 8, 12, 16, 20, 24
sW, sNODE0, sT, sTC, sSAFE, sMORE, sFIRST, sBML, sM0A, sM0B, sNZ = 28, 29, 30, 31, 32, 33, 34, 35, 36, 37, 38
XM = 40
SO = 92
BM = 60
sSLOW, sN, sPASS = 64, 65, 66
nstamp = [0]
def stamp():
    if STAMP and nstamp[0] < 11:
        a(f's_memtime s[{70+2*nstamp[0]}:{71+2*nstamp[0]}]'); nstamp[0] += 1
FINE = opt('fine', 0)
def st(level):
    if FINE == level: stamp()

a('.globl main_kernel\n.p2align 8\n.type main_kernel,@function')
a.label('main_kernel')
a('s_cmp_ge_u32 s2, 256')
a('s_cbranch_scc1 L_main_end')
stamp()
a('s_load_dwordx2 s[66:67], s[0:1], 64')
a('s_load_dwordx4 s[4:7], s[0:1], 0')
a('s_load_dwordx2 s[64:65], s[0:1], 48')
a(f'v_lshrrev_b32 v4, 6, v0')
a(f'v_and_b32 v{LANE}, 63, v0')
a(f'v_readfirstlane_b32 s{sW}, v4')
a(f'v_and_b32 v{MM}, 31, v0')
a(f'v_bfe_u32 v{HH}, v0, 5, 1')
a(f's_lshl_b32 s{sNODE0}, s2, 8')
a(f's_mov_b32 s{sSAFE}, 0')
a(f's_mov_b32 s{sFIRST}, 1')
a(f's_mul_i32 s{sM0A}, s{sW}, {2*HB}')
a(f's_add_u32 s{sM0A}, s{sM0A}, {L_STG}')
a(f's_add_u32 s{sM0B}, s{sM0A}, {HB}')
for i in range(8): a(f's_mov_b32 s{SO+i}, {3120-1040*(i&3)+128*(i>>2)}')
a(f'v_lshrrev_b32 v4, 4, v{LANE}')
a(f'v_and_b32 v5, 15, v{LANE}')
a(f's_lshl_b32 s58, s{sW}, 3')
a('v_add_u32 v6, s58, v4')
a('v_and_b32 v7, 15, v6')
a('v_xor_b32 v7, v7, v5')
a('v_lshlrev_b32 v7, 4, v7')
a('v_lshl_add_u32 v7, v6, 16, v7')
a('v_xor_b32 v8, 64, v7')
a(f'v_add_u32 v8, {4*65536-1024}, v8')
a('v_cmp_gt_u32 s[68:69], 49, v6')
a(f's_lshl_b32 s58, s{sW}, 11')
a(f's_add_u32 s58, s58, {L_XI}')
a('s_mov_b32 m0, s58')
a(f's_mov_b32 s{WSd+2}, {WS_SIZE:#x}'); a(f's_mov_b32 s{WSd+3}, 0x20000')
a(f's_mov_b32 s{Xd+2}, {N*256:#x}'); a(f's_mov_b32 s{Xd+3}, 0x20000')
a(f's_mov_b32 s{PS+2}, 0'); a(f's_mov_b32 s{PS+3}, 0x20000')
a(f's_mov_b32 s{Ed+2}, 0'); a(f's_mov_b32 s{Ed+3}, 0x20000')
a(f's_mov_b32 s{Od+2}, {N*256:#x}'); a(f's_mov_b32 s{Od+3}, 0x20000')
def celladdr():
    a(f'v_mov_b32 v{REC}, 0')
    a('v_and_b32 v9, 3, v0')
    a('v_lshlrev_b32 v5, 5, v0')
    a('v_lshlrev_b32 v9, 4, v9')
    a('v_sub_u32 v5, v5, v9')
    a('s_lshl_b32 s58, s2, 14')
    a(f's_add_u32 s58, s58, {WS_CELLS:#x}')
    a('v_cmp_gt_u32 vcc, 500, v0')
celladdr()
a('s_waitcnt lgkmcnt(0)')
st(1)
a(f's_mov_b32 s{WSd}, s66'); a(f's_and_b32 s{WSd+1}, s67, 0xffff')
a.label('L_cells')
a('s_mov_b64 exec, vcc')
a(f'buffer_load_dwordx4 v[{REC}:{REC+3}], v5, s[{WSd}:{WSd+3}], s58 offen')
a(f'buffer_load_dwordx4 v[{REC+4}:{REC+7}], v5, s[{WSd}:{WSd+3}], s58 offen offset:64')
a('s_mov_b64 exec, -1')
a(f's_mov_b32 s{sBML}, 0')
a(f's_cmp_eq_u32 s{sFIRST}, 0')
a('s_cbranch_scc1 L_skipfirst')
a(f's_mov_b32 s{Xd}, s4'); a(f's_and_b32 s{Xd+1}, s5, 0xffff')
a(f's_add_u32 s{PS}, s66, {WS_P-3120}'); a(f's_addc_u32 s{PS+1}, s67, 0'); a(f's_and_b32 s{PS+1}, s{PS+1}, 0xffff')
a(f's_mov_b32 s{Ed}, s6'); a(f's_and_b32 s{Ed+1}, s7, 0xffff')
a(f's_mov_b32 s{Od}, s64'); a(f's_and_b32 s{Od+1}, s65, 0xffff')
a(f's_cmp_lt_u32 s{sW}, 6')
a('s_cbranch_scc0 L_x67')
a(f'buffer_load_dwordx4 v7, s[{Xd}:{Xd+3}], s{sNODE0} offen lds')
a(f'buffer_load_dwordx4 v8, s[{Xd}:{Xd+3}], s{sNODE0} offen offset:1024 lds')
a('s_branch L_xd')
a.label('L_x67')
a('s_lshr_b32 s58, s2, 3')
a('s_mul_i32 s58, s58, 3200')
a(f's_add_u32 s58, s58, {WS_FRAG:#x}')
a(f'v_lshlrev_b32 v9, 7, v{LANE}')
a(f's_cmp_eq_u32 s{sW}, 6')
a('s_cbranch_scc0 L_x7')
a('s_mov_b64 exec, s[68:69]')
a(f'buffer_load_dwordx4 v7, s[{Xd}:{Xd+3}], s{sNODE0} offen lds')
a('s_mov_b64 exec, 0x1ffffff')
a(f'buffer_load_dword v251, v9, s[{WSd}:{WSd+3}], s58 offen')
a('s_branch L_x8')
a.label('L_x7')
a(f's_mov_b32 s{Ed+2}, {E*32 if X("tlb") else 0:#x}')
a(f'v_lshlrev_b32 v9, 18, v{LANE}')
a(f'buffer_load_dword v251, v9, s[{Ed}:{Ed+3}], 0 offen')
a('s_mov_b64 exec, %s' % ('0x1fff' if X('tlb') else '1'))
a(f'buffer_load_dword v251, v9, s[{WSd}:{WSd+3}], 0 offen')
a.label('L_x8')
a('s_mov_b64 exec, -1')
a.label('L_xd')
st(1)
a(f'v_bfe_u32 v4, v{MM}, 2, 1')
a(f'v_lshrrev_b32 v5, 3, v{MM}')
a('v_lshl_add_u32 v10, v4, 2, v5')
a(f'v_and_b32 v6, 3, v{MM}')
a(f'v_lshlrev_b32 v{I4}, 2, v6')
a('v_mul_u32_u24 v6, 1040, v6')
a('v_lshl_add_u32 v6, v10, 7, v6')
a(f'v_lshlrev_b32 v{H16}, 4, v{HH}')
a(f'v_add3_u32 v6, v6, v{H16}, s{sM0A}')
a(f'v_and_b32 v7, 16, v{MM}')
a('v_lshlrev_b32 v7, 2, v7')
a(f'v_add_u32 v{RA}, v6, v7')
a('v_xor_b32 v7, 64, v7')
a(f'v_add_u32 v{RA+1}, v6, v7')
a('v_mov_b32 v8, 0x3f80')
a('v_mov_b32 v9, 0')
def onehot4(dst, vj):
    a(f'v_cmp_gt_u32 vcc, 4, v{vj}')
    a(f'v_lshlrev_b32 v7, 4, v{vj}')
    a(f'v_mov_b32 v{dst+1}, 0')
    a(f'v_cndmask_b32 v{dst}, v9, v8, vcc')
    a(f'v_lshlrev_b64 v[{dst}:{dst+1}], v7, v[{dst}:{dst+1}]')
a(f'v_lshlrev_b32 v5, 2, v{HH}')
a('v_sub_u32 v5, v10, v5')
onehot4(TC, 5)
a(f'v_lshlrev_b32 v5, 3, v{HH}')
a(f'v_sub_u32 v5, v{MM}, v5')
onehot4(I0, 5)
a('v_subrev_u32 v5, 4, v5')
onehot4(I0+2, 5)
a('v_subrev_u32 v5, 12, v5')
onehot4(I1, 5)
a('v_subrev_u32 v5, 4, v5')
onehot4(I1+2, 5)
a(f'v_and_b32 v4, 7, v{LANE}')
a(f'v_and_b32 v5, 16, v{LANE}')
a('v_lshlrev_b32 v4, 4, v4')
a('v_lshlrev_b32 v6, 2, v5')
a(f'v_xor_b32 v{LC}, v4, v6')
a(f'v_lshlrev_b32 v{CA}, 4, v{MM}')
a(f'v_add_u32 v{CA}, {L_NODE}, v{CA}')
a(f'v_and_b32 v4, 3, v{LANE}')
a('v_lshlrev_b32 v4, 3, v4')
a('v_lshl_add_u32 v4, v5, 1, v4')
a(f'v_add_u32 v{CT}, {L_NODE+512}, v4')
a(f'v_lshlrev_b32 v{vW}, 4, v{LANE}')
a(f'v_lshlrev_b32 v{vPF}, 7, v{LANE}')
a(f'v_and_b32 v4, 15, v{LANE}')
a(f'v_lshrrev_b32 v6, 4, v{LANE}')
a('v_xor_b32 v5, v6, v4')
a('v_lshlrev_b32 v5, 4, v5')
a(f'v_lshl_add_u32 v{vXF}, v4, 8, v5')
for s in range(1, 4): a(f'v_xor_b32 v{vXF+s}, {64*s}, v{vXF}')
a(f'v_mul_u32_u24 v5, {NSTR}, v4')
a('v_lshl_add_u32 v5, v6, 3, v5')
a(f's_lshl_b32 s58, s{sW}, 5')
a(f's_add_u32 s58, s58, {L_NODE+NSTR+512}')
a(f'v_add_u32 v{vQW}, s58, v5')
a(f'v_and_b32 v{cP1}, 12, v{LANE}')
a(f'v_lshrrev_b32 v{cP2}, 1, v{LANE}')
a(f'v_and_b32 v{cP2}, 12, v{cP2}')
a(f'v_lshrrev_b32 v{cP3}, 2, v10')
a(f'v_and_b32 v{cP4}, 3, v10')
a(f'v_lshlrev_b32 v{cP4}, 2, v{cP4}')
a.label('L_skipfirst')
a(f's_mov_b32 s{sPASS}, 0')
st(1)
a('v_lshrrev_b32 v4, 2, v0')
a(f'v_mul_u32_u24 v{CB}, {CH*32}, v4')
for i in range(4): a(f'v_mov_b32 v{12+i}, 0')
a('v_lshrrev_b32 v4, 5, v0')
a(f'v_mul_u32_u24 v4, {NSTR}, v4')
a(f'v_add_u32 v4, v4, v{CA}')
for k in range(3): a(f'ds_write_b128 v4, v[12:15] offset:{NSTR*(16*k+2)}')
a(f's_cmp_lg_u32 s{sW}, 0')
a('s_cbranch_scc1 L_z0')
a(f'v_mul_u32_u24 v5, 320, v{HH}')
a('v_sub_u32 v4, v4, v5')
a('ds_write_b128 v4, v[12:15] offset:320')
a(f'v_min_u32 v4, 49, v{LANE}')
a(f'v_mul_u32_u24 v4, {NSTR}, v4')
a(f'ds_write_b32 v4, v12 offset:{L_NODE+768}')
a.label('L_z0')
a(f'v_mov_b32 v{G}, 0')
a(f'v_mov_b32 v{G+1}, 0')
a(f's_mov_b32 s{sNZ}, {(L_HEAD-L_QS)//16-512}')
a.label('L_reinit')
for i in range(4): a(f'v_mov_b32 v{12+i}, 0')
a('v_lshlrev_b32 v4, 4, v0')
a(f'ds_write_b128 v4, v[12:15] offset:{L_QS}')
a(f'v_cmp_gt_u32 vcc, s{sNZ}, v0')
for i in range(4): a(f'v_bfrev_b32 v{48+i}, 1')
a('s_mov_b64 exec, vcc')
a(f'ds_write_b128 v4, v[12:15] offset:{L_QS+8192}')
a('s_mov_b64 exec, -1')
a(f'v_cmp_gt_u32 vcc, {L_QS//16-1536}, v0')
for k in range(3): a(f'ds_write_b128 v4, v[48:51] offset:{8192*k}')
a('s_mov_b64 exec, vcc')
a(f'ds_write_b128 v4, v[48:51] offset:{8192*3}')
a('s_mov_b64 exec, -1')
a(f's_mov_b32 s{sNZ}, {(L_MISC-L_QS)//16-512}')
a('v_mov_b32 v11, 4')
a(f's_lshl_b32 s56, s{sW}, 12')
a(f's_add_u32 s56, s56, {WS_FRAG:#x}')
a('s_add_u32 s4, s56, 0x8000')
a(f's_mov_b32 s5, {WS_FRAG+3*32768:#x}')
a('s_lshr_b32 s6, s2, 3')
a(f's_mul_i32 s6, s6, {784*128}')
a(f's_mul_i32 s7, s{sW}, {98*128}')
a('s_add_u32 s6, s6, s7')
a(f's_add_u32 s6, s6, {WS_P}')
a('s_movk_i32 s39, 0xfc')
a(f's_movk_i32 s57, {RSTR//4}')
a('v_and_b32 v13, 3, v0')
a('v_lshlrev_b32 v13, 2, v13')
a(f'v_mul_u32_u24 v8, {NSTR}, v{LANE}')
vHD, vHW, vHK, cH1 = 15, TAr, EOr, CIr
a(f's_or_b32 s{sSLOW}, s{sSAFE}, s{sPASS}')
a('s_cselect_b32 s67, 0, -1')
a('s_cselect_b32 s59, -1, 0')
a('s_cselect_b32 s3, 1, 4')
a('v_and_b32 v9, s59, v8')
a(f'v_subrev_u32 v4, 1, v{LANE}')
a('v_cmp_gt_u32 vcc, 16, v4')
a(f'v_lshrrev_b32 v{cH1}, 2, v{LANE}')
a(f'v_mul_u32_u24 v12, {RSTR}, v{LANE}')
a(f'v_cndmask_b32 v{vHD}, 0, 16, vcc')
a(f'v_lshl_add_u32 v12, v{vHD}, 2, v12')
a('v_cmp_eq_u32 vcc, 12, v13')
a(f'v_lshlrev_b32 v4, 9, v{cH1}')
a(f'v_add_u32 v4, {(L_HEAD-L_NODE) & 0xffffffff:#x}, v4')
a(f'v_cndmask_b32 v4, 0, v4, vcc')
a(f'v_mul_u32_u24 v5, {NSTR}, v{cH1}')
a(f'v_add_u32 v5, {NSTR}, v5')
a('v_cmp_ne_u32 vcc, 0, v13')
a(f'v_bfi_b32 v{vHW}, s59, v5, v4')
a(f'v_mov_b32 v4, s67')
a(f'v_cndmask_b32 v{vHK}, 0, v4, vcc')
a(f's_lshl_b32 s58, s{sW}, 1')
a('s_add_u32 s58, s58, 1')
a(f'v_add_u32 v4, s58, v{HH}')
a(f'v_mul_u32_u24 v5, {RSTR}, v4')
a(f'v_lshl_add_u32 v{SP}, v{cP2}, 2, v5')
a(f'v_mul_u32_u24 v4, {NSTR}, v4')
a(f'v_add_u32 v{TA}, v4, v{CT}')
a(f'v_add_u32 v4, s58, v{cP3}')
a(f'v_mul_u32_u24 v4, {RSTR}, v4')
a(f'v_lshl_add_u32 v4, v{cP4}, 2, v4')
a(f'v_add_u32 v{SE}, v4, v{I4}')
a(f's_mov_b32 s{PS+2}, {0 if "--nop" in sys.argv else 3120+N*256:#x}')
a(f's_mov_b32 s{Ed+2}, {0 if "--noe" in sys.argv else E*32:#x}')
def dma(half):
    return [f'buffer_load_dwordx4 v{DA+i}, s[{PS}:{PS+3}], s{SO+4*half+i} offen offset:{1040*i} lds' for i in range(4)]
def eload(dst): return f'buffer_load_dwordx4 v[{dst}:{dst+3}], v{EV}, s[{Ed}:{Ed+3}], 0 offen' + (' nt' if X('ent') else '')
hq = dma(0)
a(f'v_lshlrev_b32 v14, 2, v{LANE}')
a(f's_cmp_lg_u32 s{sFIRST}, 0')
a(f's_cselect_b64 s[{sQM}:{sQM+1}], -1, 0')
def fragl(dst, so, s): return f'buffer_load_dwordx4 v[{dst+4*s}:{dst+4*s+3}], v{vW}, s[{WSd}:{WSd+3}], s{so} offen offset:{1024*s}'
vm = ['c0', 'c1', 'x', 'x']
wq = [('W2', fragl(W2F, 56, s)) for s in range(4)] + [('WU1', fragl(WU1F, 4, s)) for s in range(4)] + [('W3', fragl(W3, 5, s)) for s in range(4)]
sched = ([x.split('=')[1] for x in sys.argv if x.startswith('--sched=')] or ['wwww,ww,ww,wwww,,,,h,h,h,'])[0].split(',')
def slot(i, out=None):
    o = []
    sp = sched[i]
    import re as _re
    for t in _re.findall(r'w|h|p\d+', sp):
        if t == 'w':
            tag, l = wq.pop(0); vm.append(tag); o.append(l)
        elif t == 'h':
            o.append(hq.pop(0)); vm.append('h0')
        else:
            nl = int(t[1:])
            o += [f's_bfm_b64 exec, {nl}, 0'] if nl < 64 else []
            o += [f'buffer_load_dword v{vTCH}, v{vPF}, s[{WSd}:{WSd+3}], s6 offen', 's_mov_b64 exec, -1', f's_addk_i32 s6, {nl*128}']
            vm.append('p')
    if out is not None: out += ['\n'.join(o)] if o else []
    else:
        for l in o: a(l)
def vwait(tag):
    idx = max(i for i, t in enumerate(vm) if t == tag)
    return f's_waitcnt vmcnt({len(vm)-1-idx})'
slot(0)
a('s_waitcnt lgkmcnt(0)')
st(1)
a('s_barrier')
st(0); st(1)
a(f's_or_b32 s58, s{sBML}, s{sPASS}')
a('s_mov_b64 s[68:69], 0')
a('s_cmp_lg_u32 s58, 0')
a('s_cselect_b64 s[0:1], -1, 0')
a('s_cbranch_scc0 L_hdr')
a('s_waitcnt vmcnt(0)')
for k in range(8): a(f'v_cmp_ne_u32 s[{XM+2*k}:{XM+2*k+1}], -1, v{REC+k}')
a('s_branch L_nohdr')
a.label('L_hdr')
a('s_movk_i32 s58, 80')
a('s_movk_i32 s59, 96')
a('s_movk_i32 s7, 112')
a(f's_cmp_eq_u32 s{sFIRST}, 0')
a('s_cbranch_scc0 L_hw')
a('s_waitcnt vmcnt(0)')
a.label('L_hw')
a(vwait('c0'))
st(1); st(2)
a(f'v_sub_u32_dpp v4, v{REC}, v13 quad_perm:[0,0,0,0] row_mask:0xf bank_mask:0xf')
a(f'v_cmp_lt_u32 vcc, 128, v{REC}')
for k in range(8): a(f'v_cmp_lt_i32 s[{XM+2*k}:{XM+2*k+1}], {[0,16,32,48,64,"s58","s59","s7"][k]}, v4')
a('s_mov_b32 s58, 0x11111111')
a('s_mov_b32 s59, 0x11111111')
a('s_and_b64 s[68:69], vcc, s[58:59]')
a(f's_andn2_b64 s[{XM}:{XM+1}], s[{XM}:{XM+1}], s[58:59]')
a.label('L_nohdr')
def dec(k):
    a(f'v_lshlrev_b32 v{PV+k}, 8, v{REC+k}')
    a(f'v_bfe_u32 v{EVv+k}, v{REC+k}, 14, 12')
    a(f'v_and_b32 v{PV+k}, 0x3fff00, v{PV+k}')
    a(f'v_lshl_add_u32 v{EVv+k}, v{EVv+k}, 5, v{CB}')
def hadr(k): a(f'v_and_b32_sdwa v{HA+k}, s39, v{REC+k} dst_sel:DWORD dst_unused:UNUSED_PAD src0_sel:DWORD src1_sel:BYTE_3')
for k in range(4): hadr(k)
slot(1)
for k in range(4):
    a(f's_mov_b64 exec, s[{XM+2*k}:{XM+2*k+1}]')
    a(f'ds_add_rtn_u32 v{RK+k}, v{HA+k}, v11 offset:{L_HIST}')
a(vwait('c1'))
for k in range(4, 8):
    a(f's_or_b64 s[58:59], s[{XM+2*k}:{XM+2*k+1}], s[0:1]')
    a('s_cbranch_scc0 L_h7')
    a(f's_mov_b64 exec, s[{XM+2*k}:{XM+2*k+1}]')
    hadr(k)
    a(f'ds_add_rtn_u32 v{RK+k}, v{HA+k}, v11 offset:{L_HIST}')
    dec(k)
    a.label('L_h%d' % k)
a('s_mov_b64 exec, s[68:69]')
a('s_cbranch_execz L_noovf')
a('v_lshrrev_b32 v4, 2, v0')
a('v_lshrrev_b32 v5, 5, v4')
a('v_lshlrev_b32 v5, 2, v5')
a('v_lshlrev_b32 v4, v4, 1')
a(f'ds_or_b32 v5, v4 offset:{L_MISC}')
a.label('L_noovf')
a('s_mov_b64 exec, -1')
slot(2)
for k in range(4): dec(k)
a(f's_mov_b32 m0, s{sM0A}')
a('s_waitcnt lgkmcnt(0)')
st(1); st(2)
for k in range(4): a(f'v_min_u32 v{4+k}, 256, v{RK+k}')
for k in range(4): a(f'v_mad_u32_u24 v{4+k}, v{HA+k}, s57, v{4+k}')
for k in range(4):
    a(f's_mov_b64 exec, s[{XM+2*k}:{XM+2*k+1}]')
    a(f'ds_write2st64_b32 v{4+k}, v{PV+k}, v{EVv+k} offset0:0 offset1:{L_EO//256}')
for k in range(4, 8):
    a(f's_or_b64 s[58:59], s[{XM+2*k}:{XM+2*k+1}], s[0:1]')
    a('s_cbranch_scc0 L_s7')
    a(f's_mov_b64 exec, s[{XM+2*k}:{XM+2*k+1}]')
    a(f'v_min_u32 v4, 256, v{RK+k}')
    a(f'v_mad_u32_u24 v4, v{HA+k}, s57, v4')
    a(f'ds_write2st64_b32 v4, v{PV+k}, v{EVv+k} offset0:0 offset1:{L_EO//256}')
a.label('L_s7')
a('s_mov_b64 exec, -1')
slot(3)
a(vwait('x'))
a('s_waitcnt lgkmcnt(0)')
st(1); st(2)
a('s_barrier')
st(1); st(2)
a(f'ds_read_b32 v{EV}, v{SE} offset:{L_EO}')
a(f'ds_read_b32 v5, v14 offset:{L_HIST}')
a(f'ds_read_b128 v[{DA}:{DA+3}], v{SP}')
def xfr(s): return [f'ds_read_b128 v[{XF+16*s+4*nu}:{XF+16*s+4*nu+3}], v{vXF+s} offset:{L_XI+4096*nu}' for nu in range(4)]
for s in range(3):
    for l in xfr(s): a(l)
a('s_waitcnt lgkmcnt(%d)' % (0 if FINE in (1, 2) else 14))
a(f'v_add_u32 v{EV}, v{EV}, v{H16}')
a(eload(EC)); vm.append('e')
a('s_waitcnt lgkmcnt(12)')
for i in range(4): a(f'v_add_u32 v{DA+i}, v{DA+i}, v{LC}')
slot(4)
st(2)
a('v_lshrrev_b32 v5, 2, v5')
a('v_cmp_lt_u32 vcc, 64, v5')
a('v_min_u32 v5, 64, v5')
a(f'v_sub_u32 v5, v5, v{vHD} clamp')
a('v_add_u32 v5, 3, v5')
a('v_and_b32 v5, -4, v5')
a('v_mov_b32 v6, v5')
a('s_waitcnt lgkmcnt(10)')
fl = [[l] for l in xfr(3)] + [[], []]
o5 = []; slot(5, o5); fl[4] = o5
pre = ['s_cmp_lg_u64 vcc, 0', f's_cselect_b32 s{sMORE}, 1, 0']
for l in pre: a(l)
for n_, sh in enumerate(('row_shr:1 row_mask:0xf', 'row_shr:2 row_mask:0xf', 'row_shr:4 row_mask:0xf', 'row_shr:8 row_mask:0xf', 'row_bcast:15 row_mask:0xa', 'row_bcast:31 row_mask:0xc')):
    a(f'v_add_u32_dpp v6, v6, v6 {sh} bank_mask:0xf')
    if n_ < 5:
        if n_ < 4: a([f'v_ashrrev_i32 v{MK}, 31, v{EV}', f'v_not_b32 v{MK}, v{MK}', f'v_and_b32 v{TM}, v{TC}, v{MK}', f'v_and_b32 v{TM+1}, v{TC+1}, v{MK}'][n_])
        for l in fl[n_]: a(l)
        if n_ == 4: a.nop(2 if not fl[4] else 1)
a('v_sub_u32 v7, v6, v5')
a(f's_cmp_lg_u32 s{sMORE}, 0')
a(f'v_readlane_b32 s{sT}, v6, 63')
a('s_cbranch_scc0 L_nomore')
for k in range(8):
    a(f'v_cmp_lt_u32 vcc, 255, v{RK+k}')
    a(f's_and_b64 vcc, vcc, s[{XM+2*k}:{XM+2*k+1}]')
    a.nop(1)
    a(f'v_cndmask_b32 v{REC+k}, -1, v{REC+k}, vcc')
a.label('L_nomore')
st(2)
a(f's_add_u32 s{sN}, s{sT}, 255')
a(f's_lshr_b32 s{sN}, s{sN}, 8')
a(f's_max_u32 s{sN}, s{sN}, s3')
a(f'v_cvt_f32_u32 v6, s{sN}')
a(f's_lshl_b32 s58, s{sW}, 2')
a('v_rcp_f32 v6, v6')
a(vwait('W2'))
a('s_waitcnt lgkmcnt(0)')
L = []; m = L.append
slot(6, L)
m('v_cmp_lt_u32 s[68:69], s58, v5')
m('v_mul_f32 v6, 0x47800000, v6')
m('s_add_u32 s59, s58, 4')
m('v_cvt_u32_f32 v6, v6')
m('v_add_u32 v4, s58, v7')
m('v_add_u32 v7, 2, v6')
m('v_cmp_eq_u32 vcc, s59, v5')
m('s_mov_b32 s39, 0x100000')
m(f'v_add_u32 v{SP}, 32, v4')
m('v_cndmask_b32 v6, v9, v8, vcc')
m('v_mad_u32_u24 v11, v4, v7, s39')
m(f'v_mad_u32_u24 v7, v{SP}, v7, s39')
m('s_add_u32 s59, s58, 36')
m('v_cmp_eq_u32 vcc, s59, v5')
m('v_lshrrev_b32 v11, 20, v11')
m('v_lshrrev_b32 v7, 20, v7')
m(f'v_cndmask_b32 v{EV}, v9, v8, vcc')
m('v_lshl_add_u32 v4, v11, 4, v4')
m(f'v_lshl_add_u32 v{SP}, v7, 4, v{SP}')
m('s_cmp_eq_u32 s58, 0\ns_cselect_b32 s59, 0, s67')
m('v_lshl_add_u32 v12, s58, 2, v12')
m('v_mov_b32 v11, s59')
m('s_add_u32 s58, s58, 32')
m('v_cmp_lt_u32 vcc, s58, v5')
m(f'v_add_u32 v{SE}, 128, v12')
m(f'v_mov_b32 v{MK}, s67')
m(f's_lshl_b32 s57, s{sN}, 5\ns_lshl_b32 s7, s{sN}, 4\ns_add_u32 s7, s7, 16')
m(f'v_mad_u32_u24 v13, s7, v{cH1}, v13')
blk = [f'ds_write2st64_b32 v13, v{vHW}, v{vHK} offset0:{L_QW//256} offset1:{L_QK//256}',
       's_mov_b64 exec, s[68:69]',
       f'ds_write2st64_b32 v4, v12, v8 offset0:{L_QS//256} offset1:{L_QT//256}',
       f'ds_write2st64_b32 v4, v6, v11 offset0:{L_QW//256} offset1:{L_QK//256}',
       's_mov_b64 exec, vcc',
       f'ds_write2st64_b32 v{SP}, v{SE}, v8 offset0:{L_QS//256} offset1:{L_QT//256}',
       f'ds_write2st64_b32 v{SP}, v{EV}, v{MK} offset0:{L_QW//256} offset1:{L_QK//256}',
       's_mov_b64 exec, -1']
m('\n'.join(blk))
slot(7, L)
m(f's_mul_i32 s59, s7, s{sW}')
m('s_lshl_b32 s59, s59, 1')
m(f'v_mul_u32_u24 v4, s7, v{HH}')
m(f'v_add_u32 v{vQA}, s59, v4')
m(f'v_add_u32 v{vQ1}, v{vQA}, v{cP1}')
m(f'v_add_u32 v{vQP}, v{vQA}, v{cP2}')
m(f'v_mad_u32_u24 v4, s7, v{cP3}, v{cP4}')
m(f'v_add_u32 v{vQE}, s59, v4')
m(f'v_add_u32 v14, s7, v{vQA}')
qm = []
for s in range(4):
    for nu in range(4):
        c = '0' if s == 0 else f'v[{QACC+4*nu}:{QACC+4*nu+3}]'
        qm.append(f'v_mfma_f32_16x16x32_bf16 v[{QACC+4*nu}:{QACC+4*nu+3}], v[{W2F+4*s}:{W2F+4*s+3}], v[{XF+16*s+4*nu}:{XF+16*s+4*nu+3}], {c}')
QSP = opt('qsp', 2)
for n_, l in enumerate(L):
    if n_ % QSP == 0 and qm: a(qm.pop(0))
    a(l)
for l in qm: a(l)
slot(8)
a('s_mov_b32 s58, 0x00010001')
a(f's_and_b32 s58, s58, s{sQM}')
a('s_mov_b32 s59, s58')
a(f's_mov_b64 exec, s[{sQM}:{sQM+1}]')
a.nop(opt('qnop', 1))
for nu in range(4):
    if nu == 3: a('s_mov_b64 exec, s[58:59]')
    for r in range(4): a(f'v_mul_f32 v{QACC+4*nu+r}, {NEGLOG2E:#x}, v{QACC+4*nu+r}')
    for r in range(2): a(f'v_cvt_pk_bf16_f32 v{QACC+4*nu+r}, v{QACC+4*nu+2*r}, v{QACC+4*nu+2*r+1}')
    a(f'ds_write_b64 v{vQW}, v[{QACC+4*nu}:{QACC+4*nu+1}] offset:{16*NSTR*nu}')
a('s_mov_b64 exec, -1')
slot(9)
a('s_waitcnt lgkmcnt(0)')
st(0); st(2)
a('s_barrier')
st(2); st(4)
a(f'ds_read_b32 v6, v{vQE} offset:{L_QS+16}')
a(f'ds_read_b32 v7, v{vQP} offset:{L_QS+16}')
a(f'ds_read_b32 v{SE}, v{vQE} offset:{L_QS+32}')
a(f'ds_read_b32 v{SP}, v{vQP} offset:{L_QS+32}')
a(f'ds_read_b32 v12, v14 offset:{L_QT-4}')
a(f'ds_read_b32 v13, v14 offset:{L_QW-4}')
a('v_mov_b32 v5, 0')
a(f'ds_write_b32 v{vQA}, v5 offset:{L_QK+16}')
for l in hq: a(l); vm.append('h0')
if X('fair0'): a('s_barrier')
st(2); st(4)
slot(10)
assert not wq
a(f's_mov_b32 m0, s{sM0B}')
a('s_waitcnt lgkmcnt(0)')
a(f'v_add_u32 v6, v6, v{I4}')
a(f'ds_read_b32 v{EOr}, v6 offset:{L_EO}')
a(f'ds_read_b128 v[{PTr}:{PTr+3}], v7')
for l in dma(1): a(l)
vm += ['h1']*4
st(4)
rm = []
for s in range(4):
    for nu in range(4):
        c = '0' if s == 0 else f'v[{R+4*nu}:{R+4*nu+3}]'
        rm.append(f'v_mfma_f32_16x16x32_bf16 v[{R+4*nu}:{R+4*nu+3}], v[{WU1F+4*s}:{WU1F+4*s+3}], v[{XF+16*s+4*nu}:{XF+16*s+4*nu+3}], {c}')
a('v_cmp_eq_u32 vcc, 0, v13')
a(f's_lshl_b32 s58, s{sW}, 10')
a(f's_add_u32 s58, s58, {L_CARRY-L_ZERO}')
a(f'v_lshl_add_u32 v4, v{HH}, 9, s58')
a('s_mov_b64 exec, vcc')
a(f'ds_write_b32 v12, v4 offset:{L_NODE+768}')
a('s_mov_b64 exec, -1')
a(f's_mul_i32 s58, s57, s{sW}')
a(f's_sub_i32 s58, s{sT}, s58')
a('s_max_i32 s58, s58, 0')
a('s_add_u32 s58, s58, 15')
a('s_lshr_b32 s58, s58, 4')
a(f's_min_u32 s{sN}, s{sN}, s58')
a(f's_add_u32 s{sN}, s{sN}, 1')
a(f's_mov_b32 s{sPASS}, 1')
a(f's_mov_b32 s{sTC}, 2')
a('s_waitcnt lgkmcnt(0)')
if not X('nofair'): a('s_barrier')
a(f'v_add_u32 v{EV}, v{EOr}, v{H16}')
a(f's_cmp_gt_u32 s{sN}, 1')
a(f's_cselect_b32 s{PS+2}, s{PS+2}, 0')
a(f's_cselect_b32 s{Ed+2}, s{Ed+2}, 0')
for i in range(4): a(f'v_add_u32 v{DA+i}, v{PTr+i}, v{LC}')
a(f's_mov_b32 m0, s{sM0A}')
for i in range(4):
    a(f'v_mov_b32 v{AA+i}, 0')
    a(f'v_mov_b32 v{KK+i}, 0')
    a(f'v_mov_b32 v{MB+12+i}, 0')
a(f'v_ashrrev_i32 v{MK}, 31, v{EV}')
a(f'v_not_b32 v{MK}, v{MK}')
if BENCH: a(f's_mov_b32 s{sN}, {opt("bn", 50)}')
def qbread(buf, beta):
    return [f'ds_read_b64_tr_b16 v[{QB[buf]}:{QB[buf]+1}], v{TA} offset:{64*beta}']
def paread(half):
    return [f'ds_read_b128 v[{PA[half]+4*x}:{PA[half]+4*x+3}], v{RA+(x>>1)} offset:{HB*half+32*(x&1)}' for x in range(4)]
def mfmas(beta):
    z = ZB[beta & 1]; zz = f'v[{z}:{z+15}]'
    q = QB[beta & 1]; p = PA[beta >> 1] + 8*(beta & 1)
    return [f'v_mfma_f32_32x32x8_bf16 {zz}, v[{TM}:{TM+1}], v[{q}:{q+1}], 0',
            f'v_mfma_f32_32x32x16_bf16 {zz}, v[{EC}:{EC+3}], v[{W3+4*beta}:{W3+4*beta+3}], {zz}',
            f'v_mfma_f32_32x32x16_bf16 {zz}, v[{p}:{p+3}], v[{I0}:{I0+3}], {zz}',
            f'v_mfma_f32_32x32x16_bf16 {zz}, v[{p+4}:{p+7}], v[{I1}:{I1+3}], {zz}']
for l in qbread(0, 0) + qbread(1, 1): a(l)
a(f's_bitcmp1_b32 s{sW}, {opt("wbit", 2)}')
a('s_cbranch_scc%d L_prime_B' % opt('wsel', 1))
def prime2(tag):
    a(f's_cmp_eq_u32 s{sFIRST}, 0')
    a(vwait('WU1'))
    a(f's_cbranch_scc1 L_noq{tag}')
    for l in rm: a(l)
    a(f's_mov_b32 s{sFIRST}, 0')
    a.label(f'L_noq{tag}')
    ns = nstamp[0]
    st(4)
    a('s_waitcnt vmcnt(4)')
    st(0); st(2); st(4)
    if STAMP and FINE == 0: a('s_memrealtime s[88:89]')
    for l in paread(0): a(l)
    for i in range(4):
        a(f'v_mov_b32 v{NF+i}, 0')
        a(f'v_mov_b32 v{D+i}, 1.0')
    mf0 = mfmas(0)
    a('s_waitcnt lgkmcnt(0)' if STAMP else 's_waitcnt lgkmcnt(4)')
    a(mf0[0])
    a(mf0[1])
    a('s_waitcnt lgkmcnt(0)')
    a(mf0[2])
    a(mf0[3])
    a(eload(EN))
    for l in dma(0): a(l)
    a.nop(5)
    st(4)
    if tag == 'A': nstamp[0] = ns
    a(f's_cmp_lg_u32 s{sSLOW}, 0')
    a('s_cbranch_scc1 L_pre_s')

def dswr(safe):
    if not safe: return [f'ds_write_b128 v{AA+q}, v[{MB+4*q}:{MB+4*q+3}]' for q in range(4)]
    o = []
    for q in range(4):
        o += [f'ds_add_f32 v{AA+q}, v{MB+4*q+b} offset:{4*b}' for b in range(4)] + ['s_waitcnt lgkmcnt(0)']
    return o
def mchain(beta):
    m = [MB+4*q+beta for q in range(4)]
    o = []
    for q in range(4):
        o += [f'v_and_b32 v{m[q]}, v{m[(q-1)&3]}, v{KK+q}', f'v_fmac_f32 v{m[q]}, v{NF+q}, v{RCq(q)}']
    return o
def loop(safe, mode):
    sfx = '_s' if safe else '_' + mode
    if safe:
        a.label('L_pre_s')
        for i in range(12): a(f'v_mov_b32 v{MB+i}, 0')
    bz = 0 if BENCH else 16
    TPs = []; PPs = []
    for beta in range(4):
        body = []; e = body.append
        z = ZB[beta & 1]
        tr = [f'v_rcp_f32 v{RCq(q)}, v{D+q}' for q in range(4)] + [f'v_exp_f32 v{Uq(r>>2,r&3)}, v{z+r}' for r in range(16)]
        mf = mfmas((beta+1) & 3)
        if X('nomf2'): mf = mf[:2] + ['s_nop 0', 's_nop 0']
        if X('nomf3'): mf = mf[:1] + ['s_nop 0']*3
        if X('noexp'): tr = [t.replace('v_exp_f32', 'v_lshlrev_b32').replace(', v', ', 0, v') if 'exp' in t else t for t in tr]
        qb = qbread(beta & 1, (beta+2) & 3)
        early = []; late = []; trx = []
        if beta == 0:
            fill = qb + [f'ds_read_b128 v[{PTr}:{PTr+3}], v{SP}', f'ds_read_b32 v{TAr}, v{vQ1} offset:{L_QT+16}', 's_waitcnt vmcnt(5)'] + paread(1)
            ext = [f'v_add_u32 v{AA+q}, v{AA+q}, v{CA}' for q in range(4)] + [f'v_add_u32 v{SE}, v{SE}, v{I4}']
        if beta == 1:
            early = [f's_mov_b32 m0, s{sM0B}', f'ds_read_b128 v[{KK}:{KK+3}], v{vQA} offset:{L_QK}']
            fill = dma(1) + qb + [f'ds_read_b32 v{EOr}, v{SE} offset:{L_EO}'] + dswr(safe)
            late = ['s_waitcnt lgkmcnt(6)']
            ext = [f'v_add_u32 v{DA+i}, v{PTr+i}, v{LC}' for i in range(4)] + [f'v_add_u32 v{TA}, v{TAr}, v{CT}']
        if beta == 2:
            fill = qb + [f's_cmp_lt_u32 s{sTC}, s{sN}', f's_cselect_b32 s{PS+2}, s{PS+2}, 0', f's_cselect_b32 s{Ed+2}, s{Ed+2}, 0', f's_add_u32 s{sTC}, s{sTC}, 1',
                         's_waitcnt vmcnt(4)'] + paread(0)
            ext = [f'v_and_b32 v{TM+i}, v{TC+i}, v{MK}' for i in range(2)] + [f'v_mov_b32 v{EC+i}, v{EN+i}' for i in range(4)] + [f'v_add_u32 v{EV}, v{EOr}, v{H16}']
        if beta == 3:
            fill = [f's_mov_b32 m0, s{sM0A}'] + qb + [eload(EN)] + dma(0) + [f'ds_read_b128 v[{AA}:{AA+3}], v{vQA} offset:{L_QW}',
                    f'ds_read_b32 v{SP}, v{vQP} offset:{L_QS+48}', f'ds_read_b32 v{SE}, v{vQE} offset:{L_QS+48}',
                    f's_sub_u32 s58, s{sTC}, 2', f's_cmp_lt_u32 s58, s{sN}']
            tr = tr + [f'v_ashrrev_i32 v{MK}, 31, v{EV}']
            ext = [f'v_not_b32 v{MK}, v{MK}'] + [f'v_add_u32 v{p}, {bz}, v{p}' for p in (vQA, vQ1, vQP, vQE)]
        if X('it'):
            fill = fill + ['s_memtime s[100:101]']
            early = early + [f's_mov_b32 s91, m0', f's_mov_b32 m0, s90', 'v_writelane_b32 v250, s100, m0', 's_mov_b32 m0, s91', 's_add_u32 s90, s90, 1'] if beta != 0 else [f's_mov_b32 s91, m0', f's_mov_b32 m0, s90', 'v_writelane_b32 v250, s100, m0', 's_mov_b32 m0, s91', 's_add_u32 s90, s90, 1']
        if X('nodsw'): fill = [l for l in fill if not l.startswith('ds_write')]
        if X('nords'): fill = [l for l in fill if not l.startswith('ds_read')]
        if X('nodma'): fill = [l for l in fill if not l.startswith('buffer_')]
        MSP = opt('msp', 4)
        FAT = opt('fatA', 0) if mode == 'A' else len(tr) - opt('fatB', 0)
        if X('noext'): ext = []
        e('s_setprio %d' % (opt('pA', 1) if mode == 'A' else opt('pB', 2)))
        e('s_waitcnt lgkmcnt(0)')
        for l in early: e(l)
        if FAT == 0:
            for l in fill: e(l)
        mi = 0
        for idx, t in enumerate(tr):
            e(t)
            if idx % MSP == 0 and mi < 4: e(mf[mi]); mi += 1
            if idx == FAT - 1:
                for l in fill: e(l)
        for l in late: e(l)
        TPs.append(body); body = []; e = body.append
        e('s_setprio %d' % (opt('qA', 3) if mode == 'A' else opt('qB', 0)))
        mc = mchain((beta-1) & 3)
        if not safe:
            pl = [f'v_add_f32 v{D+q}, 1.0, v{Uq(q,0)}' for q in range(4)]
            for stp in range(1, 4):
                for q in range(4):
                    dst = NF+q if stp == 3 else z+4*q+stp
                    pl.append(f'v_fma_f32 v{dst}, v{z+4*q+stp}, v{D+q}, v{z+4*q+stp-1}')
                for q in range(4):
                    dst = NF+q if stp == 3 else z+4*q+stp
                    pl.append(f'v_fmac_f32 v{dst}, v{z+4*q+stp-1}, v{Uq(q,stp)}')
                for q in range(4): pl.append(f'v_fmac_f32 v{D+q}, v{D+q}, v{Uq(q,stp)}')
            gd = [f'v_fmac_f32 v{G}, v{D}, v{D+1}', f'v_fmac_f32 v{G+1}, v{D+2}, v{D+3}']
            if X('nopp'): pl = pl[:24:6]*6
            ci = 0
            for idx, l in enumerate(pl):
                if idx % 3 == 0 and ci < 8: e(mc[ci]); ci += 1
                e(l)
            for l in ext + gd: e(l)
            if mode == 'A' and opt('qt', 0): body.insert(len(body) - opt('qt', 0), 's_setprio 3')
        else:
            for l in mc: e(l)
            for r in range(16): e(f'v_add_f32 v{U+r}, 1.0, v{U+r}')
            for r in range(16): e(f'v_rcp_f32 v{U+r}, v{U+r}')
            for q in range(4): e(f'v_mul_f32 v{NF+q}, v{z+4*q}, v{Uq(q,0)}')
            for stp in range(1, 4):
                for q in range(4): e(f'v_fmac_f32 v{NF+q}, v{z+4*q+stp}, v{Uq(q,stp)}')
            for l in ext: e(l)
        PPs.append(body)
    if mode == 'A':
        if not safe: a('.p2align 6')
        a.label('L_loop' + sfx)
        for b in range(4):
            for l in TPs[b] + PPs[b]: a(l)
        a(f's_cbranch_scc1 L_loop{sfx}')
    else:
        a('.p2align 6')
        a.label('L_loop' + sfx)
        for l in PPs[3]: a(l)
        a.label('L_mid' + sfx)
        for b in range(4):
            for l in TPs[b] + (PPs[b] if b < 3 else []): a(l)
        a(f's_cbranch_scc1 L_loop{sfx}')
        for l in PPs[3]: a(l)
    if mode == 'B':
        a.label('L_drain'); a('s_setprio 0')
    if mode == 'A' and not safe:
        a('s_branch L_drain'); return
    for q in range(4): a(f'v_rcp_f32 v{RCq(q)}, v{D+q}')
    a('s_waitcnt lgkmcnt(0)')
    for q in range(4): a(f'v_add_u32 v{AA+q}, v{AA+q}, v{CA}')
    for l in mchain(3): a(l)
    for l in dswr(safe): a(l)
    if not safe:
        a(f's_lshl_b32 s58, s{sW}, 10')
        a(f'v_lshl_add_u32 v4, v{LANE}, 4, s58')
        a(f'ds_write_b128 v4, v[{MB+12}:{MB+15}] offset:{L_CARRY}')
prime2('A')
loop(False, 'A')
loop(True, 'A')
a('s_branch L_done')
a.label('L_prime_B')
prime2('B')
a('s_branch L_mid_B')
loop(False, 'B')
a.label('L_done')
st(0); st(3)
if STAMP and FINE == 0: a('s_memrealtime s[90:91]')
a('s_add_u32 s56, s56, 0x10000')
for s in range(4): a(fragl(WU2, 56, s))
a('v_lshrrev_b32 v4, 4, v0')
a(f'v_mul_u32_u24 v5, {NSTR}, v4')
a(f'v_add_u32 v11, {L_NODE+NSTR}, v5')
a('v_mov_b32 v12, 0')
a(f'ds_read_b128 v[{PTr}:{PTr+3}], v12 offset:{L_MISC}')
a('v_and_b32 v6, 15, v0')
a('v_lshl_add_u32 v5, v6, 5, v11')
a('v_and_b32 v7, 15, v4')
a('v_xor_b32 v7, v7, v6')
a('v_lshlrev_b32 v7, 4, v7')
a('v_lshl_add_u32 v7, v4, 8, v7')
a(f'v_add_u32 v7, {L_STG}, v7')
a('s_waitcnt vmcnt(4) lgkmcnt(0)')
a(f's_cmp_eq_u32 s{sBML}, 0')
a('s_cbranch_scc0 L_np2')
a(f's_mov_b32 s{sBML}, 1')
for i in range(4): a(f'v_readfirstlane_b32 s{BM+i}, v{PTr+i}')
a.label('L_np2')
a(f's_or_b64 s[58:59], s[{BM}:{BM+1}], s[{BM+2}:{BM+3}]')
a(f's_cselect_b32 s58, 1, s{sMORE}')
a('s_cmp_lg_u32 s58, 0')
st(3)
a('s_barrier')
st(0); st(3)
a('s_cbranch_scc1 L_again')
AG = 16
a(f'ds_read_b32 v{CIr}, v11 offset:768')
a(f'ds_read_b32 v{CIr+1}, v11 offset:{768+32*NSTR}')
a('v_cmp_gt_u32 vcc, 272, v0')
for u in range(2): a(f'ds_read_b128 v[{AG+4*u}:{AG+4*u+3}], v5 offset:{16*u}')
a('s_waitcnt lgkmcnt(%d)' % (0 if STAMP else 2))
a(f'v_lshl_add_u32 v8, v6, 5, v{CIr}')
a(f'v_lshl_add_u32 v9, v6, 5, v{CIr+1}')
for u in range(2): a(f'ds_read_b128 v[{AG+8+4*u}:{AG+8+4*u+3}], v8 offset:{L_ZERO+16*u}')
a('s_mov_b64 exec, vcc')
for u in range(2): a(f'ds_read_b128 v[{AG+16+4*u}:{AG+16+4*u+3}], v5 offset:{32*NSTR+16*u}')
for u in range(2): a(f'ds_read_b128 v[{AG+24+4*u}:{AG+24+4*u+3}], v9 offset:{L_ZERO+16*u}')
a('s_mov_b64 exec, -1')
a(f'v_and_b32 v4, 15, v{LANE}')
a(f'v_lshrrev_b32 v6, 4, v{LANE}')
a('v_xor_b32 v5, v6, v4')
a('v_lshlrev_b32 v5, 4, v5')
a('v_lshl_add_u32 v5, v4, 8, v5')
a(f'v_add_u32 v5, {L_STG}, v5')
a(f's_lshl_b32 s58, s{sSAFE}, 3')
a(f's_add_u32 s58, s58, s{sW}')
a('s_cmp_lt_u32 s58, 4')
a('s_cbranch_scc0 L_nohead')
a('v_lshlrev_b32 v8, 5, v0')
for u in range(2): a(f'ds_read_b128 v[{AG+32+4*u}:{AG+32+4*u+3}], v8 offset:{L_HEAD+16*u}')
a('s_waitcnt lgkmcnt(0)')
for r in range(8): a(f'v_add_f32 v{AG+r}, v{AG+r}, v{AG+32+r}')
a.label('L_nohead')
a('s_waitcnt lgkmcnt(4)')
for r in range(8): a(f'v_add_f32 v{AG+r}, v{AG+r}, v{AG+8+r}')
for r in range(4): a(f'v_cvt_pk_bf16_f32 v{AG+8+r}, v{AG+2*r}, v{AG+2*r+1}')
a(f'ds_write_b128 v7, v[{AG+8}:{AG+11}]')
a('s_mov_b64 exec, vcc')
a('s_cbranch_execz L_cv2')
a('s_waitcnt lgkmcnt(1)')
for r in range(8): a(f'v_add_f32 v{AG+16+r}, v{AG+16+r}, v{AG+24+r}')
for r in range(4): a(f'v_cvt_pk_bf16_f32 v{AG+24+r}, v{AG+16+2*r}, v{AG+16+2*r+1}')
a(f'ds_write_b128 v7, v[{AG+24}:{AG+27}] offset:8192')
a.label('L_cv2')
a('s_mov_b64 exec, -1')
for s in range(1, 4): a(f'v_xor_b32 v{11+s}, {64*s}, v5')
a('s_waitcnt lgkmcnt(0)')
st(3)
a('s_barrier')
st(3)
EACC = 96
for s in range(4):
    for nu in range(4):
        if s == 3 and nu == 3: a('s_waitcnt lgkmcnt(14)')
        a(f'ds_read_b128 v[{XF+16*s+4*nu}:{XF+16*s+4*nu+3}], v{11+s if s else 5} offset:{4096*nu}')
a('v_lshlrev_b32 v7, 16, v4')
a('v_lshl_add_u32 v7, v6, 3, v7')
a(f's_lshl_b32 s58, s{sW}, 5')
a(f's_add_u32 s58, s58, s{sNODE0}')
a(f'v_add_f32 v8, v{G}, v{G+1}')
a('v_mov_b32 v9, 0x71800000')
a('v_cmp_nlt_f32 s[68:69], v8, v9')
a('v_cmp_eq_u32 s[56:57], 0, v4')
a('s_waitcnt vmcnt(0)')
for s in range(4):
    for nu in range(4):
        a(f's_waitcnt lgkmcnt({15-4*s-nu})')
        c = '0' if s == 0 else f'v[{EACC+4*nu}:{EACC+4*nu+3}]'
        a(f'v_mfma_f32_16x16x32_bf16 v[{EACC+4*nu}:{EACC+4*nu+3}], v[{WU2+4*s}:{WU2+4*s+3}], v[{XF+16*s+4*nu}:{XF+16*s+4*nu+3}], {c}')
a('v_mov_b32 v9, 0x207')
a.nop(4)
st(3)
Y = 16
for r in range(16): a(f'v_fmamk_f32 v{Y+r}, v{EACC+r}, {NEGLN2:#x}, v{R+r}')
for r in range(16): a(f'v_mul_f32 v{Y+16+r}, {NEGLOG2E:#x}, v{Y+r}')
for r in range(16): a(f'v_exp_f32 v{Y+16+r}, v{Y+16+r}')
for r in range(16): a(f'v_add_f32 v{Y+16+r}, 1.0, v{Y+16+r}')
for r in range(16): a(f'v_rcp_f32 v{Y+16+r}, v{Y+16+r}')
for r in range(16): a(f'v_mul_f32 v{Y+r}, v{Y+r}, v{Y+16+r}')
for r in range(8): a(f'v_cvt_pk_bf16_f32 v{Y+32+r}, v{Y+2*r}, v{Y+2*r+1}')
for nu in range(4):
    if nu == 3: a('s_mov_b64 exec, s[56:57]')
    a(f'buffer_store_dwordx2 v[{Y+32+2*nu}:{Y+33+2*nu}], v7, s[{Od}:{Od+3}], s58 offen')
    if nu < 3: a('s_add_u32 s58, s58, 0x100000')
    a(f'v_cmp_class_f32 vcc, v{EACC+4*nu}, v9')
    a('s_or_b64 s[68:69], s[68:69], vcc')
a('s_mov_b64 exec, -1')
st(0); st(3)
if STAMP:
    a('s_waitcnt vmcnt(0) lgkmcnt(0)')
    stamp()
    a('s_waitcnt lgkmcnt(0)')
    a(f's_lshl_b32 s58, s2, 3')
    a(f's_add_u32 s58, s58, s{sW}')
    a('s_lshl_b32 s58, s58, 7')
    a(f's_add_u32 s58, s58, {WS_STAMP:#x}')
    a('v_mov_b32 v4, 0')
    a('s_mov_b64 exec, 1')
    for i in range(nstamp[0]):
        a(f'v_mov_b32 v6, s{70+2*i}')
        a(f'buffer_store_dword v6, v4, s[{WSd}:{WSd+3}], s58 offen offset:{4*i}')
    if FINE == 0:
        a('s_sub_u32 s90, s90, s88'); a('v_mov_b32 v6, s90'); a(f'buffer_store_dword v6, v4, s[{WSd}:{WSd+3}], s58 offen offset:{4*31}')
    a('s_mov_b64 exec, -1')
    if X('it'):
        a('s_mov_b64 exec, 0x7fffffff'); a(f'v_lshlrev_b32 v4, 2, v{LANE}'); a(f'buffer_store_dword v250, v4, s[{WSd}:{WSd+3}], s58 offen offset:4'); a('s_mov_b64 exec, -1')
    print('nstamps', nstamp[0])
if BENCH: a('s_endpgm')
a(f's_cmp_lg_u32 s{sSAFE}, 0')
a('s_cbranch_scc1 L_main_end')
a('v_mov_b32 v4, 0')
a('s_cmp_eq_u64 s[68:69], 0')
a('s_cbranch_scc1 L_good')
a('v_mov_b32 v6, 1')
a(f'ds_write_b32 v4, v6 offset:{L_MISC+16}')
a('s_waitcnt lgkmcnt(0)')
a.label('L_good')
a('s_barrier')
a(f'ds_read_b32 v6, v4 offset:{L_MISC+16}')
a('s_waitcnt lgkmcnt(0)')
a('v_readfirstlane_b32 s58, v6')
a('s_cmp_eq_u32 s58, 0')
a('s_cbranch_scc1 L_main_end')
a(f's_mov_b32 s{sSAFE}, 1')
a('s_waitcnt vmcnt(0)')
a('s_barrier')
celladdr()
a('s_branch L_cells')
a.label('L_again')
a(f's_cmp_lg_u32 s{sMORE}, 0')
a('s_cbranch_scc1 L_reinit')
a(f's_ff1_i32_b64 s58, s[{BM}:{BM+1}]')
a('s_cmp_eq_i32 s58, -1')
a('s_cbranch_scc1 L_pophi')
a(f's_bitset0_b64 s[{BM}:{BM+1}], s58')
a('s_branch L_popped')
a.label('L_pophi')
a(f's_ff1_i32_b64 s58, s[{BM+2}:{BM+3}]')
a(f's_bitset0_b64 s[{BM+2}:{BM+3}], s58')
a('s_add_u32 s58, s58, 64')
a.label('L_popped')
a(f's_mul_i32 s59, s58, {CH*32}')
a(f'v_mov_b32 v{CB}, s59')
a(f's_mul_i32 s59, s58, {CH*4}')
a('s_lshl_b32 s58, s58, 2')
a(f's_add_u32 s58, s58, {WS_OVFLEN:#x}')
a('v_mov_b32 v4, 0')
a('v_lshlrev_b32 v5, 5, v0')
a(f'buffer_load_dword v6, v4, s[{WSd}:{WSd+3}], s58 offen')
a(f's_add_u32 s58, s59, {WS_OVFREC:#x}')
a(f'buffer_load_dwordx4 v[{REC}:{REC+3}], v5, s[{WSd}:{WSd+3}], s58 offen')
a(f'buffer_load_dwordx4 v[{REC+4}:{REC+7}], v5, s[{WSd}:{WSd+3}], s58 offen offset:16')
a(f's_add_u32 s58, s59, {WS_OVFBKT:#x}')
a(f'buffer_load_dwordx4 v[{U}:{U+3}], v5, s[{WSd}:{WSd+3}], s58 offen')
a(f'buffer_load_dwordx4 v[{U+4}:{U+7}], v5, s[{WSd}:{WSd+3}], s58 offen offset:16')
a(f's_mul_i32 s57, s2, {CS}')
a('s_waitcnt vmcnt(0)')
for k in range(8):
    a(f'v_add_u32 v8, {4*k}, v5')
    a('v_cmp_lt_u32 vcc, v8, v6')
    a(f'v_cmp_eq_u32 s[58:59], s57, v{U+k}')
    a('s_and_b64 vcc, vcc, s[58:59]')
    a.nop(1)
    a(f'v_cndmask_b32 v{REC+k}, -1, v{REC+k}, vcc')
a('s_branch L_reinit')
a.label('L_main_end')
a('s_endpgm')
print('vgprs', NVG, 'lds', LDS_MAIN)

hdr = open('gather_scatter__mpnn_edge_mlp__graph.s.ref').read().split('; Override')[0]
hdr += f'; @launch kernel=pre_kernel grid=({PRE_WGS},1,1) block=(512,1,1) lds={LDS_PRE}\n'
hdr += f'; @launch kernel=main_kernel grid=(256,1,1) block=(512,1,1) lds={LDS_MAIN}\n'
hdr += '.amdgcn_target "amdgcn-amd-amdhsa--gfx950"\n.text\n'
def kd(name, vg):
    return f'''.amdhsa_kernel {name}
  .amdhsa_next_free_vgpr {vg}
  .amdhsa_next_free_sgpr 102
  .amdhsa_accum_offset {vg}
  .amdhsa_group_segment_fixed_size 0
  .amdhsa_kernarg_size 72
  .amdhsa_user_sgpr_count 2
  .amdhsa_user_sgpr_kernarg_segment_ptr 1
  .amdhsa_system_sgpr_workgroup_id_x 1
  .amdhsa_float_denorm_mode_32 3
.end_amdhsa_kernel
'''
tail = '.section .rodata,"a"\n.p2align 6\n' + kd('pre_kernel', 160) + '.p2align 6\n' + kd('main_kernel', 256)
open(OUTF, 'w').write(hdr + a.text() + tail)
for e in check(a.lines): print(e)
print('lines', len(a.lines))
```

```python
import sys, struct
from asmlib import *

STAMP = '--stamp' in sys.argv
OUTF = [a for a in sys.argv[1:] if not a.startswith('--')][0]

N, E = 12500, 400000
NPB = 49
NCH, CH = 125, 3200
WS_P = 4096
WS_CELLS = 0x400000
WS_FRAG = 0x800000
WS_OVFLEN = 0x900000
WS_OVFREC = 0x910000
WS_OVFBKT = 0xB00000
WS_STAMP = 0xD00000
WS_SIZE = 0x1000000
NEGLOG2E = struct.unpack('<I', struct.pack('<f', -1.4426950408889634))[0]
NEGLN2 = struct.unpack('<I', struct.pack('<f', -0.6931471805599453))[0]
PADV = 0x80000000
GR = int(([x.split('=')[1] for x in sys.argv if x.startswith('--gr=')] or [100])[0])
NGEMM = -(-N // GR)
PRE_WGS = NCH + NGEMM + 4

X = lambda f: ('--x-'+f) in sys.argv
opt = lambda n, d: int(([x.split('=')[1] for x in sys.argv if x.startswith('--'+n+'=')] or [d])[0])
LDS_PRE = 98304
a = Asm()
def srd(d, base, size):
    a(f's_mov_b32 s{d}, s{base}')
    a(f's_and_b32 s{d+1}, s{base+1}, 0xffff')
    a(f's_mov_b32 s{d+2}, {size:#x}')
    a(f's_mov_b32 s{d+3}, 0x20000')

PST = '--pstamp' in sys.argv
def ps(i):
    if PST: a(f's_memtime s[{70+2*i}:{71+2*i}]')
def pend():
    if PST:
        ps(4)
        a('s_waitcnt vmcnt(0) lgkmcnt(0)')
        ps(5)
        a('s_memrealtime s[84:85]')
        a('s_waitcnt lgkmcnt(0)')
        a('s_lshl_b32 s58, s2, 3')
        a('s_add_u32 s58, s58, s3')
        a('s_lshl_b32 s58, s58, 6')
        a(f's_add_u32 s58, s58, {0xD80000:#x}')
        a('v_mov_b32 v4, 0')
        a('s_mov_b64 exec, 1')
        for i in range(8):
            a(f'v_mov_b32 v6, s{70+2*i}')
            a(f'buffer_store_dword v6, v4, s[36:39], s58 offen offset:{4*i}')
        a('s_mov_b64 exec, -1')
a('.globl pre_kernel\n.p2align 8\n.type pre_kernel,@function')
a.label('pre_kernel')
a(f's_cmp_ge_u32 s2, {PRE_WGS}')
a('s_cbranch_scc1 L_pre_end')
ps(0)
if PST: a('s_memrealtime s[82:83]')
a('s_load_dwordx4 s[4:7], s[0:1], 0')
a('s_load_dwordx4 s[8:11], s[0:1], 16')
a('s_load_dwordx4 s[12:15], s[0:1], 32')
a('s_load_dwordx2 s[16:17], s[0:1], 64')
a('v_lshlrev_b32 v1, 4, v0')
a('v_lshrrev_b32 v2, 6, v0')
a('v_and_b32 v3, 63, v0')
a('v_readfirstlane_b32 s3, v2')
a('s_waitcnt lgkmcnt(0)')
ps(1)
XS, SRC, DST, W, WS = 20, 24, 28, 32, 36
srd(XS, 4, N*256); srd(SRC, 8, E*4); srd(DST, 10, E*4); srd(WS, 16, WS_SIZE)
a(f's_sub_u32 s40, s2, {NCH+NGEMM+1}')
a('s_cmp_lt_u32 s40, 2')
a(f's_cselect_b32 s{W}, s14, s12')
a(f's_cselect_b32 s{W+1}, s15, s13')
a(f's_cselect_b32 s{W+2}, 0x10000, {272*256:#x}') if False else None
a(f's_mov_b32 s41, {272*256:#x}')
a(f's_cselect_b32 s{W+2}, 0x10000, s41')
a(f's_and_b32 s{W+1}, s{W+1}, 0xffff')
a(f's_mov_b32 s{W+3}, 0x20000')
a(f's_cmp_ge_u32 s2, {NCH}')
a('s_cbranch_scc1 L_pre_gemm')
CS = 132
L_OVC = 256*CS
D0, S0, B4, RK, TK = 8, 16, 24, 32, 48
SC1 = '' if X('nosc1') else ' sc1'
a(f's_mul_i32 s40, s2, {CH*4}')
a('s_add_u32 s41, s40, 8192')
a(f'buffer_load_dwordx4 v[8:11], v1, s[{DST}:{DST+3}], s40 offen')
a('v_mul_u32_u24 v4, 12, v0')
a('s_cmp_ge_u32 s3, 6')
a('s_cbranch_scc1 L_p_no2')
a(f'buffer_load_dwordx3 v[12:14], v4, s[{DST}:{DST+3}], s41 offen')
a(f'buffer_load_dwordx3 v[20:22], v4, s[{SRC}:{SRC+3}], s41 offen')
a.label('L_p_no2')
a(f'buffer_load_dwordx4 v[16:19], v1, s[{SRC}:{SRC+3}], s40 offen')
a('v_min_u32 v40, 256, v0')
a('v_cmp_gt_u32 vcc, 256, v0')
a(f'v_mul_u32_u24 v40, {CS}, v40')
a('v_mov_b32 v42, 4')
a('v_mov_b32 v41, 0')
a('v_cndmask_b32 v43, v41, v42, vcc')
a('ds_write_b32 v40, v43')
for k in range(4, 7): a(f'v_mov_b32 v{RK+k}, 0')
a(f'v_lshlrev_b32 v{TK}, 16, v0')
a(f'v_add_u32 v{TK}, 0x4000000, v{TK}')
for k in range(1, 4): a(f'v_add_u32 v{TK+k}, {k<<14:#x}, v{TK}')
a(f'v_mul_u32_u24 v{TK+4}, {3<<14:#x}, v0')
a(f'v_add_u32 v{TK+4}, {0x4000000+(2048<<14):#x}, v{TK+4}')
for k in range(5, 7): a(f'v_add_u32 v{TK+k}, {(k-4)<<14:#x}, v{TK+4}')
a(f's_mov_b32 s46, {CS}')
a('v_lshrrev_b32 v44, 3, v0')
a('v_and_b32 v46, 7, v0')
a(f'v_mul_u32_u24 v45, {CS}, v44')
a('v_lshlrev_b32 v47, 14, v44')
a('v_lshl_add_u32 v47, v46, 4, v47')
a('v_and_b32 v60, 4, v0')
a('v_lshlrev_b32 v60, 4, v60')
a('v_and_b32 v46, 3, v0')
a('v_lshl_add_u32 v56, v46, 2, v45')
a('v_add_u32 v56, v56, v60')
for k in range(1, 4): a(f'v_add_u32 v{56+k}, {64*CS*k}, v56')
a(f's_lshl_b32 s47, s2, 7')
a(f's_add_u32 s47, s47, {WS_CELLS:#x}')
a('s_waitcnt lgkmcnt(0)')
a('s_barrier')
def part1(k):
    a(f'v_mul_u32_u24_sdwa v{B4+k}, s46, v{D0+k} dst_sel:DWORD dst_unused:UNUSED_PAD src0_sel:DWORD src1_sel:BYTE_0')
    a(f'v_lshlrev_b32_sdwa v{D0+k}, 26, v{D0+k} dst_sel:DWORD dst_unused:UNUSED_PAD src0_sel:DWORD src1_sel:BYTE_1')
    a(f'ds_add_rtn_u32 v{RK+k}, v{B4+k}, v42')
def part2(k):
    a(f'v_add3_u32 v{S0+k}, v{S0+k}, v{D0+k}, v{TK+k}')
def part3(k):
    a(f'v_min_u32 v44, 128, v{RK+k}')
    a(f'v_add_u32 v44, v44, v{B4+k}')
    a(f'ds_write_b32 v44, v{S0+k}')
a('s_cmp_ge_u32 s3, 6')
a('s_cbranch_scc1 L_p_short')
a('s_waitcnt vmcnt(3)')
ps(2)
for k in range(4): part1(k)
a('s_waitcnt vmcnt(2)')
for k in range(4, 7): part1(k)
a('s_waitcnt vmcnt(1)')
for k in range(4, 7): part2(k)
a('s_waitcnt lgkmcnt(0)')
for k in range(4, 7): part3(k)
a('s_branch L_p_join')
a.label('L_p_short')
a('s_waitcnt vmcnt(1)')
ps(2)
for k in range(4): part1(k)
a('s_waitcnt lgkmcnt(0)')
a.label('L_p_join')
a('s_waitcnt vmcnt(0)')
for k in range(4): part2(k)
for k in range(4): part3(k)
a(f'v_max3_u32 v44, v{RK}, v{RK+1}, v{RK+2}')
a(f'v_max3_u32 v44, v44, v{RK+3}, v{RK+4}')
a(f'v_max3_u32 v44, v44, v{RK+5}, v{RK+6}')
a('v_cmp_lt_u32 vcc, 124, v44')
a('s_cbranch_vccz L_p_noovf')
a(f's_add_u32 s44, s40, {WS_OVFREC:#x}')
a(f's_add_u32 s45, s40, {WS_OVFBKT:#x}')
for k in range(7):
    a(f'v_cmp_lt_u32 vcc, 124, v{RK+k}')
    a('s_mov_b64 exec, vcc')
    a(f's_cbranch_execz L_p_ov{k}')
    a(f'ds_add_rtn_u32 v44, v41, v42 offset:{L_OVC}')
    a('s_waitcnt lgkmcnt(0)')
    a(f'buffer_store_dword v{S0+k}, v44, s[{WS}:{WS+3}], s44 offen')
    a(f'buffer_store_dword v{B4+k}, v44, s[{WS}:{WS+3}], s45 offen')
    a('s_waitcnt vmcnt(0)')
    a.label(f'L_p_ov{k}')
    a('s_mov_b64 exec, -1')
a.label('L_p_noovf')
a('s_waitcnt lgkmcnt(0)')
a('s_barrier')
ps(3)
for k in range(4):
    a(f'ds_read_b32 v{24+k}, v45 offset:{64*CS*k}')
    a(f'ds_read2_b32 v[{8+4*k}:{9+4*k}], v{56+k} offset0:0 offset1:4')
    a(f'ds_read2_b32 v[{10+4*k}:{11+4*k}], v{56+k} offset0:8 offset1:12')
a(f'ds_read_b32 v28, v41 offset:{L_OVC}')
for k in range(4):
    a(f's_waitcnt lgkmcnt({10-3*k})')
    if not X('fullcell'):
        a(f'v_cmp_lt_u32 vcc, v60, v{24+k}')
        a('s_mov_b64 exec, vcc')
    a(f'buffer_store_dwordx4 v[{8+4*k}:{11+4*k}], v47, s[{WS}:{WS+3}], s47 offen' + SC1)
    a('s_mov_b64 exec, -1')
    if k < 3: a('s_add_u32 s47, s47, 0x100000')
pend()
a('s_cmp_lg_u32 s3, 0')
a('s_cbranch_scc1 L_pre_end')
a('s_lshl_b32 s44, s2, 2')
a(f's_add_u32 s44, s44, {WS_OVFLEN:#x}')
a('s_mov_b64 exec, 1')
a('s_waitcnt lgkmcnt(0)')
a(f'buffer_store_dword v28, v41, s[{WS}:{WS+3}], s44 offen')
a('s_endpgm')

a.label('L_pre_gemm')
a(f's_sub_u32 s40, s2, {NCH}')
a(f's_sub_u32 s41, s40, {NGEMM}')
a('s_mov_b32 s42, 0')
a('s_cmp_eq_u32 s41, 0')
a('s_cselect_b32 s42, 0x8000, s42')
a('s_cmp_eq_u32 s41, 2')
a('s_cselect_b32 s42, 0x8000, s42')
a('s_cmp_eq_u32 s41, 3')
a('s_cselect_b32 s42, 0x10000, s42')
a('v_lshrrev_b32 v4, 4, v3')
a('v_and_b32 v5, 15, v3')
a('v_lshlrev_b32 v6, 2, v4')
a('v_xor_b32 v6, v6, v5')
a('v_lshlrev_b32 v6, 4, v6')
a('v_lshl_add_u32 v6, v4, 8, v6')
a('s_lshl_b32 s43, s3, 12')
a('s_add_u32 s42, s42, s43')
XF1 = not X('wfirst')
def wdma():
    a('s_mov_b32 m0, s43')
    a('s_nop 0')
    for i in range(4): a(f'buffer_load_dwordx4 v6, s[{W}:{W+3}], s42 offen offset:{1024*i} lds')
if not XF1: wdma()
a(f's_cmp_lt_u32 s40, {NGEMM}')
a('s_cbranch_scc0 L_g_nox')
a('v_xor_b32 v8, v4, v5')
a('v_lshlrev_b32 v8, 4, v8')
a('v_lshl_add_u32 v8, v4, 8, v8')
a('s_add_u32 s44, s43, 32768')
a('s_mov_b32 m0, s44')
a(f's_mul_i32 s45, s40, {GR*256}')
a(f's_add_u32 s50, s45, {GR*256}')
a(f's_min_u32 s{XS+2}, s{XS+2}, s50')
a('s_add_u32 s44, s45, s43')
if XF1 and not X('notw'):
    a('s_cmp_lg_u32 s3, 7')
    a('s_cbranch_scc1 L_g_not')
    a('s_lshr_b32 s51, s2, 3')
    a('s_and_b32 s51, s51, 7')
    a('s_lshl_b32 s51, s51, 12')
    a('v_lshlrev_b32 v9, 7, v3')
    a('s_mov_b64 exec, 0xffffffff')
    a(f'buffer_load_dword v159, v9, s[{W}:{W+3}], s51 offen')
    a('s_mov_b64 exec, -1')
    a.label('L_g_not')
for i in range(4):
    if i: a(f'v_xor_b32 v9, {64*i}, v8')
    a(f'buffer_load_dwordx4 v{9 if i else 8}, s[{XS}:{XS+3}], s44 offen offset:{1024*i} lds')
a(f's_mov_b32 s52, s{WS}'); a(f's_mov_b32 s53, s{WS+1}'); a(f's_add_u32 s54, s50, {WS_P}'); a(f's_mov_b32 s55, s{WS+3}')
if X('wdel'): a('s_waitcnt vmcnt(%d)' % opt('wd', 0)); ps(1)
if X('now'): a(f's_mov_b32 s{W+2}, 0')
a.label('L_g_nox')
if XF1: wdma()
a('s_and_b32 s46, s3, 3')
a('s_lshr_b32 s47, s3, 2')
a('s_lshl_b32 s49, s47, 1')
a(f's_cmp_lt_u32 s40, {NGEMM}')
a('s_cselect_b32 s49, s49, s46')
a('v_lshrrev_b32 v10, 5, v3')
a('v_and_b32 v11, 1, v4')
a('v_bfe_u32 v12, v3, 2, 2')
a('v_and_b32 v13, 1, v3')
a('v_bfe_u32 v14, v3, 1, 1')
a('v_lshl_add_u32 v15, v13, 1, v11')
a('v_lshl_add_u32 v16, v11, 1, v14')
a('s_cmp_eq_u32 s41, 3')
a('s_cselect_b64 vcc, -1, 0')
a('v_cndmask_b32 v15, v15, v16, vcc')
a('v_cndmask_b32 v16, v14, v13, vcc')
a('v_xor_b32 v17, s49, v12')
a('v_lshl_add_u32 v15, v17, 2, v15')
a('v_lshlrev_b32 v15, 4, v15')
a('v_lshl_add_u32 v15, v16, 3, v15')
a('v_lshl_add_u32 v17, v10, 3, v12')
a('v_lshl_add_u32 v15, v17, 8, v15')
a('v_and_b32 v18, 31, v3')
WF, XF, ACC = 32, 96, 128
a(f's_cmp_lt_u32 s40, {NGEMM}')
a('s_cbranch_scc1 L_g_go')
a('s_waitcnt vmcnt(0)')
a('s_barrier')
a('s_branch L_g_frag')
a.label('L_g_go')
a('v_xor_b32 v16, 64, v15')
a('s_lshl_b32 s48, s46, 5')
a('v_add_u32 v19, s48, v18')
a('v_and_b32 v20, 15, v18')
a('v_xor_b32 v20, v20, v10')
a('v_lshlrev_b32 v20, 4, v20')
a('v_lshl_add_u32 v20, v19, 8, v20')
a('v_and_b32 v21, 7, v18')
a('v_lshlrev_b32 v22, 1, v10')
a('v_xor_b32 v21, v21, v22')
a('v_lshlrev_b32 v21, 4, v21')
a('v_lshl_add_u32 v21, v18, 7, v21')
a('s_add_u32 s48, s43, 65536')
a('v_add_u32 v21, s48, v21')
a('v_lshrrev_b32 v24, 3, v3')
a('v_and_b32 v25, 7, v3')
a('v_xor_b32 v22, v24, v25')
a('v_lshlrev_b32 v22, 4, v22')
a('v_lshl_add_u32 v22, v24, 7, v22')
a('v_add_u32 v22, s48, v22')
a('v_lshlrev_b32 v23, 4, v25')
a('v_lshl_add_u32 v23, v24, 8, v23')
a('s_lshl_b32 s48, s46, 13')
a('s_add_u32 s48, s48, s45')
a('s_lshl_b32 s49, s47, 7')
a('s_add_u32 s48, s48, s49')
a(f's_add_u32 s48, s48, {WS_P}')
a('s_add_u32 s49, s48, 4096')
def trr(s):
    for b in range(2):
        for u in range(2):
            a(f'ds_read_b64_tr_b16 v[{WF+32*b+4*s+2*u}:{WF+32*b+4*s+2*u+1}], v{15+b} offset:{4096*s+1024*u}')
def xrd():
    for s in range(8):
        if s: a(f'v_xor_b32 v24, {32*s}, v20')
        a(f'ds_read_b128 v[{XF+4*s}:{XF+4*s+3}], v{24 if s else 20} offset:32768')
def mm(s):
    for b in range(2):
        c = '0' if s == 0 else f'v[{ACC+16*b}:{ACC+16*b+15}]'
        a(f'v_mfma_f32_32x32x16_bf16 v[{ACC+16*b}:{ACC+16*b+15}], v[{WF+32*b+4*s}:{WF+32*b+4*s+3}], v[{XF+4*s}:{XF+4*s+3}], {c}')
a('s_waitcnt vmcnt(4)')
a('s_barrier')
if not XF1:
    for s in range(8):
        trr(s)
        if s in (2, 5): a('s_waitcnt lgkmcnt(2)')
    a('s_waitcnt vmcnt(0) lgkmcnt(0)')
    ps(2)
    a('s_barrier')
    ps(3)
    xrd()
    for s in range(8):
        a(f's_waitcnt lgkmcnt({7-s})')
        mm(s)
else:
    xrd()
    a('s_waitcnt vmcnt(0) lgkmcnt(0)')
    ps(2)
    a('s_barrier')
    ps(3)
    if PST: a('s_waitcnt lgkmcnt(0)')
    for s in range(3): trr(s)
    for s in range(8):
        a(f's_waitcnt lgkmcnt({4*min(2, 7-s)})')
        mm(s)
        if s + 3 < 8: trr(s+3)
a('v_xor_b32 v24, 16, v21')
a('v_xor_b32 v25, 64, v21')
a('v_xor_b32 v26, 80, v21')
a.nop(9)
for b in range(2):
    for r in range(16): a(f'v_mul_f32 v{ACC+16*b+r}, {NEGLOG2E:#x}, v{ACC+16*b+r}')
    for r in range(8): a(f'v_cvt_pk_bf16_f32 v{WF+8*b+r}, v{ACC+16*b+2*r}, v{ACC+16*b+2*r+1}')
    a(f'ds_write_b128 v{25 if b else 21}, v[{WF+8*b}:{WF+8*b+3}]')
    a(f'ds_write_b128 v{26 if b else 24}, v[{WF+8*b+4}:{WF+8*b+7}]')
for i in range(4): a(f'ds_read_b128 v[{XF+4*i}:{XF+4*i+3}], v22 offset:{1024*i}')
for i in range(4):
    a(f's_waitcnt lgkmcnt({3-i})')
    a(f'buffer_store_dwordx4 v[{XF+4*i}:{XF+4*i+3}], v23, s[52:55], s{48+(i>>1)} offen offset:{2048*(i&1)}' + ('' if X('pnosc1') else ' sc1'))
pend()
a('s_endpgm')
a.label('L_g_frag')
a('v_lshlrev_b32 v22, 4, v3')
a('s_cmp_eq_u32 s41, 3')
a('s_cbranch_scc1 L_g_w3')
a('s_lshl_b32 s48, s3, 1')
a('v_add_u32 v15, s48, v14')
a('s_cmp_eq_u32 s41, 2')
a('s_cbranch_scc1 L_g_wu2')
a('v_lshlrev_b32 v16, 2, v12')
a('v_xor_b32 v16, v16, v15')
a('v_lshlrev_b32 v16, 4, v16')
a('v_lshl_add_u32 v16, v13, 3, v16')
a('v_lshl_add_u32 v17, v4, 3, v12')
a('v_lshl_add_u32 v16, v17, 8, v16')
for s in range(4):
    for u in range(2): a(f'ds_read_b64_tr_b16 v[{WF+4*s+2*u}:{WF+4*s+2*u+1}], v16 offset:{8192*s+1024*u}')
a('s_branch L_g_fst')
a.label('L_g_wu2')
for u in range(2):
    a(f'v_lshl_add_u32 v17, v4, 1, {u}')
    a('v_and_b32 v16, 3, v17')
    a('v_lshlrev_b32 v16, 2, v16')
    a('v_xor_b32 v16, v16, v15')
    a('v_lshlrev_b32 v16, 4, v16')
    a('v_lshl_add_u32 v16, v13, 3, v16')
    a('v_lshl_add_u32 v17, v12, 5, v17')
    a('v_lshl_add_u32 v16, v17, 8, v16')
    for s in range(4): a(f'ds_read_b64_tr_b16 v[{WF+4*s+2*u}:{WF+4*s+2*u+1}], v16 offset:{2048*s}')
a.label('L_g_fst')
a('s_lshl_b32 s48, s41, 15')
a('s_lshl_b32 s49, s3, 12')
a('s_add_u32 s48, s48, s49')
a(f's_add_u32 s48, s48, {WS_FRAG:#x}')
a('s_waitcnt lgkmcnt(0)')
for s in range(4): a(f'buffer_store_dwordx4 v[{WF+4*s}:{WF+4*s+3}], v22, s[{WS}:{WS+3}], s48 offen offset:{1024*s}')
a('s_endpgm')
a.label('L_g_w3')
a('s_cmp_lg_u32 s47, 0')
a('s_cbranch_scc1 L_pre_end')
for u in range(2): a(f'ds_read_b64_tr_b16 v[{WF+2*u}:{WF+2*u+1}], v15 offset:{1024*u}')
a('s_lshl_b32 s48, s46, 10')
a(f's_add_u32 s48, s48, {WS_FRAG+3*32768:#x}')
a('s_waitcnt lgkmcnt(0)')
for r in range(4):
    a(f'v_lshlrev_b32 v40, 16, v{WF+r}')
    a(f'v_and_b32 v41, 0xffff0000, v{WF+r}')
    a(f'v_mul_f32 v40, {NEGLOG2E:#x}, v40')
    a(f'v_mul_f32 v41, {NEGLOG2E:#x}, v41')
    a(f'v_cvt_pk_bf16_f32 v{WF+r}, v40, v41')
a(f'buffer_store_dwordx4 v[{WF}:{WF+3}], v22, s[{WS}:{WS+3}], s48 offen')
a.label('L_pre_end')
a('s_endpgm')

BENCH = '--bench' in sys.argv
RSTR = 272
L_PT = 0
L_EO = 54*256
L_QS = 108*256
QSTR = 13*256
L_QT = L_QS + QSTR; L_QW = L_QT + QSTR; L_QK = L_QW + QSTR
L_HIST = L_QK + QSTR
L_MISC = L_HIST + 256
L_ZERO = L_MISC + 64
L_HEAD = L_ZERO + 512
L_CARRY = L_HEAD + 8192
L_XI = L_HEAD
L_NODE = L_CARRY + 15*512
NSTR = 784
L_STG = (L_NODE + 50*NSTR + 255) // 256 * 256
assert L_XI % 64 == 0
HB = 4160
LDS_MAIN = L_STG + 16*HB
assert LDS_MAIN <= 163840 and L_NODE % 16 == 0 and L_EO + 50*RSTR <= L_QS

class RA_:
    def __init__(s, st): s.n = st
    def __call__(s, k=1, al=1):
        s.n = (s.n + al - 1)//al*al; r = s.n; s.n += k; return r
al = RA_(16)
ZB = [al(16), al(16)]; U = al(16); PA = [al(16), al(16)]
NF = al(4); D = al(4); RC = al(4); MB = al(16); KK = al(4); AA = al(4); DA = al(4); PTr = al(4)
EC = al(4); EN = al(4); QB = [al(2), al(2)]; TM = al(2); TC = al(2)
I0 = al(4); I1 = al(4); W3 = al(16); R = al(16); WU2 = al(16); REC = al(8)
G = al(2); RA = al(2); TA = al(); TAr = al(); SP = al(); SE = al(); EOr = al(); EV = al(); MK = al(); CB = al()
vQA = al(); vQ1 = al(); vQP = al(); vQE = al()
LC = al(); CA = al(); CT = al(); H16 = al(); I4 = al(); CIr = al(2)
NVG = al.n
Uq = lambda q, s_: U + 8*(q>>1) + 2*((s_+3)&3) + (1-(q&1))
RCq = lambda q: RC + (q^1)
assert U % 2 == 0 and D % 2 == 0 and NF % 2 == 0 and RC % 2 == 0
assert NVG <= 256
LANE, MM, HH = 1, 2, 3
XF = 16
W2F = 80
WU1F = 96
QACC = 112
HA, RK, PV, EVv = AA, WU2+8, AA+8, WU2
assert AA == 128 and TC >= AA+24
vW, vXF, vQW, cP1, cP2, cP3, cP4, vTCH, vPF = 243, 244, 248, 249, 252, 253, 254, 251, 255
sQM = 100
PS, WSd, Ed, Xd, Od = 8, 12, 16, 20, 24
sW, sNODE0, sT, sTC, sSAFE, sMORE, sFIRST, sBML, sM0A, sM0B, sNZ = 28, 29, 30, 31, 32, 33, 34, 35, 36, 37, 38
XM = 40
SO = 92
BM = 60
sSLOW, sN, sPASS = 64, 65, 66
nstamp = [0]
def stamp():
    if STAMP and nstamp[0] < 11:
        a(f's_memtime s[{70+2*nstamp[0]}:{71+2*nstamp[0]}]'); nstamp[0] += 1
FINE = opt('fine', 0)
def st(level):
    if FINE == level: stamp()

a('.globl main_kernel\n.p2align 8\n.type main_kernel,@function')
a.label('main_kernel')
a('s_cmp_ge_u32 s2, 256')
a('s_cbranch_scc1 L_main_end')
stamp()
a('s_load_dwordx2 s[66:67], s[0:1], 64')
a('s_load_dwordx4 s[4:7], s[0:1], 0')
a('s_load_dwordx2 s[64:65], s[0:1], 48')
a(f'v_lshrrev_b32 v4, 6, v0')
a(f'v_and_b32 v{LANE}, 63, v0')
a(f'v_readfirstlane_b32 s{sW}, v4')
a(f'v_and_b32 v{MM}, 31, v0')
a(f'v_bfe_u32 v{HH}, v0, 5, 1')
a(f's_lshl_b32 s{sNODE0}, s2, 8')
a(f's_mov_b32 s{sSAFE}, 0')
a(f's_mov_b32 s{sFIRST}, 1')
a(f's_mul_i32 s{sM0A}, s{sW}, {2*HB}')
a(f's_add_u32 s{sM0A}, s{sM0A}, {L_STG}')
a(f's_add_u32 s{sM0B}, s{sM0A}, {HB}')
for i in range(8): a(f's_mov_b32 s{SO+i}, {3120-1040*(i&3)+128*(i>>2)}')
a(f'v_lshrrev_b32 v4, 4, v{LANE}')
a(f'v_and_b32 v5, 15, v{LANE}')
a(f's_lshl_b32 s58, s{sW}, 3')
a('v_add_u32 v6, s58, v4')
a('v_and_b32 v7, 15, v6')
a('v_xor_b32 v7, v7, v5')
a('v_lshlrev_b32 v7, 4, v7')
a('v_lshl_add_u32 v7, v6, 16, v7')
a('v_xor_b32 v8, 64, v7')
a(f'v_add_u32 v8, {4*65536-1024}, v8')
a('v_cmp_gt_u32 s[68:69], 49, v6')
a(f's_lshl_b32 s58, s{sW}, 11')
a(f's_add_u32 s58, s58, {L_XI}')
a('s_mov_b32 m0, s58')
a(f's_mov_b32 s{WSd+2}, {WS_SIZE:#x}'); a(f's_mov_b32 s{WSd+3}, 0x20000')
a(f's_mov_b32 s{Xd+2}, {N*256:#x}'); a(f's_mov_b32 s{Xd+3}, 0x20000')
a(f's_mov_b32 s{PS+2}, 0'); a(f's_mov_b32 s{PS+3}, 0x20000')
a(f's_mov_b32 s{Ed+2}, 0'); a(f's_mov_b32 s{Ed+3}, 0x20000')
a(f's_mov_b32 s{Od+2}, {N*256:#x}'); a(f's_mov_b32 s{Od+3}, 0x20000')
def celladdr():
    a(f'v_mov_b32 v{REC}, 0')
    a('v_and_b32 v9, 3, v0')
    a('v_lshlrev_b32 v5, 5, v0')
    a('v_lshlrev_b32 v9, 4, v9')
    a('v_sub_u32 v5, v5, v9')
    a('s_lshl_b32 s58, s2, 14')
    a(f's_add_u32 s58, s58, {WS_CELLS:#x}')
    a('v_cmp_gt_u32 vcc, 500, v0')
celladdr()
a('s_waitcnt lgkmcnt(0)')
st(1)
a(f's_mov_b32 s{WSd}, s66'); a(f's_and_b32 s{WSd+1}, s67, 0xffff')
a.label('L_cells')
a('s_mov_b64 exec, vcc')
a(f'buffer_load_dwordx4 v[{REC}:{REC+3}], v5, s[{WSd}:{WSd+3}], s58 offen')
a(f'buffer_load_dwordx4 v[{REC+4}:{REC+7}], v5, s[{WSd}:{WSd+3}], s58 offen offset:64')
a('s_mov_b64 exec, -1')
a(f's_mov_b32 s{sBML}, 0')
a(f's_cmp_eq_u32 s{sFIRST}, 0')
a('s_cbranch_scc1 L_skipfirst')
a(f's_mov_b32 s{Xd}, s4'); a(f's_and_b32 s{Xd+1}, s5, 0xffff')
a(f's_add_u32 s{PS}, s66, {WS_P-3120}'); a(f's_addc_u32 s{PS+1}, s67, 0'); a(f's_and_b32 s{PS+1}, s{PS+1}, 0xffff')
a(f's_mov_b32 s{Ed}, s6'); a(f's_and_b32 s{Ed+1}, s7, 0xffff')
a(f's_mov_b32 s{Od}, s64'); a(f's_and_b32 s{Od+1}, s65, 0xffff')
a(f's_cmp_lt_u32 s{sW}, 6')
a('s_cbranch_scc0 L_x67')
a(f'buffer_load_dwordx4 v7, s[{Xd}:{Xd+3}], s{sNODE0} offen lds')
a(f'buffer_load_dwordx4 v8, s[{Xd}:{Xd+3}], s{sNODE0} offen offset:1024 lds')
a('s_branch L_xd')
a.label('L_x67')
a('s_lshr_b32 s58, s2, 3')
a('s_mul_i32 s58, s58, 3200')
a(f's_add_u32 s58, s58, {WS_FRAG:#x}')
a(f'v_lshlrev_b32 v9, 7, v{LANE}')
a(f's_cmp_eq_u32 s{sW}, 6')
a('s_cbranch_scc0 L_x7')
a('s_mov_b64 exec, s[68:69]')
a(f'buffer_load_dwordx4 v7, s[{Xd}:{Xd+3}], s{sNODE0} offen lds')
a('s_mov_b64 exec, 0x1ffffff')
a(f'buffer_load_dword v251, v9, s[{WSd}:{WSd+3}], s58 offen')
a('s_branch L_x8')
a.label('L_x7')
a(f's_mov_b32 s{Ed+2}, {E*32 if X("tlb") else 0:#x}')
a(f'v_lshlrev_b32 v9, 18, v{LANE}')
a(f'buffer_load_dword v251, v9, s[{Ed}:{Ed+3}], 0 offen')
a('s_mov_b64 exec, %s' % ('0x1fff' if X('tlb') else '1'))
a(f'buffer_load_dword v251, v9, s[{WSd}:{WSd+3}], 0 offen')
a.label('L_x8')
a('s_mov_b64 exec, -1')
a.label('L_xd')
st(1)
a(f'v_bfe_u32 v4, v{MM}, 2, 1')
a(f'v_lshrrev_b32 v5, 3, v{MM}')
a('v_lshl_add_u32 v10, v4, 2, v5')
a(f'v_and_b32 v6, 3, v{MM}')
a(f'v_lshlrev_b32 v{I4}, 2, v6')
a('v_mul_u32_u24 v6, 1040, v6')
a('v_lshl_add_u32 v6, v10, 7, v6')
a(f'v_lshlrev_b32 v{H16}, 4, v{HH}')
a(f'v_add3_u32 v6, v6, v{H16}, s{sM0A}')
a(f'v_and_b32 v7, 16, v{MM}')
a('v_lshlrev_b32 v7, 2, v7')
a(f'v_add_u32 v{RA}, v6, v7')
a('v_xor_b32 v7, 64, v7')
a(f'v_add_u32 v{RA+1}, v6, v7')
a('v_mov_b32 v8, 0x3f80')
a('v_mov_b32 v9, 0')
def onehot4(dst, vj):
    a(f'v_cmp_gt_u32 vcc, 4, v{vj}')
    a(f'v_lshlrev_b32 v7, 4, v{vj}')
    a(f'v_mov_b32 v{dst+1}, 0')
    a(f'v_cndmask_b32 v{dst}, v9, v8, vcc')
    a(f'v_lshlrev_b64 v[{dst}:{dst+1}], v7, v[{dst}:{dst+1}]')
a(f'v_lshlrev_b32 v5, 2, v{HH}')
a('v_sub_u32 v5, v10, v5')
onehot4(TC, 5)
a(f'v_lshlrev_b32 v5, 3, v{HH}')
a(f'v_sub_u32 v5, v{MM}, v5')
onehot4(I0, 5)
a('v_subrev_u32 v5, 4, v5')
onehot4(I0+2, 5)
a('v_subrev_u32 v5, 12, v5')
onehot4(I1, 5)
a('v_subrev_u32 v5, 4, v5')
onehot4(I1+2, 5)
a(f'v_and_b32 v4, 7, v{LANE}')
a(f'v_and_b32 v5, 16, v{LANE}')
a('v_lshlrev_b32 v4, 4, v4')
a('v_lshlrev_b32 v6, 2, v5')
a(f'v_xor_b32 v{LC}, v4, v6')
a(f'v_lshlrev_b32 v{CA}, 4, v{MM}')
a(f'v_add_u32 v{CA}, {L_NODE}, v{CA}')
a(f'v_and_b32 v4, 3, v{LANE}')
a('v_lshlrev_b32 v4, 3, v4')
a('v_lshl_add_u32 v4, v5, 1, v4')
a(f'v_add_u32 v{CT}, {L_NODE+512}, v4')
a(f'v_lshlrev_b32 v{vW}, 4, v{LANE}')
a(f'v_lshlrev_b32 v{vPF}, 7, v{LANE}')
a(f'v_and_b32 v4, 15, v{LANE}')
a(f'v_lshrrev_b32 v6, 4, v{LANE}')
a('v_xor_b32 v5, v6, v4')
a('v_lshlrev_b32 v5, 4, v5')
a(f'v_lshl_add_u32 v{vXF}, v4, 8, v5')
for s in range(1, 4): a(f'v_xor_b32 v{vXF+s}, {64*s}, v{vXF}')
a(f'v_mul_u32_u24 v5, {NSTR}, v4')
a('v_lshl_add_u32 v5, v6, 3, v5')
a(f's_lshl_b32 s58, s{sW}, 5')
a(f's_add_u32 s58, s58, {L_NODE+NSTR+512}')
a(f'v_add_u32 v{vQW}, s58, v5')
a(f'v_and_b32 v{cP1}, 12, v{LANE}')
a(f'v_lshrrev_b32 v{cP2}, 1, v{LANE}')
a(f'v_and_b32 v{cP2}, 12, v{cP2}')
a(f'v_lshrrev_b32 v{cP3}, 2, v10')
a(f'v_and_b32 v{cP4}, 3, v10')
a(f'v_lshlrev_b32 v{cP4}, 2, v{cP4}')
a.label('L_skipfirst')
a(f's_mov_b32 s{sPASS}, 0')
st(1)
a('v_lshrrev_b32 v4, 2, v0')
a(f'v_mul_u32_u24 v{CB}, {CH*32}, v4')
for i in range(4): a(f'v_mov_b32 v{12+i}, 0')
a('v_lshrrev_b32 v4, 5, v0')
a(f'v_mul_u32_u24 v4, {NSTR}, v4')
a(f'v_add_u32 v4, v4, v{CA}')
for k in range(3): a(f'ds_write_b128 v4, v[12:15] offset:{NSTR*(16*k+2)}')
a(f's_cmp_lg_u32 s{sW}, 0')
a('s_cbranch_scc1 L_z0')
a(f'v_mul_u32_u24 v5, 320, v{HH}')
a('v_sub_u32 v4, v4, v5')
a('ds_write_b128 v4, v[12:15] offset:320')
a(f'v_min_u32 v4, 49, v{LANE}')
a(f'v_mul_u32_u24 v4, {NSTR}, v4')
a(f'ds_write_b32 v4, v12 offset:{L_NODE+768}')
a.label('L_z0')
a(f'v_mov_b32 v{G}, 0')
a(f'v_mov_b32 v{G+1}, 0')
a(f's_mov_b32 s{sNZ}, {(L_HEAD-L_QS)//16-512}')
a.label('L_reinit')
for i in range(4): a(f'v_mov_b32 v{12+i}, 0')
a('v_lshlrev_b32 v4, 4, v0')
a(f'ds_write_b128 v4, v[12:15] offset:{L_QS}')
a(f'v_cmp_gt_u32 vcc, s{sNZ}, v0')
for i in range(4): a(f'v_bfrev_b32 v{48+i}, 1')
a('s_mov_b64 exec, vcc')
a(f'ds_write_b128 v4, v[12:15] offset:{L_QS+8192}')
a('s_mov_b64 exec, -1')
a(f'v_cmp_gt_u32 vcc, {L_QS//16-1536}, v0')
for k in range(3): a(f'ds_write_b128 v4, v[48:51] offset:{8192*k}')
a('s_mov_b64 exec, vcc')
a(f'ds_write_b128 v4, v[48:51] offset:{8192*3}')
a('s_mov_b64 exec, -1')
a(f's_mov_b32 s{sNZ}, {(L_MISC-L_QS)//16-512}')
a('v_mov_b32 v11, 4')
a(f's_lshl_b32 s56, s{sW}, 12')
a(f's_add_u32 s56, s56, {WS_FRAG:#x}')
a('s_add_u32 s4, s56, 0x8000')
a(f's_mov_b32 s5, {WS_FRAG+3*32768:#x}')
a('s_lshr_b32 s6, s2, 3')
a(f's_mul_i32 s6, s6, {784*128}')
a(f's_mul_i32 s7, s{sW}, {98*128}')
a('s_add_u32 s6, s6, s7')
a(f's_add_u32 s6, s6, {WS_P}')
a('s_movk_i32 s39, 0xfc')
a(f's_movk_i32 s57, {RSTR//4}')
a('v_and_b32 v13, 3, v0')
a('v_lshlrev_b32 v13, 2, v13')
a(f'v_mul_u32_u24 v8, {NSTR}, v{LANE}')
vHD, vHW, vHK, cH1 = 15, TAr, EOr, CIr
a(f's_or_b32 s{sSLOW}, s{sSAFE}, s{sPASS}')
a('s_cselect_b32 s67, 0, -1')
a('s_cselect_b32 s59, -1, 0')
a('s_cselect_b32 s3, 1, 4')
a('v_and_b32 v9, s59, v8')
a(f'v_subrev_u32 v4, 1, v{LANE}')
a('v_cmp_gt_u32 vcc, 16, v4')
a(f'v_lshrrev_b32 v{cH1}, 2, v{LANE}')
a(f'v_mul_u32_u24 v12, {RSTR}, v{LANE}')
a(f'v_cndmask_b32 v{vHD}, 0, 16, vcc')
a(f'v_lshl_add_u32 v12, v{vHD}, 2, v12')
a('v_cmp_eq_u32 vcc, 12, v13')
a(f'v_lshlrev_b32 v4, 9, v{cH1}')
a(f'v_add_u32 v4, {(L_HEAD-L_NODE) & 0xffffffff:#x}, v4')
a(f'v_cndmask_b32 v4, 0, v4, vcc')
a(f'v_mul_u32_u24 v5, {NSTR}, v{cH1}')
a(f'v_add_u32 v5, {NSTR}, v5')
a('v_cmp_ne_u32 vcc, 0, v13')
a(f'v_bfi_b32 v{vHW}, s59, v5, v4')
a(f'v_mov_b32 v4, s67')
a(f'v_cndmask_b32 v{vHK}, 0, v4, vcc')
a(f's_lshl_b32 s58, s{sW}, 1')
a('s_add_u32 s58, s58, 1')
a(f'v_add_u32 v4, s58, v{HH}')
a(f'v_mul_u32_u24 v5, {RSTR}, v4')
a(f'v_lshl_add_u32 v{SP}, v{cP2}, 2, v5')
a(f'v_mul_u32_u24 v4, {NSTR}, v4')
a(f'v_add_u32 v{TA}, v4, v{CT}')
a(f'v_add_u32 v4, s58, v{cP3}')
a(f'v_mul_u32_u24 v4, {RSTR}, v4')
a(f'v_lshl_add_u32 v4, v{cP4}, 2, v4')
a(f'v_add_u32 v{SE}, v4, v{I4}')
a(f's_mov_b32 s{PS+2}, {0 if "--nop" in sys.argv else 3120+N*256:#x}')
a(f's_mov_b32 s{Ed+2}, {0 if "--noe" in sys.argv else E*32:#x}')
def dma(half):
    return [f'buffer_load_dwordx4 v{DA+i}, s[{PS}:{PS+3}], s{SO+4*half+i} offen offset:{1040*i} lds' for i in range(4)]
def eload(dst): return f'buffer_load_dwordx4 v[{dst}:{dst+3}], v{EV}, s[{Ed}:{Ed+3}], 0 offen' + (' nt' if X('ent') else '')
hq = dma(0)
a(f'v_lshlrev_b32 v14, 2, v{LANE}')
a(f's_cmp_lg_u32 s{sFIRST}, 0')
a(f's_cselect_b64 s[{sQM}:{sQM+1}], -1, 0')
def fragl(dst, so, s): return f'buffer_load_dwordx4 v[{dst+4*s}:{dst+4*s+3}], v{vW}, s[{WSd}:{WSd+3}], s{so} offen offset:{1024*s}'
vm = ['c0', 'c1', 'x', 'x']
wq = [('W2', fragl(W2F, 56, s)) for s in range(4)] + [('WU1', fragl(WU1F, 4, s)) for s in range(4)] + [('W3', fragl(W3, 5, s)) for s in range(4)]
sched = ([x.split('=')[1] for x in sys.argv if x.startswith('--sched=')] or ['wwww,ww,ww,wwww,,,,h,h,h,'])[0].split(',')
def slot(i, out=None):
    o = []
    sp = sched[i]
    import re as _re
    for t in _re.findall(r'w|h|p\d+', sp):
        if t == 'w':
            tag, l = wq.pop(0); vm.append(tag); o.append(l)
        elif t == 'h':
            o.append(hq.pop(0)); vm.append('h0')
        else:
            nl = int(t[1:])
            o += [f's_bfm_b64 exec, {nl}, 0'] if nl < 64 else []
            o += [f'buffer_load_dword v{vTCH}, v{vPF}, s[{WSd}:{WSd+3}], s6 offen', 's_mov_b64 exec, -1', f's_addk_i32 s6, {nl*128}']
            vm.append('p')
    if out is not None: out += ['\n'.join(o)] if o else []
    else:
        for l in o: a(l)
def vwait(tag):
    idx = max(i for i, t in enumerate(vm) if t == tag)
    return f's_waitcnt vmcnt({len(vm)-1-idx})'
slot(0)
a('s_waitcnt lgkmcnt(0)')
st(1)
a('s_barrier')
st(0); st(1)
a(f's_or_b32 s58, s{sBML}, s{sPASS}')
a('s_mov_b64 s[68:69], 0')
a('s_cmp_lg_u32 s58, 0')
a('s_cselect_b64 s[0:1], -1, 0')
a('s_cbranch_scc0 L_hdr')
a('s_waitcnt vmcnt(0)')
for k in range(8): a(f'v_cmp_ne_u32 s[{XM+2*k}:{XM+2*k+1}], -1, v{REC+k}')
a('s_branch L_nohdr')
a.label('L_hdr')
a('s_movk_i32 s58, 80')
a('s_movk_i32 s59, 96')
a('s_movk_i32 s7, 112')
a(f's_cmp_eq_u32 s{sFIRST}, 0')
a('s_cbranch_scc0 L_hw')
a('s_waitcnt vmcnt(0)')
a.label('L_hw')
a(vwait('c0'))
st(1); st(2)
a(f'v_sub_u32_dpp v4, v{REC}, v13 quad_perm:[0,0,0,0] row_mask:0xf bank_mask:0xf')
a(f'v_cmp_lt_u32 vcc, 128, v{REC}')
for k in range(8): a(f'v_cmp_lt_i32 s[{XM+2*k}:{XM+2*k+1}], {[0,16,32,48,64,"s58","s59","s7"][k]}, v4')
a('s_mov_b32 s58, 0x11111111')
a('s_mov_b32 s59, 0x11111111')
a('s_and_b64 s[68:69], vcc, s[58:59]')
a(f's_andn2_b64 s[{XM}:{XM+1}], s[{XM}:{XM+1}], s[58:59]')
a.label('L_nohdr')
def dec(k):
    a(f'v_lshlrev_b32 v{PV+k}, 8, v{REC+k}')
    a(f'v_bfe_u32 v{EVv+k}, v{REC+k}, 14, 12')
    a(f'v_and_b32 v{PV+k}, 0x3fff00, v{PV+k}')
    a(f'v_lshl_add_u32 v{EVv+k}, v{EVv+k}, 5, v{CB}')
def hadr(k): a(f'v_and_b32_sdwa v{HA+k}, s39, v{REC+k} dst_sel:DWORD dst_unused:UNUSED_PAD src0_sel:DWORD src1_sel:BYTE_3')
for k in range(4): hadr(k)
slot(1)
for k in range(4):
    a(f's_mov_b64 exec, s[{XM+2*k}:{XM+2*k+1}]')
    a(f'ds_add_rtn_u32 v{RK+k}, v{HA+k}, v11 offset:{L_HIST}')
a(vwait('c1'))
for k in range(4, 8):
    a(f's_or_b64 s[58:59], s[{XM+2*k}:{XM+2*k+1}], s[0:1]')
    a('s_cbranch_scc0 L_h7')
    a(f's_mov_b64 exec, s[{XM+2*k}:{XM+2*k+1}]')
    hadr(k)
    a(f'ds_add_rtn_u32 v{RK+k}, v{HA+k}, v11 offset:{L_HIST}')
    dec(k)
    a.label('L_h%d' % k)
a('s_mov_b64 exec, s[68:69]')
a('s_cbranch_execz L_noovf')
a('v_lshrrev_b32 v4, 2, v0')
a('v_lshrrev_b32 v5, 5, v4')
a('v_lshlrev_b32 v5, 2, v5')
a('v_lshlrev_b32 v4, v4, 1')
a(f'ds_or_b32 v5, v4 offset:{L_MISC}')
a.label('L_noovf')
a('s_mov_b64 exec, -1')
slot(2)
for k in range(4): dec(k)
a(f's_mov_b32 m0, s{sM0A}')
a('s_waitcnt lgkmcnt(0)')
st(1); st(2)
for k in range(4): a(f'v_min_u32 v{4+k}, 256, v{RK+k}')
for k in range(4): a(f'v_mad_u32_u24 v{4+k}, v{HA+k}, s57, v{4+k}')
for k in range(4):
    a(f's_mov_b64 exec, s[{XM+2*k}:{XM+2*k+1}]')
    a(f'ds_write2st64_b32 v{4+k}, v{PV+k}, v{EVv+k} offset0:0 offset1:{L_EO//256}')
for k in range(4, 8):
    a(f's_or_b64 s[58:59], s[{XM+2*k}:{XM+2*k+1}], s[0:1]')
    a('s_cbranch_scc0 L_s7')
    a(f's_mov_b64 exec, s[{XM+2*k}:{XM+2*k+1}]')
    a(f'v_min_u32 v4, 256, v{RK+k}')
    a(f'v_mad_u32_u24 v4, v{HA+k}, s57, v4')
    a(f'ds_write2st64_b32 v4, v{PV+k}, v{EVv+k} offset0:0 offset1:{L_EO//256}')
a.label('L_s7')
a('s_mov_b64 exec, -1')
slot(3)
a(vwait('x'))
a('s_waitcnt lgkmcnt(0)')
st(1); st(2)
a('s_barrier')
st(1); st(2)
a(f'ds_read_b32 v{EV}, v{SE} offset:{L_EO}')
a(f'ds_read_b32 v5, v14 offset:{L_HIST}')
a(f'ds_read_b128 v[{DA}:{DA+3}], v{SP}')
def xfr(s): return [f'ds_read_b128 v[{XF+16*s+4*nu}:{XF+16*s+4*nu+3}], v{vXF+s} offset:{L_XI+4096*nu}' for nu in range(4)]
for s in range(3):
    for l in xfr(s): a(l)
a('s_waitcnt lgkmcnt(%d)' % (0 if FINE in (1, 2) else 14))
a(f'v_add_u32 v{EV}, v{EV}, v{H16}')
a(eload(EC)); vm.append('e')
a('s_waitcnt lgkmcnt(12)')
for i in range(4): a(f'v_add_u32 v{DA+i}, v{DA+i}, v{LC}')
slot(4)
st(2)
a('v_lshrrev_b32 v5, 2, v5')
a('v_cmp_lt_u32 vcc, 64, v5')
a('v_min_u32 v5, 64, v5')
a(f'v_sub_u32 v5, v5, v{vHD} clamp')
a('v_add_u32 v5, 3, v5')
a('v_and_b32 v5, -4, v5')
a('v_mov_b32 v6, v5')
a('s_waitcnt lgkmcnt(10)')
fl = [[l] for l in xfr(3)] + [[], []]
o5 = []; slot(5, o5); fl[4] = o5
pre = ['s_cmp_lg_u64 vcc, 0', f's_cselect_b32 s{sMORE}, 1, 0']
for l in pre: a(l)
for n_, sh in enumerate(('row_shr:1 row_mask:0xf', 'row_shr:2 row_mask:0xf', 'row_shr:4 row_mask:0xf', 'row_shr:8 row_mask:0xf', 'row_bcast:15 row_mask:0xa', 'row_bcast:31 row_mask:0xc')):
    a(f'v_add_u32_dpp v6, v6, v6 {sh} bank_mask:0xf')
    if n_ < 5:
        if n_ < 4: a([f'v_ashrrev_i32 v{MK}, 31, v{EV}', f'v_not_b32 v{MK}, v{MK}', f'v_and_b32 v{TM}, v{TC}, v{MK}', f'v_and_b32 v{TM+1}, v{TC+1}, v{MK}'][n_])
        for l in fl[n_]: a(l)
        if n_ == 4: a.nop(2 if not fl[4] else 1)
a('v_sub_u32 v7, v6, v5')
a(f's_cmp_lg_u32 s{sMORE}, 0')
a(f'v_readlane_b32 s{sT}, v6, 63')
a('s_cbranch_scc0 L_nomore')
for k in range(8):
    a(f'v_cmp_lt_u32 vcc, 255, v{RK+k}')
    a(f's_and_b64 vcc, vcc, s[{XM+2*k}:{XM+2*k+1}]')
    a.nop(1)
    a(f'v_cndmask_b32 v{REC+k}, -1, v{REC+k}, vcc')
a.label('L_nomore')
st(2)
a(f's_add_u32 s{sN}, s{sT}, 255')
a(f's_lshr_b32 s{sN}, s{sN}, 8')
a(f's_max_u32 s{sN}, s{sN}, s3')
a(f'v_cvt_f32_u32 v6, s{sN}')
a(f's_lshl_b32 s58, s{sW}, 2')
a('v_rcp_f32 v6, v6')
a(vwait('W2'))
a('s_waitcnt lgkmcnt(0)')
L = []; m = L.append
slot(6, L)
m('v_cmp_lt_u32 s[68:69], s58, v5')
m('v_mul_f32 v6, 0x47800000, v6')
m('s_add_u32 s59, s58, 4')
m('v_cvt_u32_f32 v6, v6')
m('v_add_u32 v4, s58, v7')
m('v_add_u32 v7, 2, v6')
m('v_cmp_eq_u32 vcc, s59, v5')
m('s_mov_b32 s39, 0x100000')
m(f'v_add_u32 v{SP}, 32, v4')
m('v_cndmask_b32 v6, v9, v8, vcc')
m('v_mad_u32_u24 v11, v4, v7, s39')
m(f'v_mad_u32_u24 v7, v{SP}, v7, s39')
m('s_add_u32 s59, s58, 36')
m('v_cmp_eq_u32 vcc, s59, v5')
m('v_lshrrev_b32 v11, 20, v11')
m('v_lshrrev_b32 v7, 20, v7')
m(f'v_cndmask_b32 v{EV}, v9, v8, vcc')
m('v_lshl_add_u32 v4, v11, 4, v4')
m(f'v_lshl_add_u32 v{SP}, v7, 4, v{SP}')
m('s_cmp_eq_u32 s58, 0\ns_cselect_b32 s59, 0, s67')
m('v_lshl_add_u32 v12, s58, 2, v12')
m('v_mov_b32 v11, s59')
m('s_add_u32 s58, s58, 32')
m('v_cmp_lt_u32 vcc, s58, v5')
m(f'v_add_u32 v{SE}, 128, v12')
m(f'v_mov_b32 v{MK}, s67')
m(f's_lshl_b32 s57, s{sN}, 5\ns_lshl_b32 s7, s{sN}, 4\ns_add_u32 s7, s7, 16')
m(f'v_mad_u32_u24 v13, s7, v{cH1}, v13')
blk = [f'ds_write2st64_b32 v13, v{vHW}, v{vHK} offset0:{L_QW//256} offset1:{L_QK//256}',
       's_mov_b64 exec, s[68:69]',
       f'ds_write2st64_b32 v4, v12, v8 offset0:{L_QS//256} offset1:{L_QT//256}',
       f'ds_write2st64_b32 v4, v6, v11 offset0:{L_QW//256} offset1:{L_QK//256}',
       's_mov_b64 exec, vcc',
       f'ds_write2st64_b32 v{SP}, v{SE}, v8 offset0:{L_QS//256} offset1:{L_QT//256}',
       f'ds_write2st64_b32 v{SP}, v{EV}, v{MK} offset0:{L_QW//256} offset1:{L_QK//256}',
       's_mov_b64 exec, -1']
m('\n'.join(blk))
slot(7, L)
m(f's_mul_i32 s59, s7, s{sW}')
m('s_lshl_b32 s59, s59, 1')
m(f'v_mul_u32_u24 v4, s7, v{HH}')
m(f'v_add_u32 v{vQA}, s59, v4')
m(f'v_add_u32 v{vQ1}, v{vQA}, v{cP1}')
m(f'v_add_u32 v{vQP}, v{vQA}, v{cP2}')
m(f'v_mad_u32_u24 v4, s7, v{cP3}, v{cP4}')
m(f'v_add_u32 v{vQE}, s59, v4')
m(f'v_add_u32 v14, s7, v{vQA}')
qm = []
for s in range(4):
    for nu in range(4):
        c = '0' if s == 0 else f'v[{QACC+4*nu}:{QACC+4*nu+3}]'
        qm.append(f'v_mfma_f32_16x16x32_bf16 v[{QACC+4*nu}:{QACC+4*nu+3}], v[{W2F+4*s}:{W2F+4*s+3}], v[{XF+16*s+4*nu}:{XF+16*s+4*nu+3}], {c}')
QSP = opt('qsp', 2)
for n_, l in enumerate(L):
    if n_ % QSP == 0 and qm: a(qm.pop(0))
    a(l)
for l in qm: a(l)
slot(8)
a('s_mov_b32 s58, 0x00010001')
a(f's_and_b32 s58, s58, s{sQM}')
a('s_mov_b32 s59, s58')
a(f's_mov_b64 exec, s[{sQM}:{sQM+1}]')
a.nop(opt('qnop', 1))
for nu in range(4):
    if nu == 3: a('s_mov_b64 exec, s[58:59]')
    for r in range(4): a(f'v_mul_f32 v{QACC+4*nu+r}, {NEGLOG2E:#x}, v{QACC+4*nu+r}')
    for r in range(2): a(f'v_cvt_pk_bf16_f32 v{QACC+4*nu+r}, v{QACC+4*nu+2*r}, v{QACC+4*nu+2*r+1}')
    a(f'ds_write_b64 v{vQW}, v[{QACC+4*nu}:{QACC+4*nu+1}] offset:{16*NSTR*nu}')
a('s_mov_b64 exec, -1')
slot(9)
a('s_waitcnt lgkmcnt(0)')
st(0); st(2)
a('s_barrier')
st(2); st(4)
a(f'ds_read_b32 v6, v{vQE} offset:{L_QS+16}')
a(f'ds_read_b32 v7, v{vQP} offset:{L_QS+16}')
a(f'ds_read_b32 v{SE}, v{vQE} offset:{L_QS+32}')
a(f'ds_read_b32 v{SP}, v{vQP} offset:{L_QS+32}')
a(f'ds_read_b32 v12, v14 offset:{L_QT-4}')
a(f'ds_read_b32 v13, v14 offset:{L_QW-4}')
a('v_mov_b32 v5, 0')
a(f'ds_write_b32 v{vQA}, v5 offset:{L_QK+16}')
for l in hq: a(l); vm.append('h0')
if X('fair0'): a('s_barrier')
st(2); st(4)
slot(10)
assert not wq
a(f's_mov_b32 m0, s{sM0B}')
a('s_waitcnt lgkmcnt(0)')
a(f'v_add_u32 v6, v6, v{I4}')
a(f'ds_read_b32 v{EOr}, v6 offset:{L_EO}')
a(f'ds_read_b128 v[{PTr}:{PTr+3}], v7')
for l in dma(1): a(l)
vm += ['h1']*4
st(4)
rm = []
for s in range(4):
    for nu in range(4):
        c = '0' if s == 0 else f'v[{R+4*nu}:{R+4*nu+3}]'
        rm.append(f'v_mfma_f32_16x16x32_bf16 v[{R+4*nu}:{R+4*nu+3}], v[{WU1F+4*s}:{WU1F+4*s+3}], v[{XF+16*s+4*nu}:{XF+16*s+4*nu+3}], {c}')
a('v_cmp_eq_u32 vcc, 0, v13')
a(f's_lshl_b32 s58, s{sW}, 10')
a(f's_add_u32 s58, s58, {L_CARRY-L_ZERO}')
a(f'v_lshl_add_u32 v4, v{HH}, 9, s58')
a('s_mov_b64 exec, vcc')
a(f'ds_write_b32 v12, v4 offset:{L_NODE+768}')
a('s_mov_b64 exec, -1')
a(f's_mul_i32 s58, s57, s{sW}')
a(f's_sub_i32 s58, s{sT}, s58')
a('s_max_i32 s58, s58, 0')
a('s_add_u32 s58, s58, 15')
a('s_lshr_b32 s58, s58, 4')
a(f's_min_u32 s{sN}, s{sN}, s58')
a(f's_add_u32 s{sN}, s{sN}, 1')
a(f's_mov_b32 s{sPASS}, 1')
a(f's_mov_b32 s{sTC}, 2')
a('s_waitcnt lgkmcnt(0)')
if not X('nofair'): a('s_barrier')
a(f'v_add_u32 v{EV}, v{EOr}, v{H16}')
a(f's_cmp_gt_u32 s{sN}, 1')
a(f's_cselect_b32 s{PS+2}, s{PS+2}, 0')
a(f's_cselect_b32 s{Ed+2}, s{Ed+2}, 0')
for i in range(4): a(f'v_add_u32 v{DA+i}, v{PTr+i}, v{LC}')
a(f's_mov_b32 m0, s{sM0A}')
for i in range(4):
    a(f'v_mov_b32 v{AA+i}, 0')
    a(f'v_mov_b32 v{KK+i}, 0')
    a(f'v_mov_b32 v{MB+12+i}, 0')
a(f'v_ashrrev_i32 v{MK}, 31, v{EV}')
a(f'v_not_b32 v{MK}, v{MK}')
if BENCH: a(f's_mov_b32 s{sN}, {opt("bn", 50)}')
def qbread(buf, beta):
    return [f'ds_read_b64_tr_b16 v[{QB[buf]}:{QB[buf]+1}], v{TA} offset:{64*beta}']
def paread(half):
    return [f'ds_read_b128 v[{PA[half]+4*x}:{PA[half]+4*x+3}], v{RA+(x>>1)} offset:{HB*half+32*(x&1)}' for x in range(4)]
def mfmas(beta):
    z = ZB[beta & 1]; zz = f'v[{z}:{z+15}]'
    q = QB[beta & 1]; p = PA[beta >> 1] + 8*(beta & 1)
    return [f'v_mfma_f32_32x32x8_bf16 {zz}, v[{TM}:{TM+1}], v[{q}:{q+1}], 0',
            f'v_mfma_f32_32x32x16_bf16 {zz}, v[{EC}:{EC+3}], v[{W3+4*beta}:{W3+4*beta+3}], {zz}',
            f'v_mfma_f32_32x32x16_bf16 {zz}, v[{p}:{p+3}], v[{I0}:{I0+3}], {zz}',
            f'v_mfma_f32_32x32x16_bf16 {zz}, v[{p+4}:{p+7}], v[{I1}:{I1+3}], {zz}']
for l in qbread(0, 0) + qbread(1, 1): a(l)
a(f's_bitcmp1_b32 s{sW}, {opt("wbit", 2)}')
a('s_cbranch_scc%d L_prime_B' % opt('wsel', 1))
def prime2(tag):
    a(f's_cmp_eq_u32 s{sFIRST}, 0')
    a(vwait('WU1'))
    a(f's_cbranch_scc1 L_noq{tag}')
    for l in rm: a(l)
    a(f's_mov_b32 s{sFIRST}, 0')
    a.label(f'L_noq{tag}')
    ns = nstamp[0]
    st(4)
    a('s_waitcnt vmcnt(4)')
    st(0); st(2); st(4)
    if STAMP and FINE == 0: a('s_memrealtime s[88:89]')
    for l in paread(0): a(l)
    for i in range(4):
        a(f'v_mov_b32 v{NF+i}, 0')
        a(f'v_mov_b32 v{D+i}, 1.0')
    mf0 = mfmas(0)
    a('s_waitcnt lgkmcnt(0)' if STAMP else 's_waitcnt lgkmcnt(4)')
    a(mf0[0])
    a(mf0[1])
    a('s_waitcnt lgkmcnt(0)')
    a(mf0[2])
    a(mf0[3])
    a(eload(EN))
    for l in dma(0): a(l)
    a.nop(5)
    st(4)
    if tag == 'A': nstamp[0] = ns
    a(f's_cmp_lg_u32 s{sSLOW}, 0')
    a('s_cbranch_scc1 L_pre_s')

def dswr(safe):
    if not safe: return [f'ds_write_b128 v{AA+q}, v[{MB+4*q}:{MB+4*q+3}]' for q in range(4)]
    o = []
    for q in range(4):
        o += [f'ds_add_f32 v{AA+q}, v{MB+4*q+b} offset:{4*b}' for b in range(4)] + ['s_waitcnt lgkmcnt(0)']
    return o
def mchain(beta):
    m = [MB+4*q+beta for q in range(4)]
    o = []
    for q in range(4):
        o += [f'v_and_b32 v{m[q]}, v{m[(q-1)&3]}, v{KK+q}', f'v_fmac_f32 v{m[q]}, v{NF+q}, v{RCq(q)}']
    return o
def loop(safe, mode):
    sfx = '_s' if safe else '_' + mode
    if safe:
        a.label('L_pre_s')
        for i in range(12): a(f'v_mov_b32 v{MB+i}, 0')
    bz = 0 if BENCH else 16
    TPs = []; PPs = []
    for beta in range(4):
        body = []; e = body.append
        z = ZB[beta & 1]
        tr = [f'v_rcp_f32 v{RCq(q)}, v{D+q}' for q in range(4)] + [f'v_exp_f32 v{Uq(r>>2,r&3)}, v{z+r}' for r in range(16)]
        mf = mfmas((beta+1) & 3)
        if X('nomf2'): mf = mf[:2] + ['s_nop 0', 's_nop 0']
        if X('nomf3'): mf = mf[:1] + ['s_nop 0']*3
        if X('noexp'): tr = [t.replace('v_exp_f32', 'v_lshlrev_b32').replace(', v', ', 0, v') if 'exp' in t else t for t in tr]
        qb = qbread(beta & 1, (beta+2) & 3)
        early = []; late = []; trx = []
        if beta == 0:
            fill = qb + [f'ds_read_b128 v[{PTr}:{PTr+3}], v{SP}', f'ds_read_b32 v{TAr}, v{vQ1} offset:{L_QT+16}', 's_waitcnt vmcnt(5)'] + paread(1)
            ext = [f'v_add_u32 v{AA+q}, v{AA+q}, v{CA}' for q in range(4)] + [f'v_add_u32 v{SE}, v{SE}, v{I4}']
        if beta == 1:
            early = [f's_mov_b32 m0, s{sM0B}', f'ds_read_b128 v[{KK}:{KK+3}], v{vQA} offset:{L_QK}']
            fill = dma(1) + qb + [f'ds_read_b32 v{EOr}, v{SE} offset:{L_EO}'] + dswr(safe)
            late = ['s_waitcnt lgkmcnt(6)']
            ext = [f'v_add_u32 v{DA+i}, v{PTr+i}, v{LC}' for i in range(4)] + [f'v_add_u32 v{TA}, v{TAr}, v{CT}']
        if beta == 2:
            fill = qb + [f's_cmp_lt_u32 s{sTC}, s{sN}', f's_cselect_b32 s{PS+2}, s{PS+2}, 0', f's_cselect_b32 s{Ed+2}, s{Ed+2}, 0', f's_add_u32 s{sTC}, s{sTC}, 1',
                         's_waitcnt vmcnt(4)'] + paread(0)
            ext = [f'v_and_b32 v{TM+i}, v{TC+i}, v{MK}' for i in range(2)] + [f'v_mov_b32 v{EC+i}, v{EN+i}' for i in range(4)] + [f'v_add_u32 v{EV}, v{EOr}, v{H16}']
        if beta == 3:
            fill = [f's_mov_b32 m0, s{sM0A}'] + qb + [eload(EN)] + dma(0) + [f'ds_read_b128 v[{AA}:{AA+3}], v{vQA} offset:{L_QW}',
                    f'ds_read_b32 v{SP}, v{vQP} offset:{L_QS+48}', f'ds_read_b32 v{SE}, v{vQE} offset:{L_QS+48}',
                    f's_sub_u32 s58, s{sTC}, 2', f's_cmp_lt_u32 s58, s{sN}']
            tr = tr + [f'v_ashrrev_i32 v{MK}, 31, v{EV}']
            ext = [f'v_not_b32 v{MK}, v{MK}'] + [f'v_add_u32 v{p}, {bz}, v{p}' for p in (vQA, vQ1, vQP, vQE)]
        if X('it'):
            fill = fill + ['s_memtime s[100:101]']
            early = early + [f's_mov_b32 s91, m0', f's_mov_b32 m0, s90', 'v_writelane_b32 v250, s100, m0', 's_mov_b32 m0, s91', 's_add_u32 s90, s90, 1'] if beta != 0 else [f's_mov_b32 s91, m0', f's_mov_b32 m0, s90', 'v_writelane_b32 v250, s100, m0', 's_mov_b32 m0, s91', 's_add_u32 s90, s90, 1']
        if X('nodsw'): fill = [l for l in fill if not l.startswith('ds_write')]
        if X('nords'): fill = [l for l in fill if not l.startswith('ds_read')]
        if X('nodma'): fill = [l for l in fill if not l.startswith('buffer_')]
        MSP = opt('msp', 4)
        FAT = opt('fatA', 0) if mode == 'A' else len(tr) - opt('fatB', 0)
        if X('noext'): ext = []
        e('s_setprio %d' % (opt('pA', 1) if mode == 'A' else opt('pB', 2)))
        e('s_waitcnt lgkmcnt(0)')
        for l in early: e(l)
        if FAT == 0:
            for l in fill: e(l)
        mi = 0
        for idx, t in enumerate(tr):
            e(t)
            if idx % MSP == 0 and mi < 4: e(mf[mi]); mi += 1
            if idx == FAT - 1:
                for l in fill: e(l)
        for l in late: e(l)
        TPs.append(body); body = []; e = body.append
        e('s_setprio %d' % (opt('qA', 3) if mode == 'A' else opt('qB', 0)))
        mc = mchain((beta-1) & 3)
        if not safe:
            pl = [f'v_add_f32 v{D+q}, 1.0, v{Uq(q,0)}' for q in range(4)]
            for stp in range(1, 4):
                for q in range(4):
                    dst = NF+q if stp == 3 else z+4*q+stp
                    pl.append(f'v_fma_f32 v{dst}, v{z+4*q+stp}, v{D+q}, v{z+4*q+stp-1}')
                for q in range(4):
                    dst = NF+q if stp == 3 else z+4*q+stp
                    pl.append(f'v_fmac_f32 v{dst}, v{z+4*q+stp-1}, v{Uq(q,stp)}')
                for q in range(4): pl.append(f'v_fmac_f32 v{D+q}, v{D+q}, v{Uq(q,stp)}')
            gd = [f'v_fmac_f32 v{G}, v{D}, v{D+1}', f'v_fmac_f32 v{G+1}, v{D+2}, v{D+3}']
            if X('nopp'): pl = pl[:24:6]*6
            ci = 0
            for idx, l in enumerate(pl):
                if idx % 3 == 0 and ci < 8: e(mc[ci]); ci += 1
                e(l)
            for l in ext + gd: e(l)
            if mode == 'A' and opt('qt', 0): body.insert(len(body) - opt('qt', 0), 's_setprio 3')
        else:
            for l in mc: e(l)
            for r in range(16): e(f'v_add_f32 v{U+r}, 1.0, v{U+r}')
            for r in range(16): e(f'v_rcp_f32 v{U+r}, v{U+r}')
            for q in range(4): e(f'v_mul_f32 v{NF+q}, v{z+4*q}, v{Uq(q,0)}')
            for stp in range(1, 4):
                for q in range(4): e(f'v_fmac_f32 v{NF+q}, v{z+4*q+stp}, v{Uq(q,stp)}')
            for l in ext: e(l)
        PPs.append(body)
    if mode == 'A':
        if not safe: a('.p2align 6')
        a.label('L_loop' + sfx)
        for b in range(4):
            for l in TPs[b] + PPs[b]: a(l)
        a(f's_cbranch_scc1 L_loop{sfx}')
    else:
        a('.p2align 6')
        a.label('L_loop' + sfx)
        for l in PPs[3]: a(l)
        a.label('L_mid' + sfx)
        for b in range(4):
            for l in TPs[b] + (PPs[b] if b < 3 else []): a(l)
        a(f's_cbranch_scc1 L_loop{sfx}')
        for l in PPs[3]: a(l)
    if mode == 'B':
        a.label('L_drain'); a('s_setprio 0')
    if mode == 'A' and not safe:
        a('s_branch L_drain'); return
    for q in range(4): a(f'v_rcp_f32 v{RCq(q)}, v{D+q}')
    a('s_waitcnt lgkmcnt(0)')
    for q in range(4): a(f'v_add_u32 v{AA+q}, v{AA+q}, v{CA}')
    for l in mchain(3): a(l)
    for l in dswr(safe): a(l)
    if not safe:
        a(f's_lshl_b32 s58, s{sW}, 10')
        a(f'v_lshl_add_u32 v4, v{LANE}, 4, s58')
        a(f'ds_write_b128 v4, v[{MB+12}:{MB+15}] offset:{L_CARRY}')
prime2('A')
loop(False, 'A')
loop(True, 'A')
a('s_branch L_done')
a.label('L_prime_B')
prime2('B')
a('s_branch L_mid_B')
loop(False, 'B')
a.label('L_done')
st(0); st(3)
if STAMP and FINE == 0: a('s_memrealtime s[90:91]')
a('s_add_u32 s56, s56, 0x10000')
for s in range(4): a(fragl(WU2, 56, s))
a('v_lshrrev_b32 v4, 4, v0')
a(f'v_mul_u32_u24 v5, {NSTR}, v4')
a(f'v_add_u32 v11, {L_NODE+NSTR}, v5')
a('v_mov_b32 v12, 0')
a(f'ds_read_b128 v[{PTr}:{PTr+3}], v12 offset:{L_MISC}')
a('v_and_b32 v6, 15, v0')
a('v_lshl_add_u32 v5, v6, 5, v11')
a('v_and_b32 v7, 15, v4')
a('v_xor_b32 v7, v7, v6')
a('v_lshlrev_b32 v7, 4, v7')
a('v_lshl_add_u32 v7, v4, 8, v7')
a(f'v_add_u32 v7, {L_STG}, v7')
a('s_waitcnt vmcnt(4) lgkmcnt(0)')
a(f's_cmp_eq_u32 s{sBML}, 0')
a('s_cbranch_scc0 L_np2')
a(f's_mov_b32 s{sBML}, 1')
for i in range(4): a(f'v_readfirstlane_b32 s{BM+i}, v{PTr+i}')
a.label('L_np2')
a(f's_or_b64 s[58:59], s[{BM}:{BM+1}], s[{BM+2}:{BM+3}]')
a(f's_cselect_b32 s58, 1, s{sMORE}')
a('s_cmp_lg_u32 s58, 0')
st(3)
a('s_barrier')
st(0); st(3)
a('s_cbranch_scc1 L_again')
AG = 16
a(f'ds_read_b32 v{CIr}, v11 offset:768')
a(f'ds_read_b32 v{CIr+1}, v11 offset:{768+32*NSTR}')
a('v_cmp_gt_u32 vcc, 272, v0')
for u in range(2): a(f'ds_read_b128 v[{AG+4*u}:{AG+4*u+3}], v5 offset:{16*u}')
a('s_waitcnt lgkmcnt(%d)' % (0 if STAMP else 2))
a(f'v_lshl_add_u32 v8, v6, 5, v{CIr}')
a(f'v_lshl_add_u32 v9, v6, 5, v{CIr+1}')
for u in range(2): a(f'ds_read_b128 v[{AG+8+4*u}:{AG+8+4*u+3}], v8 offset:{L_ZERO+16*u}')
a('s_mov_b64 exec, vcc')
for u in range(2): a(f'ds_read_b128 v[{AG+16+4*u}:{AG+16+4*u+3}], v5 offset:{32*NSTR+16*u}')
for u in range(2): a(f'ds_read_b128 v[{AG+24+4*u}:{AG+24+4*u+3}], v9 offset:{L_ZERO+16*u}')
a('s_mov_b64 exec, -1')
a(f'v_and_b32 v4, 15, v{LANE}')
a(f'v_lshrrev_b32 v6, 4, v{LANE}')
a('v_xor_b32 v5, v6, v4')
a('v_lshlrev_b32 v5, 4, v5')
a('v_lshl_add_u32 v5, v4, 8, v5')
a(f'v_add_u32 v5, {L_STG}, v5')
a(f's_lshl_b32 s58, s{sSAFE}, 3')
a(f's_add_u32 s58, s58, s{sW}')
a('s_cmp_lt_u32 s58, 4')
a('s_cbranch_scc0 L_nohead')
a('v_lshlrev_b32 v8, 5, v0')
for u in range(2): a(f'ds_read_b128 v[{AG+32+4*u}:{AG+32+4*u+3}], v8 offset:{L_HEAD+16*u}')
a('s_waitcnt lgkmcnt(0)')
for r in range(8): a(f'v_add_f32 v{AG+r}, v{AG+r}, v{AG+32+r}')
a.label('L_nohead')
a('s_waitcnt lgkmcnt(4)')
for r in range(8): a(f'v_add_f32 v{AG+r}, v{AG+r}, v{AG+8+r}')
for r in range(4): a(f'v_cvt_pk_bf16_f32 v{AG+8+r}, v{AG+2*r}, v{AG+2*r+1}')
a(f'ds_write_b128 v7, v[{AG+8}:{AG+11}]')
a('s_mov_b64 exec, vcc')
a('s_cbranch_execz L_cv2')
a('s_waitcnt lgkmcnt(1)')
for r in range(8): a(f'v_add_f32 v{AG+16+r}, v{AG+16+r}, v{AG+24+r}')
for r in range(4): a(f'v_cvt_pk_bf16_f32 v{AG+24+r}, v{AG+16+2*r}, v{AG+16+2*r+1}')
a(f'ds_write_b128 v7, v[{AG+24}:{AG+27}] offset:8192')
a.label('L_cv2')
a('s_mov_b64 exec, -1')
for s in range(1, 4): a(f'v_xor_b32 v{11+s}, {64*s}, v5')
a('s_waitcnt lgkmcnt(0)')
st(3)
a('s_barrier')
st(3)
EACC = 96
for s in range(4):
    for nu in range(4):
        if s == 3 and nu == 3: a('s_waitcnt lgkmcnt(14)')
        a(f'ds_read_b128 v[{XF+16*s+4*nu}:{XF+16*s+4*nu+3}], v{11+s if s else 5} offset:{4096*nu}')
a('v_lshlrev_b32 v7, 16, v4')
a('v_lshl_add_u32 v7, v6, 3, v7')
a(f's_lshl_b32 s58, s{sW}, 5')
a(f's_add_u32 s58, s58, s{sNODE0}')
a(f'v_add_f32 v8, v{G}, v{G+1}')
a('v_mov_b32 v9, 0x71800000')
a('v_cmp_nlt_f32 s[68:69], v8, v9')
a('v_cmp_eq_u32 s[56:57], 0, v4')
a('s_waitcnt vmcnt(0)')
for s in range(4):
    for nu in range(4):
        a(f's_waitcnt lgkmcnt({15-4*s-nu})')
        c = '0' if s == 0 else f'v[{EACC+4*nu}:{EACC+4*nu+3}]'
        a(f'v_mfma_f32_16x16x32_bf16 v[{EACC+4*nu}:{EACC+4*nu+3}], v[{WU2+4*s}:{WU2+4*s+3}], v[{XF+16*s+4*nu}:{XF+16*s+4*nu+3}], {c}')
a('v_mov_b32 v9, 0x207')
a.nop(4)
st(3)
Y = 16
for r in range(16): a(f'v_fmamk_f32 v{Y+r}, v{EACC+r}, {NEGLN2:#x}, v{R+r}')
for r in range(16): a(f'v_mul_f32 v{Y+16+r}, {NEGLOG2E:#x}, v{Y+r}')
for r in range(16): a(f'v_exp_f32 v{Y+16+r}, v{Y+16+r}')
for r in range(16): a(f'v_add_f32 v{Y+16+r}, 1.0, v{Y+16+r}')
for r in range(16): a(f'v_rcp_f32 v{Y+16+r}, v{Y+16+r}')
for r in range(16): a(f'v_mul_f32 v{Y+r}, v{Y+r}, v{Y+16+r}')
for r in range(8): a(f'v_cvt_pk_bf16_f32 v{Y+32+r}, v{Y+2*r}, v{Y+2*r+1}')
for nu in range(4):
    if nu == 3: a('s_mov_b64 exec, s[56:57]')
    a(f'buffer_store_dwordx2 v[{Y+32+2*nu}:{Y+33+2*nu}], v7, s[{Od}:{Od+3}], s58 offen')
    if nu < 3: a('s_add_u32 s58, s58, 0x100000')
    a(f'v_cmp_class_f32 vcc, v{EACC+4*nu}, v9')
    a('s_or_b64 s[68:69], s[68:69], vcc')
a('s_mov_b64 exec, -1')
st(0); st(3)
if STAMP:
    a('s_waitcnt vmcnt(0) lgkmcnt(0)')
    stamp()
    a('s_waitcnt lgkmcnt(0)')
    a(f's_lshl_b32 s58, s2, 3')
    a(f's_add_u32 s58, s58, s{sW}')
    a('s_lshl_b32 s58, s58, 7')
    a(f's_add_u32 s58, s58, {WS_STAMP:#x}')
    a('v_mov_b32 v4, 0')
    a('s_mov_b64 exec, 1')
    for i in range(nstamp[0]):
        a(f'v_mov_b32 v6, s{70+2*i}')
        a(f'buffer_store_dword v6, v4, s[{WSd}:{WSd+3}], s58 offen offset:{4*i}')
    if FINE == 0:
        a('s_sub_u32 s90, s90, s88'); a('v_mov_b32 v6, s90'); a(f'buffer_store_dword v6, v4, s[{WSd}:{WSd+3}], s58 offen offset:{4*31}')
    a('s_mov_b64 exec, -1')
    if X('it'):
        a('s_mov_b64 exec, 0x7fffffff'); a(f'v_lshlrev_b32 v4, 2, v{LANE}'); a(f'buffer_store_dword v250, v4, s[{WSd}:{WSd+3}], s58 offen offset:4'); a('s_mov_b64 exec, -1')
    print('nstamps', nstamp[0])
if BENCH: a('s_endpgm')
a(f's_cmp_lg_u32 s{sSAFE}, 0')
a('s_cbranch_scc1 L_main_end')
a('v_mov_b32 v4, 0')
a('s_cmp_eq_u64 s[68:69], 0')
a('s_cbranch_scc1 L_good')
a('v_mov_b32 v6, 1')
a(f'ds_write_b32 v4, v6 offset:{L_MISC+16}')
a('s_waitcnt lgkmcnt(0)')
a.label('L_good')
a('s_barrier')
a(f'ds_read_b32 v6, v4 offset:{L_MISC+16}')
a('s_waitcnt lgkmcnt(0)')
a('v_readfirstlane_b32 s58, v6')
a('s_cmp_eq_u32 s58, 0')
a('s_cbranch_scc1 L_main_end')
a(f's_mov_b32 s{sSAFE}, 1')
a('s_waitcnt vmcnt(0)')
a('s_barrier')
celladdr()
a('s_branch L_cells')
a.label('L_again')
a(f's_cmp_lg_u32 s{sMORE}, 0')
a('s_cbranch_scc1 L_reinit')
a(f's_ff1_i32_b64 s58, s[{BM}:{BM+1}]')
a('s_cmp_eq_i32 s58, -1')
a('s_cbranch_scc1 L_pophi')
a(f's_bitset0_b64 s[{BM}:{BM+1}], s58')
a('s_branch L_popped')
a.label('L_pophi')
a(f's_ff1_i32_b64 s58, s[{BM+2}:{BM+3}]')
a(f's_bitset0_b64 s[{BM+2}:{BM+3}], s58')
a('s_add_u32 s58, s58, 64')
a.label('L_popped')
a(f's_mul_i32 s59, s58, {CH*32}')
a(f'v_mov_b32 v{CB}, s59')
a(f's_mul_i32 s59, s58, {CH*4}')
a('s_lshl_b32 s58, s58, 2')
a(f's_add_u32 s58, s58, {WS_OVFLEN:#x}')
a('v_mov_b32 v4, 0')
a('v_lshlrev_b32 v5, 5, v0')
a(f'buffer_load_dword v6, v4, s[{WSd}:{WSd+3}], s58 offen')
a(f's_add_u32 s58, s59, {WS_OVFREC:#x}')
a(f'buffer_load_dwordx4 v[{REC}:{REC+3}], v5, s[{WSd}:{WSd+3}], s58 offen')
a(f'buffer_load_dwordx4 v[{REC+4}:{REC+7}], v5, s[{WSd}:{WSd+3}], s58 offen offset:16')
a(f's_add_u32 s58, s59, {WS_OVFBKT:#x}')
a(f'buffer_load_dwordx4 v[{U}:{U+3}], v5, s[{WSd}:{WSd+3}], s58 offen')
a(f'buffer_load_dwordx4 v[{U+4}:{U+7}], v5, s[{WSd}:{WSd+3}], s58 offen offset:16')
a(f's_mul_i32 s57, s2, {CS}')
a('s_waitcnt vmcnt(0)')
for k in range(8):
    a(f'v_add_u32 v8, {4*k}, v5')
    a('v_cmp_lt_u32 vcc, v8, v6')
    a(f'v_cmp_eq_u32 s[58:59], s57, v{U+k}')
    a('s_and_b64 vcc, vcc, s[58:59]')
    a.nop(1)
    a(f'v_cndmask_b32 v{REC+k}, -1, v{REC+k}, vcc')
a('s_branch L_reinit')
a.label('L_main_end')
a('s_endpgm')
print('vgprs', NVG, 'lds', LDS_MAIN)

hdr = open('gather_scatter__mpnn_edge_mlp__graph.s.ref').read().split('; Override')[0]
hdr += f'; @launch kernel=pre_kernel grid=({PRE_WGS},1,1) block=(512,1,1) lds={LDS_PRE}\n'
hdr += f'; @launch kernel=main_kernel grid=(256,1,1) block=(512,1,1) lds={LDS_MAIN}\n'
hdr += '.amdgcn_target "amdgcn-amd-amdhsa--gfx950"\n.text\n'
def kd(name, vg):
    return f'''.amdhsa_kernel {name}
  .amdhsa_next_free_vgpr {vg}
  .amdhsa_next_free_sgpr 102
  .amdhsa_accum_offset {vg}
  .amdhsa_group_segment_fixed_size 0
  .amdhsa_kernarg_size 72
  .amdhsa_user_sgpr_count 2
  .amdhsa_user_sgpr_kernarg_segment_ptr 1
  .amdhsa_system_sgpr_workgroup_id_x 1
  .amdhsa_float_denorm_mode_32 3
.end_amdhsa_kernel
'''
tail = '.section .rodata,"a"\n.p2align 6\n' + kd('pre_kernel', 160) + '.p2align 6\n' + kd('main_kernel', 256)
open(OUTF, 'w').write(hdr + a.text() + tail)
for e in check(a.lines): print(e)
print('lines', len(a.lines))
```

```python
import sys, struct
from asmlib import *

STAMP = '--stamp' in sys.argv
OUTF = [a for a in sys.argv[1:] if not a.startswith('--')][0]

N, E = 12500, 400000
NPB = 49
NCH, CH = 125, 3200
WS_P = 4096
WS_CELLS = 0x400000
WS_FRAG = 0x800000
WS_OVFLEN = 0x900000
WS_OVFREC = 0x910000
WS_OVFBKT = 0xB00000
WS_STAMP = 0xD00000
WS_SIZE = 0x1000000
NEGLOG2E = struct.unpack('<I', struct.pack('<f', -1.4426950408889634))[0]
NEGLN2 = struct.unpack('<I', struct.pack('<f', -0.6931471805599453))[0]
PADV = 0x80000000
GR = int(([x.split('=')[1] for x in sys.argv if x.startswith('--gr=')] or [100])[0])
NGEMM = -(-N // GR)
PRE_WGS = NCH + NGEMM + 4

X = lambda f: ('--x-'+f) in sys.argv
opt = lambda n, d: int(([x.split('=')[1] for x in sys.argv if x.startswith('--'+n+'=')] or [d])[0])
LDS_PRE = 98304
a = Asm()
def srd(d, base, size):
    a(f's_mov_b32 s{d}, s{base}')
    a(f's_and_b32 s{d+1}, s{base+1}, 0xffff')
    a(f's_mov_b32 s{d+2}, {size:#x}')
    a(f's_mov_b32 s{d+3}, 0x20000')

PST = '--pstamp' in sys.argv
def ps(i):
    if PST: a(f's_memtime s[{70+2*i}:{71+2*i}]')
def pend():
    if PST:
        ps(4)
        a('s_waitcnt vmcnt(0) lgkmcnt(0)')
        ps(5)
        a('s_memrealtime s[84:85]')
        a('s_waitcnt lgkmcnt(0)')
        a('s_lshl_b32 s58, s2, 3')
        a('s_add_u32 s58, s58, s3')
        a('s_lshl_b32 s58, s58, 6')
        a(f's_add_u32 s58, s58, {0xD80000:#x}')
        a('v_mov_b32 v4, 0')
        a('s_mov_b64 exec, 1')
        for i in range(8):
            a(f'v_mov_b32 v6, s{70+2*i}')
            a(f'buffer_store_dword v6, v4, s[36:39], s58 offen offset:{4*i}')
        a('s_mov_b64 exec, -1')
a('.globl pre_kernel\n.p2align 8\n.type pre_kernel,@function')
a.label('pre_kernel')
a(f's_cmp_ge_u32 s2, {PRE_WGS}')
a('s_cbranch_scc1 L_pre_end')
ps(0)
if PST: a('s_memrealtime s[82:83]')
XS, SRC, DST, W, WS = 20, 24, 28, 32, 36
a(f's_load_dwordx2 s[{DST}:{DST+1}], s[0:1], 24')
a(f's_load_dwordx2 s[{XS}:{XS+1}], s[0:1], 0')
a(f's_load_dwordx2 s[{SRC}:{SRC+1}], s[0:1], 16')
a('s_load_dwordx4 s[12:15], s[0:1], 32')
a(f's_load_dwordx2 s[{WS}:{WS+1}], s[0:1], 64')
a('v_lshrrev_b32 v2, 6, v0')
a('v_and_b32 v3, 63, v0')
a('v_readfirstlane_b32 s3, v2')
a(f's_mov_b32 s{WS+2}, {WS_SIZE:#x}'); a(f's_mov_b32 s{WS+3}, 0x20000')
a(f's_cmp_ge_u32 s2, {NCH}')
a('s_cbranch_scc1 L_pre_gemm')
CS = 132
L_OVC = 256*CS
D0, S0, B4, RK, TK = 8, 16, 24, 32, 48
SC1 = '' if X('nosc1') else ' sc1'
a(f's_mul_i32 s40, s2, {CH*4}')
a('s_add_u32 s41, s40, 8192')
a('v_lshlrev_b32 v1, 4, v0')
for d in (SRC, DST): a(f's_mov_b32 s{d+2}, {E*4:#x}'); a(f's_mov_b32 s{d+3}, 0x20000')
a('v_mul_u32_u24 v4, 12, v0')
a('s_cmp_ge_u32 s3, 6')
a('s_waitcnt lgkmcnt(0)')
ps(1)
a(f'buffer_load_dwordx4 v[8:11], v1, s[{DST}:{DST+3}], s40 offen')
a('s_cbranch_scc1 L_p_no2')
a(f'buffer_load_dwordx3 v[12:14], v4, s[{DST}:{DST+3}], s41 offen')
a(f'buffer_load_dwordx3 v[20:22], v4, s[{SRC}:{SRC+3}], s41 offen')
a.label('L_p_no2')
a(f'buffer_load_dwordx4 v[16:19], v1, s[{SRC}:{SRC+3}], s40 offen')
a('v_min_u32 v40, 256, v0')
a('v_cmp_gt_u32 vcc, 256, v0')
a(f'v_mul_u32_u24 v40, {CS}, v40')
a('v_mov_b32 v42, 4')
a('v_mov_b32 v41, 0')
a('v_cndmask_b32 v43, v41, v42, vcc')
a('ds_write_b32 v40, v43')
for k in range(4, 7): a(f'v_mov_b32 v{RK+k}, 0')
a(f'v_lshlrev_b32 v{TK}, 16, v0')
a(f'v_add_u32 v{TK}, 0x4000000, v{TK}')
for k in range(1, 4): a(f'v_add_u32 v{TK+k}, {k<<14:#x}, v{TK}')
a(f'v_mul_u32_u24 v{TK+4}, {3<<14:#x}, v0')
a(f'v_add_u32 v{TK+4}, {0x4000000+(2048<<14):#x}, v{TK+4}')
for k in range(5, 7): a(f'v_add_u32 v{TK+k}, {(k-4)<<14:#x}, v{TK+4}')
a(f's_mov_b32 s46, {CS}')
a('v_lshrrev_b32 v44, 3, v0')
a('v_and_b32 v46, 7, v0')
a(f'v_mul_u32_u24 v45, {CS}, v44')
a('v_lshlrev_b32 v47, 14, v44')
a('v_lshl_add_u32 v47, v46, 4, v47')
a('v_and_b32 v60, 4, v0')
a('v_lshlrev_b32 v60, 4, v60')
a('v_and_b32 v46, 3, v0')
a('v_lshl_add_u32 v56, v46, 2, v45')
a('v_add_u32 v56, v56, v60')
for k in range(1, 4): a(f'v_add_u32 v{56+k}, {64*CS*k}, v56')
a(f's_lshl_b32 s47, s2, 7')
a(f's_add_u32 s47, s47, {WS_CELLS:#x}')
a('s_waitcnt lgkmcnt(0)')
a('s_barrier')
def part1(k):
    a(f'v_mul_u32_u24_sdwa v{B4+k}, s46, v{D0+k} dst_sel:DWORD dst_unused:UNUSED_PAD src0_sel:DWORD src1_sel:BYTE_0')
    a(f'v_lshlrev_b32_sdwa v{D0+k}, 26, v{D0+k} dst_sel:DWORD dst_unused:UNUSED_PAD src0_sel:DWORD src1_sel:BYTE_1')
    a(f'ds_add_rtn_u32 v{RK+k}, v{B4+k}, v42')
def part2(k):
    a(f'v_add3_u32 v{S0+k}, v{S0+k}, v{D0+k}, v{TK+k}')
def part3(k):
    a(f'v_min_u32 v44, 128, v{RK+k}')
    a(f'v_add_u32 v44, v44, v{B4+k}')
    a(f'ds_write_b32 v44, v{S0+k}')
a('s_cmp_ge_u32 s3, 6')
a('s_cbranch_scc1 L_p_short')
a('s_waitcnt vmcnt(3)')
ps(2)
for k in range(4): part1(k)
a('s_waitcnt vmcnt(2)')
for k in range(4, 7): part1(k)
a('s_waitcnt vmcnt(1)')
for k in range(4, 7): part2(k)
a('s_waitcnt lgkmcnt(0)')
for k in range(4, 7): part3(k)
a('s_branch L_p_join')
a.label('L_p_short')
if X('ptlb'):
    a('v_lshlrev_b32 v12, 16, v3')
    a(f'buffer_load_dword v13, v12, s[{WS}:{WS+3}], s47 offen')
a('s_waitcnt vmcnt(%d)' % (2 if X('ptlb') else 1))
ps(2)
for k in range(4): part1(k)
a('s_waitcnt lgkmcnt(0)')
a.label('L_p_join')
a('s_waitcnt vmcnt(0)')
for k in range(4): part2(k)
for k in range(4): part3(k)
a(f'v_max3_u32 v44, v{RK}, v{RK+1}, v{RK+2}')
a(f'v_max3_u32 v44, v44, v{RK+3}, v{RK+4}')
a(f'v_max3_u32 v44, v44, v{RK+5}, v{RK+6}')
a('v_cmp_lt_u32 vcc, 124, v44')
a('s_cbranch_vccz L_p_noovf')
a(f's_add_u32 s44, s40, {WS_OVFREC:#x}')
a(f's_add_u32 s45, s40, {WS_OVFBKT:#x}')
for k in range(7):
    a(f'v_cmp_lt_u32 vcc, 124, v{RK+k}')
    a('s_mov_b64 exec, vcc')
    a(f's_cbranch_execz L_p_ov{k}')
    a(f'ds_add_rtn_u32 v44, v41, v42 offset:{L_OVC}')
    a('s_waitcnt lgkmcnt(0)')
    a(f'buffer_store_dword v{S0+k}, v44, s[{WS}:{WS+3}], s44 offen')
    a(f'buffer_store_dword v{B4+k}, v44, s[{WS}:{WS+3}], s45 offen')
    a('s_waitcnt vmcnt(0)')
    a.label(f'L_p_ov{k}')
    a('s_mov_b64 exec, -1')
a.label('L_p_noovf')
a('s_waitcnt lgkmcnt(0)')
a('s_barrier')
ps(3)
for k in range(4):
    a(f'ds_read_b32 v{24+k}, v45 offset:{64*CS*k}')
    a(f'ds_read2_b32 v[{8+4*k}:{9+4*k}], v{56+k} offset0:0 offset1:4')
    a(f'ds_read2_b32 v[{10+4*k}:{11+4*k}], v{56+k} offset0:8 offset1:12')
a(f'ds_read_b32 v28, v41 offset:{L_OVC}')
for k in range(4):
    a(f's_waitcnt lgkmcnt({10-3*k})')
    if not X('fullcell'):
        a(f'v_cmp_lt_u32 vcc, v60, v{24+k}')
        a('s_mov_b64 exec, vcc')
    a(f'buffer_store_dwordx4 v[{8+4*k}:{11+4*k}], v47, s[{WS}:{WS+3}], s47 offen' + SC1)
    a('s_mov_b64 exec, -1')
    if k < 3: a('s_add_u32 s47, s47, 0x100000')
pend()
a('s_cmp_lg_u32 s3, 0')
a('s_cbranch_scc1 L_pre_end')
a('s_lshl_b32 s44, s2, 2')
a(f's_add_u32 s44, s44, {WS_OVFLEN:#x}')
a('s_mov_b64 exec, 1')
a('s_waitcnt lgkmcnt(0)')
a(f'buffer_store_dword v28, v41, s[{WS}:{WS+3}], s44 offen')
a('s_endpgm')

a.label('L_pre_gemm')
a(f's_sub_u32 s40, s2, {NCH}')
a(f's_sub_u32 s41, s40, {NGEMM}')
a('s_mov_b32 s42, 0')
a('s_cmp_eq_u32 s41, 0')
a('s_cselect_b32 s42, 0x8000, s42')
a('s_cmp_eq_u32 s41, 2')
a('s_cselect_b32 s42, 0x8000, s42')
a('s_cmp_eq_u32 s41, 3')
a('s_cselect_b32 s42, 0x10000, s42')
a('v_lshrrev_b32 v4, 4, v3')
a('v_and_b32 v5, 15, v3')
a('v_lshlrev_b32 v6, 2, v4')
a('v_xor_b32 v6, v6, v5')
a('v_lshlrev_b32 v6, 4, v6')
a('v_lshl_add_u32 v6, v4, 8, v6')
a('s_lshl_b32 s43, s3, 12')
a('s_add_u32 s42, s42, s43')
def wdma():
    a('s_mov_b32 m0, s43')
    a('s_nop 0')
    for i in range(4): a(f'buffer_load_dwordx4 v6, s[{W}:{W+3}], s42 offen offset:{1024*i} lds')
a('v_xor_b32 v8, v4, v5')
a('v_lshlrev_b32 v8, 4, v8')
a('v_lshl_add_u32 v28, v4, 8, v8')
for i in range(1, 4): a(f'v_xor_b32 v{28+i}, {64*i}, v28')
a('s_add_u32 s44, s43, 32768')
a('s_mov_b32 m0, s44')
a(f's_mul_i32 s45, s40, {GR*256}')
a(f's_add_u32 s50, s45, {GR*256}')
a(f's_min_u32 s{XS+2}, s50, {N*256:#x}')
a(f's_mov_b32 s{XS+3}, 0x20000')
a(f's_mov_b32 s{W+3}, 0x20000')
a('s_add_u32 s44, s45, s43')
a('s_lshr_b32 s51, s2, 3')
a('s_and_b32 s51, s51, 7')
a('s_lshl_b32 s51, s51, 12')
a('v_lshlrev_b32 v9, 7, v3')
a(f's_add_u32 s54, s50, {WS_P}'); a(f's_mov_b32 s55, 0x20000')
a('s_sub_u32 s48, s41, 1')
a('s_cmp_lt_u32 s48, 2')
a(f's_mov_b32 s48, {272*256:#x}')
a(f's_cselect_b32 s{W+2}, 0x10000, s48')
a('s_waitcnt lgkmcnt(0)')
ps(1)
for i in range(4): a(f'buffer_load_dwordx4 v{28+i}, s[{XS}:{XS+3}], s44 offen offset:{1024*i} lds')
a(f's_cselect_b32 s{W}, s14, s12')
a(f's_cselect_b32 s{W+1}, s15, s13')
a(f's_mov_b32 s52, s{WS}'); a(f's_mov_b32 s53, s{WS+1}')
a('s_cmp_lg_u32 s3, 7')
a('s_cbranch_scc1 L_g_not')
a('s_mov_b64 exec, 0xffffffff')
a(f'buffer_load_dword v159, v9, s[{W}:{W+3}], s51 offen')
if X('ptlb'):
    a('s_mov_b64 exec, 1')
    a(f'buffer_load_dword v159, v9, s[{WS}:{WS+3}], s54 offen')
a('s_mov_b64 exec, -1')
a('s_waitcnt vmcnt(%d)' % (1 if X('ptlb') else 0)) if not X('w7now') else None
a.label('L_g_not')
a('s_and_b32 s46, s3, 3')
a('s_lshr_b32 s47, s3, 2')
a('s_lshl_b32 s49, s47, 1')
a(f's_cmp_lt_u32 s40, {NGEMM}')
a('s_cselect_b32 s49, s49, s46')
a('v_lshrrev_b32 v10, 5, v3')
a('v_and_b32 v11, 1, v4')
a('v_bfe_u32 v12, v3, 2, 2')
a('v_and_b32 v13, 1, v3')
a('v_bfe_u32 v14, v3, 1, 1')
a('v_lshl_add_u32 v15, v13, 1, v11')
a('v_lshl_add_u32 v16, v11, 1, v14')
a('s_cmp_eq_u32 s41, 3')
a('s_cselect_b64 vcc, -1, 0')
a('v_cndmask_b32 v15, v15, v16, vcc')
a('v_cndmask_b32 v16, v14, v13, vcc')
a('v_xor_b32 v17, s49, v12')
a('v_lshl_add_u32 v15, v17, 2, v15')
a('v_lshlrev_b32 v15, 4, v15')
a('v_lshl_add_u32 v15, v16, 3, v15')
a('v_lshl_add_u32 v17, v10, 3, v12')
a('v_lshl_add_u32 v15, v17, 8, v15')
a('v_and_b32 v18, 31, v3')
WF, XF, ACC = 32, 96, 128
a(f's_cmp_lt_u32 s40, {NGEMM}')
a('s_cbranch_scc1 L_g_go')
wdma()
a('s_waitcnt vmcnt(0)')
a('s_barrier')
a('s_branch L_g_frag')
a.label('L_g_go')
a('v_xor_b32 v16, 64, v15')
a('s_lshl_b32 s48, s46, 5')
a('v_add_u32 v19, s48, v18')
a('v_and_b32 v20, 15, v18')
a('v_xor_b32 v20, v20, v10')
a('v_lshlrev_b32 v20, 4, v20')
a('v_lshl_add_u32 v20, v19, 8, v20')
a('v_and_b32 v21, 7, v18')
a('v_lshlrev_b32 v22, 1, v10')
a('v_xor_b32 v21, v21, v22')
a('v_lshlrev_b32 v21, 4, v21')
a('v_lshl_add_u32 v21, v18, 7, v21')
a('s_add_u32 s48, s43, 65536')
a('v_add_u32 v21, s48, v21')
a('v_lshrrev_b32 v24, 3, v3')
a('v_and_b32 v25, 7, v3')
a('v_xor_b32 v22, v24, v25')
a('v_lshlrev_b32 v22, 4, v22')
a('v_lshl_add_u32 v22, v24, 7, v22')
a('v_add_u32 v22, s48, v22')
a('v_lshlrev_b32 v23, 4, v25')
a('v_lshl_add_u32 v23, v24, 8, v23')
a('s_lshl_b32 s48, s46, 13')
a('s_add_u32 s48, s48, s45')
a('s_lshl_b32 s49, s47, 7')
a('s_add_u32 s48, s48, s49')
a(f's_add_u32 s48, s48, {WS_P}')
a('s_add_u32 s49, s48, 4096')
def trr(s):
    for b in range(2):
        for u in range(2):
            a(f'ds_read_b64_tr_b16 v[{WF+32*b+4*s+2*u}:{WF+32*b+4*s+2*u+1}], v{15+b} offset:{4096*s+1024*u}')
def xrd():
    for s in range(8):
        if s: a(f'v_xor_b32 v24, {32*s}, v20')
        a(f'ds_read_b128 v[{XF+4*s}:{XF+4*s+3}], v{24 if s else 20} offset:32768')
def mm(s, b):
    c = '0' if s == 0 else f'v[{ACC+16*b}:{ACC+16*b+15}]'
    a(f'v_mfma_f32_32x32x16_bf16 v[{ACC+16*b}:{ACC+16*b+15}], v[{WF+32*b+4*s}:{WF+32*b+4*s+3}], v[{XF+4*s}:{XF+4*s+3}], {c}')
def tr1(s, b):
    for u in range(2):
        a(f'ds_read_b64_tr_b16 v[{WF+32*b+4*s+2*u}:{WF+32*b+4*s+2*u+1}], v{15+b} offset:{4096*s+1024*u}')
a('v_xor_b32 v27, 16, v21')
a('v_xor_b32 v25, 64, v21')
a('v_xor_b32 v26, 80, v21')
a('s_waitcnt vmcnt(%d)' % opt('wd', 3))
wdma()
a('s_waitcnt vmcnt(4)')
a('s_barrier')
xrd()
a('s_waitcnt vmcnt(0) lgkmcnt(0)')
ps(2)
a('s_barrier')
ps(3)
if PST: a('s_waitcnt lgkmcnt(0)')
seq = [(s, 0) for s in range(8)] + [(s, 1) for s in range(8)]
AH = 6
for t in range(AH): tr1(*seq[t])
def epi(b):
    o = [f'v_mul_f32 v{ACC+16*b+r}, {NEGLOG2E:#x}, v{ACC+16*b+r}' for r in range(16)]
    o += [f'v_cvt_pk_bf16_f32 v{ACC+16*b+r}, v{ACC+16*b+2*r}, v{ACC+16*b+2*r+1}' for r in range(8)]
    return o
def wr(b):
    a(f'ds_write_b128 v{25 if b else 21}, v[{ACC+16*b}:{ACC+16*b+3}]')
    a(f'ds_write_b128 v{26 if b else 27}, v[{ACC+16*b+4}:{ACC+16*b+7}]')
e0 = epi(0)
for t in range(16):
    a(f's_waitcnt lgkmcnt({2*min(AH-1, 15-t)})')
    mm(*seq[t])
    if t + AH < 16: tr1(*seq[t+AH])
    if t == 10: a.nop(4)
    if t >= 10:
        for l in e0[4*(t-10):4*(t-9)]: a(l)
wr(0)
a.nop(6)
for l in epi(1): a(l)
wr(1)
for i in range(4): a(f'ds_read_b128 v[{XF+4*i}:{XF+4*i+3}], v22 offset:{1024*i}')
for i in range(4):
    a(f's_waitcnt lgkmcnt({3-i})')
    a(f'buffer_store_dwordx4 v[{XF+4*i}:{XF+4*i+3}], v23, s[52:55], s{48+(i>>1)} offen offset:{2048*(i&1)}' + ('' if X('pnosc1') else ' sc1'))
pend()
a('s_endpgm')
a.label('L_g_frag')
a('v_lshlrev_b32 v22, 4, v3')
a('s_cmp_eq_u32 s41, 3')
a('s_cbranch_scc1 L_g_w3')
a('s_lshl_b32 s48, s3, 1')
a('v_add_u32 v15, s48, v14')
a('s_cmp_eq_u32 s41, 2')
a('s_cbranch_scc1 L_g_wu2')
a('v_lshlrev_b32 v16, 2, v12')
a('v_xor_b32 v16, v16, v15')
a('v_lshlrev_b32 v16, 4, v16')
a('v_lshl_add_u32 v16, v13, 3, v16')
a('v_lshl_add_u32 v17, v4, 3, v12')
a('v_lshl_add_u32 v16, v17, 8, v16')
for s in range(4):
    for u in range(2): a(f'ds_read_b64_tr_b16 v[{WF+4*s+2*u}:{WF+4*s+2*u+1}], v16 offset:{8192*s+1024*u}')
a('s_branch L_g_fst')
a.label('L_g_wu2')
a('v_lshlrev_b32 v16, 2, v4')
a('v_xor_b32 v16, v16, v15')
a('v_lshlrev_b32 v16, 4, v16')
a('v_lshl_add_u32 v16, v13, 3, v16')
a('v_lshl_add_u32 v17, v12, 5, v4')
a('v_lshl_add_u32 v16, v17, 8, v16')
for u in range(2):
    for s in range(4): a(f'ds_read_b64_tr_b16 v[{WF+4*s+2*u}:{WF+4*s+2*u+1}], v16 offset:{1024*s+4096*u}')
a.label('L_g_fst')
a('s_lshl_b32 s48, s41, 15')
a('s_lshl_b32 s49, s3, 12')
a('s_add_u32 s48, s48, s49')
a(f's_add_u32 s48, s48, {WS_FRAG:#x}')
a('s_waitcnt lgkmcnt(0)')
for s in range(4): a(f'buffer_store_dwordx4 v[{WF+4*s}:{WF+4*s+3}], v22, s[{WS}:{WS+3}], s48 offen offset:{1024*s}')
a('s_endpgm')
a.label('L_g_w3')
a('s_cmp_lg_u32 s47, 0')
a('s_cbranch_scc1 L_pre_end')
for u in range(2): a(f'ds_read_b64_tr_b16 v[{WF+2*u}:{WF+2*u+1}], v15 offset:{1024*u}')
a('s_lshl_b32 s48, s46, 10')
a(f's_add_u32 s48, s48, {WS_FRAG+3*32768:#x}')
a('s_waitcnt lgkmcnt(0)')
for r in range(4):
    a(f'v_lshlrev_b32 v40, 16, v{WF+r}')
    a(f'v_and_b32 v41, 0xffff0000, v{WF+r}')
    a(f'v_mul_f32 v40, {NEGLOG2E:#x}, v40')
    a(f'v_mul_f32 v41, {NEGLOG2E:#x}, v41')
    a(f'v_cvt_pk_bf16_f32 v{WF+r}, v40, v41')
a(f'buffer_store_dwordx4 v[{WF}:{WF+3}], v22, s[{WS}:{WS+3}], s48 offen')
a.label('L_pre_end')
a('s_endpgm')

BENCH = '--bench' in sys.argv
RSTR = 272
L_PT = 0
L_EO = 54*256
L_QS = 108*256
QSTR = 13*256
L_QT = L_QS + QSTR; L_QW = L_QT + QSTR; L_QK = L_QW + QSTR
L_HIST = L_QK + QSTR
L_MISC = L_HIST + 256
L_ZERO = L_MISC + 64
L_HEAD = L_ZERO + 512
L_CARRY = L_HEAD + 8192
L_XI = L_HEAD
L_NODE = L_CARRY + 15*512
NSTR = 784
L_STG = (L_NODE + 50*NSTR + 255) // 256 * 256
assert L_XI % 64 == 0
HB = 4160
LDS_MAIN = L_STG + 16*HB
assert LDS_MAIN <= 163840 and L_NODE % 16 == 0 and L_EO + 50*RSTR <= L_QS

class RA_:
    def __init__(s, st): s.n = st
    def __call__(s, k=1, al=1):
        s.n = (s.n + al - 1)//al*al; r = s.n; s.n += k; return r
al = RA_(16)
ZB = [al(16), al(16)]; U = al(16); PA = [al(16), al(16)]
NF = al(4); D = al(4); RC = al(4); MB = al(16); KK = al(4); AA = al(4); DA = al(4); PTr = al(4)
EC = al(4); EN = al(4); QB = [al(2), al(2)]; TM = al(2); TC = al(2)
I0 = al(4); I1 = al(4); W3 = al(16); R = al(16); WU2 = al(16); REC = al(8)
G = al(2); RA = al(2); TA = al(); TAr = al(); SP = al(); SE = al(); EOr = al(); EV = al(); MK = al(); CB = al()
vQA = al(); vQ1 = al(); vQP = al(); vQE = al()
LC = al(); CA = al(); CT = al(); H16 = al(); I4 = al(); CIr = al(2)
NVG = al.n
Uq = lambda q, s_: U + 8*(q>>1) + 2*((s_+3)&3) + (1-(q&1))
RCq = lambda q: RC + (q^1)
assert U % 2 == 0 and D % 2 == 0 and NF % 2 == 0 and RC % 2 == 0
assert NVG <= 256
LANE, MM, HH = 1, 2, 3
XF = 16
W2F = 80
WU1F = 96
QACC = 112
HA, RK, PV, EVv = AA, WU2+8, AA+8, WU2
assert AA == 128 and TC >= AA+24
vW, vXF, vQW, cP1, cP2, cP3, cP4, vTCH, vPF = 243, 244, 248, 249, 252, 253, 254, 251, 255
sQM = 100
PS, WSd, Ed, Xd, Od = 8, 12, 16, 20, 24
sW, sNODE0, sT, sTC, sSAFE, sMORE, sFIRST, sBML, sM0A, sM0B, sNZ = 28, 29, 30, 31, 32, 33, 34, 35, 36, 37, 38
XM = 40
SO = 92
BM = 60
sSLOW, sN, sPASS = 64, 65, 66
nstamp = [0]
def stamp():
    if STAMP and nstamp[0] < 11:
        a(f's_memtime s[{70+2*nstamp[0]}:{71+2*nstamp[0]}]'); nstamp[0] += 1
FINE = opt('fine', 0)
def st(level):
    if FINE == level: stamp()

a('.globl main_kernel\n.p2align 8\n.type main_kernel,@function')
a.label('main_kernel')
a('s_cmp_ge_u32 s2, 256')
a('s_cbranch_scc1 L_main_end')
stamp()
for d_, o_ in ((WSd, 64), (Xd, 0), (PS, 64), (Ed, 8), (Od, 48)): a(f's_load_dwordx2 s[{d_}:{d_+1}], s[0:1], {o_}')
a(f'v_lshrrev_b32 v4, 6, v0')
a(f'v_and_b32 v{LANE}, 63, v0')
a(f'v_readfirstlane_b32 s{sW}, v4')
a(f'v_and_b32 v{MM}, 31, v0')
a(f'v_bfe_u32 v{HH}, v0, 5, 1')
a(f's_lshl_b32 s{sNODE0}, s2, 8')
a(f's_mov_b32 s{sSAFE}, 0')
a(f's_mov_b32 s{sFIRST}, 1')
a(f's_mul_i32 s{sM0A}, s{sW}, {2*HB}')
a(f's_add_u32 s{sM0A}, s{sM0A}, {L_STG}')
a(f's_add_u32 s{sM0B}, s{sM0A}, {HB}')
for i in range(8): a(f's_mov_b32 s{SO+i}, {WS_P-1040*(i&3)+128*(i>>2)}')
a(f'v_lshrrev_b32 v4, 4, v{LANE}')
a(f'v_and_b32 v5, 15, v{LANE}')
a(f's_lshl_b32 s58, s{sW}, 3')
a('v_add_u32 v6, s58, v4')
a('v_and_b32 v7, 15, v6')
a('v_xor_b32 v7, v7, v5')
a('v_lshlrev_b32 v7, 4, v7')
a('v_lshl_add_u32 v7, v6, 16, v7')
a('v_xor_b32 v8, 64, v7')
a(f'v_add_u32 v8, {4*65536-1024}, v8')
a('v_cmp_gt_u32 s[68:69], 49, v6')
a(f's_lshl_b32 s58, s{sW}, 11')
a(f's_add_u32 s58, s58, {L_XI}')
a('s_mov_b32 m0, s58')
a(f's_mov_b32 s{WSd+2}, {WS_SIZE:#x}'); a(f's_mov_b32 s{WSd+3}, 0x20000')
a(f's_mov_b32 s{Xd+2}, {N*256:#x}'); a(f's_mov_b32 s{Xd+3}, 0x20000')
a(f's_mov_b32 s{PS+2}, 0'); a(f's_mov_b32 s{PS+3}, 0x20000')
a(f's_mov_b32 s{Ed+2}, 0'); a(f's_mov_b32 s{Ed+3}, 0x20000')
a(f's_mov_b32 s{Od+2}, {N*256:#x}'); a(f's_mov_b32 s{Od+3}, 0x20000')
def celladdr():
    a(f'v_mov_b32 v{REC}, 0')
    a('v_and_b32 v9, 3, v0')
    a('v_lshlrev_b32 v5, 5, v0')
    a('v_lshlrev_b32 v9, 4, v9')
    a('v_sub_u32 v5, v5, v9')
    a('s_lshl_b32 s58, s2, 14')
    a(f's_add_u32 s58, s58, {WS_CELLS:#x}')
    a('v_cmp_gt_u32 vcc, 500, v0')
    a('s_mov_b64 exec, vcc')
celladdr()
a('s_waitcnt lgkmcnt(0)')
st(1)
a.label('L_cells')
a(f'buffer_load_dwordx4 v[{REC}:{REC+3}], v5, s[{WSd}:{WSd+3}], s58 offen')
a(f'buffer_load_dwordx4 v[{REC+4}:{REC+7}], v5, s[{WSd}:{WSd+3}], s58 offen offset:64')
a('s_mov_b64 exec, -1')
a(f's_mov_b32 s{sBML}, 0')
a(f's_cmp_eq_u32 s{sFIRST}, 0')
a('s_cbranch_scc1 L_skipfirst')
a(f's_cmp_lt_u32 s{sW}, 6')
a('s_cbranch_scc0 L_x67')
a(f'buffer_load_dwordx4 v7, s[{Xd}:{Xd+3}], s{sNODE0} offen lds')
a(f'buffer_load_dwordx4 v8, s[{Xd}:{Xd+3}], s{sNODE0} offen offset:1024 lds')
a('s_branch L_xd')
a.label('L_x67')
a('s_lshr_b32 s58, s2, 3')
a('s_mul_i32 s58, s58, 3200')
a(f's_add_u32 s58, s58, {WS_FRAG:#x}')
a(f'v_lshlrev_b32 v9, 7, v{LANE}')
a(f's_cmp_eq_u32 s{sW}, 6')
a('s_cbranch_scc0 L_x7')
a('s_mov_b64 exec, s[68:69]')
a(f'buffer_load_dwordx4 v7, s[{Xd}:{Xd+3}], s{sNODE0} offen lds')
a('s_mov_b64 exec, 0x1ffffff')
a(f'buffer_load_dword v251, v9, s[{WSd}:{WSd+3}], s58 offen')
a('s_branch L_x8')
a.label('L_x7')
a(f's_mov_b32 s{Ed+2}, {E*32 if X("tlb") else 0:#x}')
a(f'v_lshlrev_b32 v9, 18, v{LANE}')
a(f'buffer_load_dword v251, v9, s[{Ed}:{Ed+3}], 0 offen')
a('s_mov_b64 exec, %s' % ('0x1fff' if X('tlb') else '1'))
a(f'buffer_load_dword v251, v9, s[{WSd}:{WSd+3}], 0 offen')
a.label('L_x8')
a('s_mov_b64 exec, -1')
a.label('L_xd')
st(1)
a(f'v_bfe_u32 v4, v{MM}, 2, 1')
a(f'v_lshrrev_b32 v5, 3, v{MM}')
a('v_lshl_add_u32 v10, v4, 2, v5')
a(f'v_and_b32 v6, 3, v{MM}')
a(f'v_lshlrev_b32 v{I4}, 2, v6')
a(f'v_lshlrev_b32 v{H16}, 4, v{HH}')
def onehot4(dst, vj):
    return [f'v_cmp_gt_u32 vcc, 4, v{vj}', f'v_lshlrev_b32 v9, 4, v{vj}', f'v_mov_b32 v{dst+1}, 0',
            f'v_cndmask_b32 v{dst}, 0, v8, vcc', f'v_lshlrev_b64 v[{dst}:{dst+1}], v9, v[{dst}:{dst+1}]']
a('v_mov_b32 v8, 0x3f80')
a(f'v_lshlrev_b32 v5, 2, v{HH}')
a('v_sub_u32 v5, v10, v5')
for l in onehot4(TC, 5): a(l)
late_c = [f'v_mul_u32_u24 v4, 260, v{I4}', 'v_lshl_add_u32 v4, v10, 7, v4', f'v_add3_u32 v4, v4, v{H16}, s{sM0A}',
          f'v_and_b32 v9, 16, v{MM}', 'v_lshlrev_b32 v9, 2, v9', f'v_add_u32 v{RA}, v4, v9', 'v_xor_b32 v9, 64, v9', f'v_add_u32 v{RA+1}, v4, v9',
          'v_mov_b32 v8, 0x3f80', f'v_lshlrev_b32 v4, 3, v{HH}', f'v_sub_u32 v4, v{MM}, v4'] + onehot4(I0, 4) + ['v_subrev_u32 v4, 4, v4'] + onehot4(I0+2, 4) + \
         ['v_subrev_u32 v4, 12, v4'] + onehot4(I1, 4) + ['v_subrev_u32 v4, 4, v4'] + onehot4(I1+2, 4)
a(f'v_and_b32 v4, 7, v{LANE}')
a(f'v_and_b32 v5, 16, v{LANE}')
a('v_lshlrev_b32 v4, 4, v4')
a('v_lshlrev_b32 v6, 2, v5')
a(f'v_xor_b32 v{LC}, v4, v6')
a(f'v_lshlrev_b32 v{CA}, 4, v{MM}')
a(f'v_add_u32 v{CA}, {L_NODE}, v{CA}')
a(f'v_and_b32 v4, 3, v{LANE}')
a('v_lshlrev_b32 v4, 3, v4')
a('v_lshl_add_u32 v4, v5, 1, v4')
a(f'v_add_u32 v{CT}, {L_NODE+512}, v4')
a(f'v_lshlrev_b32 v{vW}, 4, v{LANE}')
a(f'v_lshlrev_b32 v{vPF}, 7, v{LANE}')
a(f'v_and_b32 v4, 15, v{LANE}')
a(f'v_lshrrev_b32 v6, 4, v{LANE}')
a('v_xor_b32 v5, v6, v4')
a('v_lshlrev_b32 v5, 4, v5')
a(f'v_lshl_add_u32 v{vXF}, v4, 8, v5')
for s in range(1, 4): a(f'v_xor_b32 v{vXF+s}, {64*s}, v{vXF}')
a(f'v_mul_u32_u24 v5, {NSTR}, v4')
a('v_lshl_add_u32 v5, v6, 3, v5')
a(f's_lshl_b32 s58, s{sW}, 5')
a(f's_add_u32 s58, s58, {L_NODE+NSTR+512}')
a(f'v_add_u32 v{vQW}, s58, v5')
a(f'v_and_b32 v{cP1}, 12, v{LANE}')
a(f'v_lshrrev_b32 v{cP2}, 1, v{LANE}')
a(f'v_and_b32 v{cP2}, 12, v{cP2}')
a(f'v_lshrrev_b32 v{cP3}, 2, v10')
a(f'v_and_b32 v{cP4}, 3, v10')
a(f'v_lshlrev_b32 v{cP4}, 2, v{cP4}')
a.label('L_skipfirst')
a(f's_mov_b32 s{sPASS}, 0')
st(1)
a('v_lshrrev_b32 v4, 2, v0')
a(f'v_mul_u32_u24 v{CB}, {CH*32}, v4')
for i in range(4): a(f'v_mov_b32 v{12+i}, 0')
a('v_lshrrev_b32 v4, 5, v0')
a(f'v_mul_u32_u24 v4, {NSTR}, v4')
a(f'v_add_u32 v4, v4, v{CA}')
for k in range(3): a(f'ds_write_b128 v4, v[12:15] offset:{NSTR*(16*k+2)}')
a(f's_cmp_lg_u32 s{sW}, 0')
a('s_cbranch_scc1 L_z0')
a(f'v_mul_u32_u24 v5, 320, v{HH}')
a('v_sub_u32 v4, v4, v5')
a('ds_write_b128 v4, v[12:15] offset:320')
a(f'v_min_u32 v4, 49, v{LANE}')
a(f'v_mul_u32_u24 v4, {NSTR}, v4')
a(f'ds_write_b32 v4, v12 offset:{L_NODE+768}')
a.label('L_z0')
a(f'v_mov_b32 v{G}, -1')
a(f'v_mov_b32 v{G+1}, -1')
a(f's_mov_b32 s{sNZ}, {(L_HEAD-L_QS)//16-512}')
a.label('L_reinit')
for i in range(4): a(f'v_mov_b32 v{12+i}, 0')
a('v_lshlrev_b32 v4, 4, v0')
a(f'ds_write_b128 v4, v[12:15] offset:{L_QS}')
a(f'v_cmp_gt_u32 vcc, s{sNZ}, v0')
for i in range(4): a(f'v_bfrev_b32 v{48+i}, 1')
a('s_mov_b64 exec, vcc')
a(f'ds_write_b128 v4, v[12:15] offset:{L_QS+8192}')
a('s_mov_b64 exec, -1')
a(f'v_cmp_gt_u32 vcc, {L_QS//16-1536}, v0')
for k in range(3): a(f'ds_write_b128 v4, v[48:51] offset:{8192*k}')
a('s_mov_b64 exec, vcc')
a(f'ds_write_b128 v4, v[48:51] offset:{8192*3}')
a('s_mov_b64 exec, -1')
a(f's_mov_b32 s{sNZ}, {(L_MISC-L_QS)//16-512}')
a('v_mov_b32 v11, 4')
a(f's_lshl_b32 s56, s{sW}, 12')
a(f's_add_u32 s56, s56, {WS_FRAG:#x}')
a('s_add_u32 s4, s56, 0x8000')
a(f's_mov_b32 s5, {WS_FRAG+3*32768:#x}')
a('s_lshr_b32 s6, s2, 3')
a(f's_mul_i32 s6, s6, {784*128}')
a(f's_mul_i32 s7, s{sW}, {98*128}')
a('s_add_u32 s6, s6, s7')
a(f's_add_u32 s6, s6, {WS_P}')
a('s_movk_i32 s39, 0xfc')
a(f's_movk_i32 s57, {RSTR//4}')
a('v_and_b32 v13, 3, v0')
a('v_lshlrev_b32 v13, 2, v13')
a(f'v_mul_u32_u24 v8, {NSTR}, v{LANE}')
vHD, vHW, vHK, cH1 = 15, TAr, EOr, CIr
a(f's_or_b32 s{sSLOW}, s{sSAFE}, s{sPASS}')
a('s_cselect_b32 s67, 0, -1')
a('s_cselect_b32 s59, -1, 0')
a('s_cselect_b32 s3, 1, 4')
OOBV = 0x20000
a(f'v_mov_b32 v5, {OOBV:#x}')
a('v_bfi_b32 v9, s59, v8, v5')
a(f'v_subrev_u32 v4, 1, v{LANE}')
a('v_cmp_gt_u32 vcc, 16, v4')
a(f'v_lshrrev_b32 v{cH1}, 2, v{LANE}')
a(f'v_mul_u32_u24 v12, {RSTR}, v{LANE}')
a(f'v_cndmask_b32 v{vHD}, 0, 16, vcc')
a(f'v_lshl_add_u32 v12, v{vHD}, 2, v12')
a('v_cmp_eq_u32 vcc, 12, v13')
a(f'v_lshlrev_b32 v4, 9, v{cH1}')
a(f'v_add_u32 v4, {(L_HEAD-L_NODE) & 0xffffffff:#x}, v4')
a(f'v_cndmask_b32 v4, v5, v4, vcc')
a(f'v_mul_u32_u24 v5, {NSTR}, v{cH1}')
a(f'v_add_u32 v5, {NSTR}, v5')
a('v_cmp_ne_u32 vcc, 0, v13')
a(f'v_bfi_b32 v{vHW}, s59, v5, v4')
a(f'v_mov_b32 v4, s67')
a(f'v_cndmask_b32 v{vHK}, 0, v4, vcc')
a(f's_lshl_b32 s58, s{sW}, 1')
a('s_add_u32 s58, s58, 1')
a(f'v_add_u32 v4, s58, v{HH}')
a(f'v_mul_u32_u24 v5, {RSTR}, v4')
a(f'v_lshl_add_u32 v{SP}, v{cP2}, 2, v5')
a(f'v_mul_u32_u24 v4, {NSTR}, v4')
a(f'v_add_u32 v{TA}, v4, v{CT}')
a(f'v_add_u32 v4, s58, v{cP3}')
a(f'v_mul_u32_u24 v4, {RSTR}, v4')
a(f'v_lshl_add_u32 v4, v{cP4}, 2, v4')
a(f'v_add_u32 v{SE}, v4, v{I4}')
a(f's_mov_b32 s{PS+2}, {0 if "--nop" in sys.argv else WS_P+N*256:#x}')
a(f's_mov_b32 s{Ed+2}, {0 if "--noe" in sys.argv else E*32:#x}')
def dma(half):
    return [f'buffer_load_dwordx4 v{DA+i}, s[{PS}:{PS+3}], s{SO+4*half+i} offen offset:{1040*i} lds' for i in range(4)]
def eload(dst): return f'buffer_load_dwordx4 v[{dst}:{dst+3}], v{EV}, s[{Ed}:{Ed+3}], 0 offen' + (' nt' if X('ent') else '')
hq = dma(0)
a(f'v_lshlrev_b32 v14, 2, v{LANE}')
a(f's_cmp_lg_u32 s{sFIRST}, 0')
a(f's_cselect_b64 s[{sQM}:{sQM+1}], -1, 0')
def fragl(dst, so, s): return f'buffer_load_dwordx4 v[{dst+4*s}:{dst+4*s+3}], v{vW}, s[{WSd}:{WSd+3}], s{so} offen offset:{1024*s}'
vm = ['c0', 'c1', 'x', 'x']
wq = [('W2', fragl(W2F, 56, s)) for s in range(4)] + [('WU1', fragl(WU1F, 4, s)) for s in range(4)] + [('W3', fragl(W3, 5, s)) for s in range(4)]
sched = ([x.split('=')[1] for x in sys.argv if x.startswith('--sched=')] or ['wwww,,,wwww,,,,h,h,h,wwww'])[0].split(',')
def slot(i, out=None):
    o = []
    sp = sched[i]
    import re as _re
    for t in _re.findall(r'w|h|p\d+', sp):
        if t == 'w':
            tag, l = wq.pop(0); vm.append(tag); o.append(l)
        elif t == 'h':
            o.append(hq.pop(0)); vm.append('h0')
        else:
            nl = int(t[1:])
            o += [f's_bfm_b64 exec, {nl}, 0'] if nl < 64 else []
            o += [f'buffer_load_dword v{vTCH}, v{vPF}, s[{WSd}:{WSd+3}], s6 offen', 's_mov_b64 exec, -1', f's_addk_i32 s6, {nl*128}']
            vm.append('p')
    if out is not None: out += ['\n'.join(o)] if o else []
    else:
        for l in o: a(l)
def vwait(tag):
    idx = max(i for i, t in enumerate(vm) if t == tag)
    return f's_waitcnt vmcnt({len(vm)-1-idx})'
if X('s0e'): slot(0)
a('s_waitcnt lgkmcnt(0)')
st(1)
a('s_barrier')
if not X('s0e'): slot(0)
st(0); st(1)
a(f's_or_b32 s58, s{sBML}, s{sPASS}')
a('s_mov_b64 s[68:69], 0')
a('s_cmp_lg_u32 s58, 0')
a('s_cselect_b64 s[0:1], -1, 0')
a('s_cbranch_scc0 L_hdr')
a('s_waitcnt vmcnt(0)')
for k in range(8): a(f'v_cmp_ne_u32 s[{XM+2*k}:{XM+2*k+1}], -1, v{REC+k}')
a('s_branch L_nohdr')
a.label('L_hdr')
a('s_movk_i32 s58, 80')
a('s_movk_i32 s59, 96')
a('s_movk_i32 s7, 112')
a(f's_cmp_eq_u32 s{sFIRST}, 0')
a('s_cbranch_scc0 L_hw')
a('s_waitcnt vmcnt(0)')
a.label('L_hw')
a(vwait('c0'))
st(1); st(2)
a(f'v_sub_u32_dpp v4, v{REC}, v13 quad_perm:[0,0,0,0] row_mask:0xf bank_mask:0xf')
a(f'v_cmp_lt_u32 vcc, 128, v{REC}')
for k in range(8): a(f'v_cmp_lt_i32 s[{XM+2*k}:{XM+2*k+1}], {[0,16,32,48,64,"s58","s59","s7"][k]}, v4')
a('s_mov_b32 s58, 0x11111111')
a('s_mov_b32 s59, 0x11111111')
a('s_and_b64 s[68:69], vcc, s[58:59]')
a(f's_andn2_b64 s[{XM}:{XM+1}], s[{XM}:{XM+1}], s[58:59]')
a.label('L_nohdr')
def dec(k):
    a(f'v_lshlrev_b32 v{PV+k}, 8, v{REC+k}')
    a(f'v_bfe_u32 v{EVv+k}, v{REC+k}, 14, 12')
    a(f'v_and_b32 v{PV+k}, 0x3fff00, v{PV+k}')
    a(f'v_lshl_add_u32 v{EVv+k}, v{EVv+k}, 5, v{CB}')
def hadr(k): a(f'v_and_b32_sdwa v{HA+k}, s39, v{REC+k} dst_sel:DWORD dst_unused:UNUSED_PAD src0_sel:DWORD src1_sel:BYTE_3')
for k in range(4): hadr(k)
slot(1)
for k in range(4):
    a(f's_mov_b64 exec, s[{XM+2*k}:{XM+2*k+1}]')
    a(f'ds_add_rtn_u32 v{RK+k}, v{HA+k}, v11 offset:{L_HIST}')
a(vwait('c1'))
for k in range(4, 8):
    a(f's_or_b64 s[58:59], s[{XM+2*k}:{XM+2*k+1}], s[0:1]')
    a('s_cbranch_scc0 L_h7')
    a(f's_mov_b64 exec, s[{XM+2*k}:{XM+2*k+1}]')
    hadr(k)
    a(f'ds_add_rtn_u32 v{RK+k}, v{HA+k}, v11 offset:{L_HIST}')
    dec(k)
    a.label('L_h%d' % k)
a('s_mov_b64 exec, s[68:69]')
a('s_cbranch_execz L_noovf')
a('v_lshrrev_b32 v4, 2, v0')
a('v_lshrrev_b32 v5, 5, v4')
a('v_lshlrev_b32 v5, 2, v5')
a('v_lshlrev_b32 v4, v4, 1')
a(f'ds_or_b32 v5, v4 offset:{L_MISC}')
a.label('L_noovf')
a('s_mov_b64 exec, -1')
slot(2)
for k in range(4): dec(k)
a(f's_mov_b32 m0, s{sM0A}')
a('s_waitcnt lgkmcnt(0)')
st(1); st(2)
for k in range(4): a(f'v_min_u32 v{4+k}, 256, v{RK+k}')
for k in range(4): a(f'v_mad_u32_u24 v{4+k}, v{HA+k}, s57, v{4+k}')
for k in range(4):
    a(f's_mov_b64 exec, s[{XM+2*k}:{XM+2*k+1}]')
    a(f'ds_write2st64_b32 v{4+k}, v{PV+k}, v{EVv+k} offset0:0 offset1:{L_EO//256}')
for k in range(4, 8):
    a(f's_or_b64 s[58:59], s[{XM+2*k}:{XM+2*k+1}], s[0:1]')
    a('s_cbranch_scc0 L_s7')
    a(f's_mov_b64 exec, s[{XM+2*k}:{XM+2*k+1}]')
    a(f'v_min_u32 v4, 256, v{RK+k}')
    a(f'v_mad_u32_u24 v4, v{HA+k}, s57, v4')
    a(f'ds_write2st64_b32 v4, v{PV+k}, v{EVv+k} offset0:0 offset1:{L_EO//256}')
a.label('L_s7')
a('s_mov_b64 exec, -1')
slot(3)
a(vwait('x'))
a('s_waitcnt lgkmcnt(0)')
st(1); st(2)
a('s_barrier')
st(1); st(2)
a(f'ds_read_b32 v{EV}, v{SE} offset:{L_EO}')
a(f'ds_read_b32 v5, v14 offset:{L_HIST}')
a(f'ds_read_b128 v[{DA}:{DA+3}], v{SP}')
def xfr(s): return [f'ds_read_b128 v[{XF+16*s+4*nu}:{XF+16*s+4*nu+3}], v{vXF+s} offset:{L_XI+4096*nu}' for nu in range(4)]
for s in range(3):
    for l in xfr(s): a(l)
a('s_waitcnt lgkmcnt(%d)' % (0 if FINE in (1, 2) else 14))
a(f'v_add_u32 v{EV}, v{EV}, v{H16}')
a(eload(EC)); vm.append('e')
a('s_waitcnt lgkmcnt(12)')
for i in range(4): a(f'v_add_u32 v{DA+i}, v{DA+i}, v{LC}')
slot(4)
st(2)
a('v_lshrrev_b32 v5, 2, v5')
a('v_cmp_lt_u32 vcc, 64, v5')
a('v_min_u32 v5, 64, v5')
a(f'v_sub_u32 v5, v5, v{vHD} clamp')
a('v_add_u32 v5, 3, v5')
a('v_and_b32 v5, -4, v5')
a('v_mov_b32 v6, v5')
a('s_waitcnt lgkmcnt(10)')
fl = [[l] for l in xfr(3)] + [[], []]
o5 = []; slot(5, o5); fl[4] = o5
pre = ['s_cmp_lg_u64 vcc, 0', f's_cselect_b32 s{sMORE}, 1, 0']
for l in pre: a(l)
for n_, sh in enumerate(('row_shr:1 row_mask:0xf', 'row_shr:2 row_mask:0xf', 'row_shr:4 row_mask:0xf', 'row_shr:8 row_mask:0xf', 'row_bcast:15 row_mask:0xa', 'row_bcast:31 row_mask:0xc')):
    a(f'v_add_u32_dpp v6, v6, v6 {sh} bank_mask:0xf')
    if n_ < 5:
        if n_ < 4: a([f'v_ashrrev_i32 v{MK}, 31, v{EV}', f'v_not_b32 v{MK}, v{MK}', f'v_and_b32 v{TM}, v{TC}, v{MK}', f'v_and_b32 v{TM+1}, v{TC+1}, v{MK}'][n_])
        for l in fl[n_]: a(l)
        if n_ == 4: a.nop(2 if not fl[4] else 1)
a('v_sub_u32 v7, v6, v5')
a(f's_cmp_lg_u32 s{sMORE}, 0')
a(f'v_readlane_b32 s{sT}, v6, 63')
a('s_cbranch_scc0 L_nomore')
for k in range(8):
    a(f'v_cmp_lt_u32 vcc, 255, v{RK+k}')
    a(f's_and_b64 vcc, vcc, s[{XM+2*k}:{XM+2*k+1}]')
    a.nop(1)
    a(f'v_cndmask_b32 v{REC+k}, -1, v{REC+k}, vcc')
a.label('L_nomore')
st(2)
a(f's_add_u32 s{sN}, s{sT}, 255')
a(f's_lshr_b32 s{sN}, s{sN}, 8')
a(f's_max_u32 s{sN}, s{sN}, s3')
a(f'v_cvt_f32_u32 v6, s{sN}')
a(f's_lshl_b32 s58, s{sW}, 2')
a('v_rcp_f32 v6, v6')
a(vwait('W2'))
a('s_waitcnt lgkmcnt(0)')
L = []; m = L.append
slot(6, L)
m('v_cmp_lt_u32 s[68:69], s58, v5')
m('v_mul_f32 v6, 0x47800000, v6')
m('s_add_u32 s59, s58, 4')
m('v_cvt_u32_f32 v6, v6')
m('v_add_u32 v4, s58, v7')
m('v_add_u32 v7, 2, v6')
m('v_cmp_eq_u32 vcc, s59, v5')
m('s_mov_b32 s39, 0x100000')
m(f'v_add_u32 v{SP}, 32, v4')
m('v_cndmask_b32 v6, v9, v8, vcc')
m('v_mad_u32_u24 v11, v4, v7, s39')
m(f'v_mad_u32_u24 v7, v{SP}, v7, s39')
m('s_add_u32 s59, s58, 36')
m('v_cmp_eq_u32 vcc, s59, v5')
m('v_lshrrev_b32 v11, 20, v11')
m('v_lshrrev_b32 v7, 20, v7')
m(f'v_cndmask_b32 v{EV}, v9, v8, vcc')
m('v_lshl_add_u32 v4, v11, 4, v4')
m(f'v_lshl_add_u32 v{SP}, v7, 4, v{SP}')
m('s_cmp_eq_u32 s58, 0\ns_cselect_b32 s59, 0, s67')
m('v_lshl_add_u32 v12, s58, 2, v12')
m('v_mov_b32 v11, s59')
m('s_add_u32 s58, s58, 32')
m('v_cmp_lt_u32 vcc, s58, v5')
m(f'v_add_u32 v{SE}, 128, v12')
m(f'v_mov_b32 v{MK}, s67')
m(f's_lshl_b32 s57, s{sN}, 5\ns_lshl_b32 s7, s{sN}, 4\ns_add_u32 s7, s7, 16')
m(f'v_mad_u32_u24 v13, s7, v{cH1}, v13')
blk = [f'ds_write2st64_b32 v13, v{vHW}, v{vHK} offset0:{L_QW//256} offset1:{L_QK//256}',
       's_mov_b64 exec, s[68:69]',
       f'ds_write2st64_b32 v4, v12, v8 offset0:{L_QS//256} offset1:{L_QT//256}',
       f'ds_write2st64_b32 v4, v6, v11 offset0:{L_QW//256} offset1:{L_QK//256}',
       's_mov_b64 exec, vcc',
       f'ds_write2st64_b32 v{SP}, v{SE}, v8 offset0:{L_QS//256} offset1:{L_QT//256}',
       f'ds_write2st64_b32 v{SP}, v{EV}, v{MK} offset0:{L_QW//256} offset1:{L_QK//256}',
       's_mov_b64 exec, -1']
m('\n'.join(blk))
slot(7, L)
m(f's_mul_i32 s59, s7, s{sW}')
m('s_lshl_b32 s59, s59, 1')
m(f'v_mul_u32_u24 v4, s7, v{HH}')
m(f'v_add_u32 v{vQA}, s59, v4')
m(f'v_add_u32 v{vQ1}, v{vQA}, v{cP1}')
m(f'v_add_u32 v{vQP}, v{vQA}, v{cP2}')
m(f'v_mad_u32_u24 v4, s7, v{cP3}, v{cP4}')
m(f'v_add_u32 v{vQE}, s59, v4')
m(f'v_add_u32 v14, s7, v{vQA}')
qm = []
for s in range(4):
    for nu in range(4):
        c = '0' if s == 0 else f'v[{QACC+4*nu}:{QACC+4*nu+3}]'
        qm.append(f'v_mfma_f32_16x16x32_bf16 v[{QACC+4*nu}:{QACC+4*nu+3}], v[{W2F+4*s}:{W2F+4*s+3}], v[{XF+16*s+4*nu}:{XF+16*s+4*nu+3}], {c}')
QSP = opt('qsp', 2)
for n_, l in enumerate(L):
    if n_ % QSP == 0 and qm: a(qm.pop(0))
    a(l)
for l in qm: a(l)
slot(8)
a('s_mov_b32 s58, 0x00010001')
a(f's_and_b32 s58, s58, s{sQM}')
a('s_mov_b32 s59, s58')
a(f's_mov_b64 exec, s[{sQM}:{sQM+1}]')
a.nop(opt('qnop', 1))
for nu in range(4):
    if nu == 3: a('s_mov_b64 exec, s[58:59]')
    for r in range(4): a(f'v_mul_f32 v{QACC+4*nu+r}, {NEGLOG2E:#x}, v{QACC+4*nu+r}')
    for r in range(2): a(f'v_cvt_pk_bf16_f32 v{QACC+4*nu+r}, v{QACC+4*nu+2*r}, v{QACC+4*nu+2*r+1}')
    a(f'ds_write_b64 v{vQW}, v[{QACC+4*nu}:{QACC+4*nu+1}] offset:{16*NSTR*nu}')
a('s_mov_b64 exec, -1')
slot(9)
a('s_waitcnt lgkmcnt(0)')
st(0); st(2)
a('s_barrier')
st(2); st(4)
def qbread(buf, beta):
    return [f'ds_read_b64_tr_b16 v[{QB[buf]}:{QB[buf]+1}], v{TA} offset:{64*beta}']
def paread(half):
    return [f'ds_read_b128 v[{PA[half]+4*x}:{PA[half]+4*x+3}], v{RA+(x>>1)} offset:{HB*half+32*(x&1)}' for x in range(4)]
def mfmas(beta):
    z = ZB[beta & 1]; zz = f'v[{z}:{z+15}]'
    q = QB[beta & 1]; p = PA[beta >> 1] + 8*(beta & 1)
    return [f'v_mfma_f32_32x32x8_bf16 {zz}, v[{TM}:{TM+1}], v[{q}:{q+1}], 0',
            f'v_mfma_f32_32x32x16_bf16 {zz}, v[{EC}:{EC+3}], v[{W3+4*beta}:{W3+4*beta+3}], {zz}',
            f'v_mfma_f32_32x32x16_bf16 {zz}, v[{p}:{p+3}], v[{I0}:{I0+3}], {zz}',
            f'v_mfma_f32_32x32x16_bf16 {zz}, v[{p+4}:{p+7}], v[{I1}:{I1+3}], {zz}']
a(f'ds_read_b32 v6, v{vQE} offset:{L_QS+16}')
a(f'ds_read_b32 v7, v{vQP} offset:{L_QS+16}')
a(f'ds_read_b32 v{SE}, v{vQE} offset:{L_QS+32}')
a(f'ds_read_b32 v{SP}, v{vQP} offset:{L_QS+32}')
a(f'ds_read_b32 v12, v14 offset:{L_QT-4}')
a(f'ds_read_b32 v13, v14 offset:{L_QW-4}')
a('v_mov_b32 v5, 0')
a(f'ds_write_b32 v{vQA}, v5 offset:{L_QK+16}')
a(f'ds_read_b128 v[{EN}:{EN+3}], v5 offset:{L_MISC}')
for l in qbread(0, 0) + qbread(1, 1): a(l)
rest = [(l, 'h0') for l in hq] + [(f's_mov_b32 m0, s{sM0B}\ns_nop 0', None)] + [(l, 'h1') for l in dma(1)]
def hiss(n):
    while rest and (n > 0 or rest[0][1] is None):
        l, t = rest.pop(0); a(l)
        if t: vm.append(t); n -= 1
HP = [int(c) for c in str(opt('hp', 122))]
hiss(HP[0])
st(2); st(4)
slot(10)
assert not wq
a(f's_cmp_eq_u32 s{sFIRST}, 0')
a(vwait('WU1'))
a('s_cbranch_scc1 L_noq')
for s in range(4):
    for nu in range(4):
        c = '0' if s == 0 else f'v[{R+4*nu}:{R+4*nu+3}]'
        a(f'v_mfma_f32_16x16x32_bf16 v[{R+4*nu}:{R+4*nu+3}], v[{WU1F+4*s}:{WU1F+4*s+3}], v[{XF+16*s+4*nu}:{XF+16*s+4*nu+3}], {c}')
        for l in late_c[:2]: a(l)
        late_c = late_c[2:]
for l in late_c: a(l)
a(f's_mov_b32 s{sFIRST}, 0')
for r in range(16): a(f'v_mul_f32 v{R+r}, {NEGLOG2E:#x}, v{R+r}')
a.label('L_noq')
hiss(HP[1])
a('s_waitcnt lgkmcnt(0)')
a(f'v_add_u32 v6, v6, v{I4}')
a(f'ds_read_b32 v{EOr}, v6 offset:{L_EO}')
a(f'ds_read_b128 v[{PTr}:{PTr+3}], v7')
T1 = opt('t1', 0)
if T1: a(f'ds_read_b32 v{CIr}, v6')
a(f'v_cmp_eq_u32 vcc, {OOBV:#x}, v13')
a(f's_lshl_b32 s58, s{sW}, 10')
a(f's_add_u32 s58, s58, {L_CARRY-L_ZERO}')
a(f'v_lshl_add_u32 v4, v{HH}, 9, s58')
a('s_mov_b64 exec, vcc')
a(f'ds_write_b32 v12, v4 offset:{L_NODE+768}')
a('s_mov_b64 exec, -1')
a(f's_mul_i32 s58, s57, s{sW}')
a(f's_sub_i32 s58, s{sT}, s58')
a('s_max_i32 s58, s58, 0')
a('s_add_u32 s58, s58, 15')
a('s_lshr_b32 s58, s58, 4')
a(f's_min_u32 s{sN}, s{sN}, s58')
a(f's_add_u32 s{sN}, s{sN}, 1')
a(f's_mov_b32 s{sPASS}, 1')
a(f's_mov_b32 s{sTC}, 2')
tA1, tA2, tC1, tC2, tW1, tW2, tH, tF, tCY, tO = 4, 5, 6, 7, 8, 9, 11, 12, 13, 14
a(f's_cmp_lt_u32 s{sW}, 4')
a('s_cselect_b32 s58, 48, 16')
a('v_lshrrev_b32 v15, 4, v0')
a(f'v_mul_u32_u24 v{tC1}, {NSTR}, v15')
a(f's_mul_i32 s59, s58, {NSTR}')
a(f'v_add_u32 v{tC1}, {L_NODE+NSTR}, v{tC1}')
a(f'v_add_u32 v{tC2}, s59, v{tC1}')
a(f'v_and_b32 v{tF}, 15, v0')
a(f'v_lshlrev_b32 v250, 4, v{tF}')
a(f'v_add_u32 v{tA1}, v250, v{tC1}')
a(f'v_add_u32 v{tA2}, v250, v{tC2}')
a(f'v_and_b32 v{tW1}, 15, v15')
a(f'v_xor_b32 v{tW1}, v{tW1}, v{tF}')
a(f'v_lshlrev_b32 v{tW1}, 4, v{tW1}')
a(f'v_lshl_add_u32 v{tW1}, v15, 8, v{tW1}')
a(f'v_add_u32 v{tW1}, {L_STG}, v{tW1}')
a('s_lshl_b32 s59, s58, 8')
a(f'v_add_u32 v{tW2}, s59, v{tW1}')
a(f'v_lshl_add_u32 v{tH}, v15, 9, v250')
a(f'v_lshlrev_b32 v{tCY}, 4, v0')
a(f'v_lshl_add_u32 v{tO}, v15, 16, v250')
a(f's_lshl_b32 s3, s58, 16')
a(f's_add_u32 s3, s3, s{sNODE0}')
hiss(HP[2])
a(f's_cmp_eq_u32 s{sW}, 0')
a('s_cselect_b32 s6, 0xffff, 0')
a('s_mov_b32 s7, 0')
a(f's_cmp_lt_u32 s{sW}, 4')
a('s_cselect_b64 s[6:7], s[6:7], -1')
a('s_add_u32 s56, s56, 0x10000')
tOW, tO3, KV = vTCH, vPF, 15
a(f'v_lshrrev_b32 v{tOW}, 1, v15')
a(f'v_xor_b32 v{tOW}, v{tOW}, v{tF}')
a(f'v_lshlrev_b32 v{tOW}, 4, v{tOW}')
a(f'v_lshl_add_u32 v{tOW}, v{tF}, 8, v{tOW}')
a(f'v_and_b32 v{tO3}, 1, v15')
a(f'v_lshl_add_u32 v{tOW}, v{tO3}, 3, v{tOW}')
a(f'v_add_u32 v{tOW}, {L_STG+16384}, v{tOW}')
a(f'v_lshlrev_b32 v{tO3}, 3, v15')
a(f'v_lshl_add_u32 v{tO3}, v{tF}, 1, v{tO3}')
a(f'v_add_u32 v{tO3}, {L_STG+16384+48*256}, v{tO3}')
a(f'v_mov_b32 v{KV}, {NEGLOG2E:#x}')
a('s_movk_i32 s39, 0x207')
a(f'v_add_u32 v{tF}, {L_STG}, v{vXF}')
a(f's_cmp_eq_u32 s{sBML}, 0')
a('s_cbranch_scc0 L_np2')
a(f's_mov_b32 s{sBML}, 1')
for i in range(4): a(f'v_readfirstlane_b32 s{BM+i}, v{EN+i}')
a.label('L_np2')
a(f's_or_b64 s[58:59], s[{BM}:{BM+1}], s[{BM+2}:{BM+3}]')
a(f's_cselect_b32 s5, 1, s{sMORE}')
a(f's_lshl_b32 s4, s{sSAFE}, 3')
a(f's_add_u32 s4, s4, s{sW}')
for i in range(4):
    a(f'v_mov_b32 v{AA+i}, 0')
    a(f'v_mov_b32 v{KK+i}, 0')
    a(f'v_mov_b32 v{MB+12+i}, 0')
    a(f'v_mov_b32 v{NF+i}, 0')
    a(f'v_mov_b32 v{D+i}, 1.0')
a('s_waitcnt lgkmcnt(0)')
a(f'v_add_u32 v{EV}, v{EOr}, v{H16}')
if T1: a(f'v_lshl_add_u32 v{CIr}, v{H16}, 3, v{CIr}')
a(f'v_ashrrev_i32 v{MK}, 31, v{EV}')
a(f'v_not_b32 v{MK}, v{MK}')
if BENCH: a(f's_mov_b32 s{sN}, {opt("bn", 50)}')
st(4)
a(f's_bitcmp1_b32 s{sW}, {opt("wbit", 2)}')
a('s_cbranch_scc%d L_prime_B' % opt('wsel', 1))
def prime2(tag):
    ns = nstamp[0]
    for l, t in rest: a(l)
    st(4)
    a(f's_cmp_gt_u32 s{sN}, 1')
    a(f's_cselect_b32 s{PS+2}, s{PS+2}, 0')
    a(f's_cselect_b32 s{Ed+2}, s{Ed+2}, 0')
    for i in range(4): a(f'v_add_u32 v{DA+i}, v{PTr+i}, v{LC}')
    a(f's_mov_b32 m0, s{sM0A}')
    mf0 = mfmas(0)
    a(mf0[0])
    tch = f'buffer_load_dword v{CIr+1}, v{CIr}, s[{PS}:{PS+3}], s{SO} offen'
    def b4():
        a('s_barrier')
        st(4)
        a(f'ds_read_b32 v{tC1}, v{tC1} offset:768')
        a(f'ds_read_b32 v{tC2}, v{tC2} offset:768')
    if T1 in (1, 3): b4()
    if T1 in (1, 2): a(eload(EN)); a(tch)
    if T1 == 3: a(eload(EN))
    a('s_waitcnt vmcnt(%d)' % {0: 4, 1: 6, 2: 6, 3: 5}[T1])
    for l in paread(0): a(l)
    a(mf0[1])
    a('s_waitcnt lgkmcnt(0)')
    a(mf0[2])
    a(mf0[3])
    if T1 in (0, 2): b4()
    st(0); st(2); st(4)
    if STAMP and FINE == 0: a('s_memrealtime s[88:89]')
    if T1 == 0: a(eload(EN))
    for l in dma(0): a(l)
    a('s_waitcnt lgkmcnt(0)')
    a(f'v_add_u32 v{tC1}, v250, v{tC1}')
    a(f'v_add_u32 v{tC2}, v250, v{tC2}')
    a.nop(3)
    st(4)
    if tag == 'A': nstamp[0] = ns
    a(f's_cmp_lg_u32 s{sSLOW}, 0')
    a('s_cbranch_scc1 L_pre_s')

def dswr(safe):
    if not safe: return [f'ds_write_b128 v{AA+q}, v[{MB+4*q}:{MB+4*q+3}]' for q in range(4)]
    o = []
    for q in range(4):
        o += [f'ds_add_f32 v{AA+q}, v{MB+4*q+b} offset:{4*b}' for b in range(4)] + ['s_waitcnt lgkmcnt(0)']
    return o
def guard():
    if not X('g4'): return [f'v_bitop3_b32 v{G+i}, v{G+i}, v{RC+2*i}, v{RC+2*i+1} bitop3:0x80' for i in range(2)]
    return [f'v_and_b32 v{G+(q&1)}, v{G+(q&1)}, v{RC+q}' for q in range(4)]
def mchain(beta):
    m = [MB+4*q+beta for q in range(4)]
    o = []
    for q in range(4):
        o += [f'v_and_b32 v{m[q]}, v{m[(q-1)&3]}, v{KK+q}', f'v_fmac_f32 v{m[q]}, v{NF+q}, v{RCq(q)}']
    return o
def loop(safe, mode):
    sfx = '_s' if safe else '_' + mode
    if safe:
        a.label('L_pre_s')
        for i in range(12): a(f'v_mov_b32 v{MB+i}, 0')
    bz = 0 if BENCH else 16
    TPs = []; PPs = []
    for beta in range(4):
        body = []; e = body.append
        z = ZB[beta & 1]
        tr = [f'v_rcp_f32 v{RCq(q)}, v{D+q}' for q in range(4)] + [f'v_exp_f32 v{Uq(r>>2,r&3)}, v{z+r}' for r in range(16)]
        mf = mfmas((beta+1) & 3)
        if X('m16'):
            b1 = (beta+1) & 3; zn = ZB[b1 & 1]; q_ = QB[b1 & 1]; p_ = PA[b1 >> 1] + 8*(b1 & 1)
            m1 = [f'v_mfma_f32_16x16x16_bf16 v[{zn+4*i}:{zn+4*i+3}], v[{TM}:{TM+1}], v[{q_}:{q_+1}], 0' for i in range(4)]
            m2 = [f'v_mfma_f32_16x16x32_bf16 v[{zn+4*i}:{zn+4*i+3}], v[{p_+4*(i&1)}:{p_+4*(i&1)+3}], v[{(W3+4*b1) if i&2 else I0}:{(W3+4*b1+3) if i&2 else I0+3}], v[{zn+4*i}:{zn+4*i+3}]' for i in range(4)]
            mf = m1 + m2
            if X('m16b'): mf = [l.replace(f', v[{zn+4*i}:{zn+4*i+3}]', ', 0') if False else l for i, l in enumerate(m2)]
        if X('noq'): mf = [mf[1].rsplit(',', 1)[0] + ', 0'] + mf[2:] + ['s_nop 0']
        if X('nomf2'): mf = mf[:2] + ['s_nop 0', 's_nop 0']
        if X('nomf3'): mf = mf[:1] + ['s_nop 0']*3
        if X('noexp'): tr = [t.replace('v_exp_f32', 'v_lshlrev_b32').replace(', v', ', 0, v') if 'exp' in t else t for t in tr]
        qb = qbread(beta & 1, (beta+2) & 3)
        early = []; late = []; trx = []
        if beta == 0:
            fill = qb + [f'ds_read_b128 v[{PTr}:{PTr+3}], v{SP}', f'ds_read_b32 v{TAr}, v{vQ1} offset:{L_QT+16}', 's_waitcnt vmcnt(5)'] + paread(1)
            ext = [f'v_add_u32 v{AA+q}, v{AA+q}, v{CA}' for q in range(4)] + [f'v_add_u32 v{SE}, v{SE}, v{I4}']
        if beta == 1:
            early = [f's_mov_b32 m0, s{sM0B}', f'ds_read_b128 v[{KK}:{KK+3}], v{vQA} offset:{L_QK}']
            fill = dma(1) + qb + [f'ds_read_b32 v{EOr}, v{SE} offset:{L_EO}'] + dswr(safe)
            late = ['s_waitcnt lgkmcnt(6)']
            ext = [f'v_add_u32 v{DA+i}, v{PTr+i}, v{LC}' for i in range(4)] + [f'v_add_u32 v{TA}, v{TAr}, v{CT}']
        if beta == 2:
            fill = qb + [f's_cmp_lt_u32 s{sTC}, s{sN}', f's_cselect_b32 s{PS+2}, s{PS+2}, 0', f's_cselect_b32 s{Ed+2}, s{Ed+2}, 0', f's_add_u32 s{sTC}, s{sTC}, 1',
                         's_waitcnt vmcnt(4)'] + paread(0)
            ext = [f'v_and_b32 v{TM+i}, v{TC+i}, v{MK}' for i in range(2)] + [f'v_mov_b32 v{EC+i}, v{EN+i}' for i in range(4)] + [f'v_add_u32 v{EV}, v{EOr}, v{H16}']
        if beta == 3:
            fill = [f's_mov_b32 m0, s{sM0A}'] + qb + [eload(EN)] + dma(0) + [f'ds_read_b128 v[{AA}:{AA+3}], v{vQA} offset:{L_QW}',
                    f'ds_read_b32 v{SP}, v{vQP} offset:{L_QS+48}', f'ds_read_b32 v{SE}, v{vQE} offset:{L_QS+48}',
                    f's_sub_u32 s58, s{sTC}, 2', f's_cmp_lt_u32 s58, s{sN}']
            tr = tr + [f'v_ashrrev_i32 v{MK}, 31, v{EV}']
            ext = [f'v_not_b32 v{MK}, v{MK}'] + [f'v_add_u32 v{p}, {bz}, v{p}' for p in (vQA, vQ1, vQP, vQE)]
        if X('it'):
            fill = fill + ['s_memtime s[100:101]']
            early = early + [f's_mov_b32 s91, m0', f's_mov_b32 m0, s90', 'v_writelane_b32 v250, s100, m0', 's_mov_b32 m0, s91', 's_add_u32 s90, s90, 1'] if beta != 0 else [f's_mov_b32 s91, m0', f's_mov_b32 m0, s90', 'v_writelane_b32 v250, s100, m0', 's_mov_b32 m0, s91', 's_add_u32 s90, s90, 1']
        if X('nodsw'): fill = [l for l in fill if not l.startswith('ds_write')]
        if X('nords'): fill = [l for l in fill if not l.startswith('ds_read')]
        if X('nodma'): fill = [l for l in fill if not l.startswith('buffer_')]
        MSP = opt('msp', 4)
        FAT = opt('fatA', 0) if mode == 'A' else len(tr) - opt('fatB', 0)
        if X('noext'): ext = []
        e('s_setprio %d' % (opt('pA', 1) if mode == 'A' else opt('pB', 2)))
        e('s_waitcnt lgkmcnt(0)')
        for l in early: e(l)
        if FAT == 0:
            for l in fill: e(l)
        mi = 0
        for idx, t in enumerate(tr):
            e(t)
            if idx % MSP == 0 and mi < len(mf): e(mf[mi]); mi += 1
            if idx == FAT - 1:
                for l in fill: e(l)
        for l in late: e(l)
        TPs.append(body); body = []; e = body.append
        e('s_setprio %d' % (opt('qA', 3) if mode == 'A' else opt('qB', 0)))
        mc = mchain((beta-1) & 3)
        if not safe:
            pl = [f'v_add_f32 v{D+q}, 1.0, v{Uq(q,0)}' for q in range(4)]
            for stp in range(1, 4):
                for q in range(4):
                    dst = NF+q if stp == 3 else z+4*q+stp
                    pl.append(f'v_fma_f32 v{dst}, v{z+4*q+stp}, v{D+q}, v{z+4*q+stp-1}')
                for q in range(4):
                    dst = NF+q if stp == 3 else z+4*q+stp
                    pl.append(f'v_fmac_f32 v{dst}, v{z+4*q+stp-1}, v{Uq(q,stp)}')
                for q in range(4): pl.append(f'v_fmac_f32 v{D+q}, v{D+q}, v{Uq(q,stp)}')
            gd = guard()
            if X('pk'):
                P2 = lambda r: f'v[{r}:{r+1}]'
                pl = [f'v_pk_add_f32 {P2(D+2*p)}, {P2(U+8*p)}, 1.0 op_sel_hi:[1,0]' for p in range(2)]
                for stp in range(1, 4):
                    for p in range(2):
                        dst = NF+2*p if stp == 3 else z+8*p+2*stp
                        pl.append(f'v_pk_fma_f32 {P2(dst)}, {P2(z+8*p+2*stp)}, {P2(D+2*p)}, {P2(z+8*p+2*stp-2)}')
                    for p in range(2): pl.append(f'v_pk_fma_f32 {P2(D+2*p)}, {P2(D+2*p)}, {P2(U+8*p+2*stp)}, {P2(D+2*p)}')
                    for p in range(2):
                        dst = NF+2*p if stp == 3 else z+8*p+2*stp
                        pl.append(f'v_pk_fma_f32 {P2(dst)}, {P2(z+8*p+2*stp-2)}, {P2(U+8*p+2*stp)}, {P2(dst)}')
                if X('pk2'):
                    xs = mc[:]; ex = ext + [] ; o = []
                    while xs or ex:
                        if xs: o.append(xs.pop(0))
                        if ex: o.append(ex.pop(0))
                    pl = o + pl; mc = []; ext = []
                else:
                    o = []
                    for n_, l in enumerate(pl):
                        if n_ % 2 == 0 and mc: o.append(mc.pop(0))
                        o.append(l)
                    pl = o
            ci = 0
            for idx, l in enumerate(pl):
                if idx % 3 == 0 and ci < len(mc): e(mc[ci]); ci += 1
                e(l)
            for l in ext + gd: e(l)
            if mode == 'A' and opt('qt', 0): body.insert(len(body) - opt('qt', 0), 's_setprio 3')
        else:
            for l in mc: e(l)
            for r in range(16): e(f'v_add_f32 v{U+r}, 1.0, v{U+r}')
            for r in range(16): e(f'v_rcp_f32 v{U+r}, v{U+r}')
            for q in range(4): e(f'v_mul_f32 v{NF+q}, v{z+4*q}, v{Uq(q,0)}')
            for stp in range(1, 4):
                for q in range(4): e(f'v_fmac_f32 v{NF+q}, v{z+4*q+stp}, v{Uq(q,stp)}')
            for l in ext: e(l)
        PPs.append(body)
    if not safe and T1 in (1, 2):
        for l in TPs[0]: a(l.replace('vmcnt(5)', 'vmcnt(6)'))
        a(f's_branch L_pp0{sfx}')
    elif mode == 'B': a('s_branch L_mid_B')
    if mode == 'A':
        if not safe: a('.p2align 6')
        a.label('L_loop' + sfx)
        for b in range(4):
            for l in TPs[b] + ([f'L_pp0{sfx}:'] if b == 0 else []) + PPs[b]: a(l)
        a(f's_cbranch_scc1 L_loop{sfx}')
        for s_ in range(4): a(fragl(WU2, 56, s_))
    else:
        a('.p2align 6')
        a.label('L_loop' + sfx)
        for l in PPs[3]: a(l)
        a.label('L_mid' + sfx)
        for b in range(4):
            for l in TPs[b] + ([f'L_pp0{sfx}:'] if b == 0 else []) + (PPs[b] if b < 3 else []): a(l)
        a(f's_cbranch_scc1 L_loop{sfx}')
        for s_ in range(4): a(fragl(WU2, 56, s_))
        for l in PPs[3]: a(l)
    if mode == 'B':
        a.label('L_drain'); a('s_setprio 0')
    if mode == 'A' and not safe:
        a('s_branch L_drain'); return
    for q in range(4): a(f'v_rcp_f32 v{RCq(q)}, v{D+q}')
    a('s_waitcnt lgkmcnt(0)')
    for q in range(4): a(f'v_add_u32 v{AA+q}, v{AA+q}, v{CA}')
    for l in mchain(3): a(l)
    for l in dswr(safe): a(l)
    for l in guard(): a(l)
    if not safe:
        a(f'ds_write_b128 v{tCY}, v[{MB+12}:{MB+15}] offset:{L_CARRY}')
prime2('A')
loop(False, 'A')
loop(True, 'A')
a('s_branch L_done')
a.label('L_prime_B')
prime2('B')
loop(False, 'B')
a.label('L_done')
st(0); st(3)
if STAMP and FINE == 0: a('s_memrealtime s[90:91]')
a('s_cmp_lg_u32 s5, 0')
a('s_waitcnt vmcnt(4) lgkmcnt(0)')
st(3)
a('s_barrier')
st(0); st(3)
a('s_cbranch_scc1 L_again')
AG = 16
def rd2(dst, adr, off):
    for u in range(2): a(f'ds_read_b128 v[{dst+4*u}:{dst+4*u+3}], v{adr} offset:{off+256*u}')
rd2(AG, tA1, 0); rd2(AG+8, tC1, L_ZERO)
a('s_cmp_lt_u32 s4, 4')
a('s_mov_b64 exec, s[6:7]')
rd2(AG+16, tA2, 0); rd2(AG+24, tC2, L_ZERO)
a('s_mov_b64 exec, -1')
a(f'v_and_b32 v250, v{G}, v{G+1}')
fa = [tF, tA1, tA2, tC1]
for s in range(1, 4): a(f'v_xor_b32 v{fa[s]}, {64*s}, v{tF}')
a('v_cmp_gt_u32 vcc, 0x20000000, v250')
a('s_mov_b32 s58, 0x00010001')
a('s_mov_b32 s59, 0x00010001')
a('v_mov_b32 v250, 0')
a('s_mov_b64 s[68:69], vcc')
a('s_cbranch_scc0 L_nohead')
rd2(AG+32, tH, L_HEAD)
a('s_waitcnt lgkmcnt(0)')
for r in range(8): a(f'v_add_f32 v{AG+r}, v{AG+r}, v{AG+32+r}')
a.label('L_nohead')
a('s_waitcnt lgkmcnt(%d)' % (0 if STAMP else 4))
for r in range(8): a(f'v_add_f32 v{AG+r}, v{AG+r}, v{AG+8+r}')
for r in range(4): a(f'v_cvt_pk_bf16_f32 v{AG+8+r}, v{AG+2*r}, v{AG+2*r+1}')
a(f'ds_write_b128 v{tW1}, v[{AG+8}:{AG+11}]')
a('s_mov_b64 exec, s[6:7]')
a('s_cbranch_execz L_cv2')
a('s_waitcnt lgkmcnt(1)')
for r in range(8): a(f'v_add_f32 v{AG+16+r}, v{AG+16+r}, v{AG+24+r}')
for r in range(4): a(f'v_cvt_pk_bf16_f32 v{AG+24+r}, v{AG+16+2*r}, v{AG+16+2*r+1}')
a(f'ds_write_b128 v{tW2}, v[{AG+24}:{AG+27}]')
a.label('L_cv2')
a('s_mov_b64 exec, -1')
a('s_waitcnt lgkmcnt(0)')
st(3)
a('s_barrier')
st(3)
EACC = 96
def frd(s, nu): a(f'ds_read_b128 v[{XF+16*s+4*nu}:{XF+16*s+4*nu+3}], v{fa[s]} offset:{4096*nu}')
def fmm(s, nu):
    c = f'v[{R+4*nu}:{R+4*nu+3}]' if s == 0 else f'v[{EACC+4*nu}:{EACC+4*nu+3}]'
    return f'v_mfma_f32_16x16x32_bf16 v[{EACC+4*nu}:{EACC+4*nu+3}], v[{WU2+4*s}:{WU2+4*s+3}], v[{XF+16*s+4*nu}:{XF+16*s+4*nu+3}], {c}'
if STAMP: a('s_waitcnt lgkmcnt(0)')
for s in range(4): frd(s, 0); frd(s, 1)
for s in range(4): frd(s, 2)
a('s_mov_b64 exec, s[58:59]')
for s in range(3): frd(s, 3)
a('s_waitcnt lgkmcnt(13) vmcnt(0)')
frd(3, 3)
a('s_mov_b64 exec, -1')
Y = 112
a('s_mov_b32 s58, 0x000f000f')
a('s_mov_b32 s59, 0x000f000f')
for s in range(4):
    if s: a(f's_waitcnt lgkmcnt({14-2*s})')
    for nu in range(2): a(fmm(s, nu))
def silu(regs, tmp):
    o = [[f'v_exp_f32 v{tmp+i}, v{r}' for i, r in enumerate(regs)],
         [f'v_fma_f32 v{tmp+i}, v{tmp+i}, v{KV}, v{KV}' for i, r in enumerate(regs)],
         [f'v_rcp_f32 v{tmp+i}, v{tmp+i}' for i, r in enumerate(regs)],
         [f'v_mul_f32 v{tmp+i}, v{r}, v{tmp+i}' for i, r in enumerate(regs)]]
    return sum(o, [])
def fin(nu, tmp):
    return [f'v_cvt_pk_bf16_f32 v{tmp}, v{tmp}, v{tmp+1}', f'v_cvt_pk_bf16_f32 v{tmp+1}, v{tmp+2}, v{tmp+3}',
            f'ds_write_b64 v{tOW}, v[{tmp}:{tmp+1}] offset:{4096*nu}']
a('s_waitcnt lgkmcnt(0)')
st(3)
L = silu(list(range(EACC, EACC+8)), Y)
mq = [fmm(s, nu) for s in range(4) for nu in (2, 3)]
a(mq.pop(0)); a(mq.pop(0)); a.nop(5)
for n_, l in enumerate(L):
    a(l)
    if n_ < 6: a(mq.pop(0))
f01 = fin(0, Y) + fin(1, Y+4)
E3 = EACC + 12
for r in range(1, 4):
    a(f'v_mov_b32_dpp v{E3}, v{E3+r} row_shr:{r} row_mask:0xf bank_mask:0xf')
    for l in f01[:2]: a(l)
    f01 = f01[2:]
a(f'v_add_f32 v{EACC}, v{EACC}, v{EACC+4}')
a(f'v_add_f32 v{EACC}, v{EACC}, v{EACC+8}')
for l in silu(list(range(EACC+8, EACC+13)), Y+8): a(l)
a(f'v_cmp_class_f32 vcc, v{EACC}, s39')
for l in fin(2, Y+8): a(l)
a('s_or_b64 s[68:69], s[68:69], vcc')
a('s_mov_b64 exec, s[58:59]')
a(f'v_cmp_class_f32 vcc, v{E3}, s39')
a(f'v_cvt_pk_bf16_f32 v{Y+12}, v{Y+12}, v{Y+12}')
a(f'ds_write_b16 v{tO3}, v{Y+12}')
a('s_or_b64 exec, s[68:69], vcc')
a(f'ds_write_b32 v250, v{KV} offset:{L_MISC+16}')
a('s_mov_b64 exec, -1')
a('s_waitcnt lgkmcnt(0)')
st(3)
a('s_barrier')
a(f'ds_read_b128 v[16:19], v{tW1} offset:16384')
a('s_mov_b64 exec, s[6:7]')
a(f'ds_read_b128 v[20:23], v{tW2} offset:16384')
a('s_mov_b64 exec, -1')
a(f'ds_read_b32 v24, v250 offset:{L_MISC+16}')
OSC = '' if X('onosc1') else ' sc1'
a('s_waitcnt lgkmcnt(%d)' % (0 if STAMP else 2))
a(f'buffer_store_dwordx4 v[16:19], v{tO}, s[{Od}:{Od+3}], s{sNODE0} offen' + OSC)
a('s_mov_b64 exec, s[6:7]')
a('s_cbranch_execz L_st2')
a('s_waitcnt lgkmcnt(1)')
a(f'buffer_store_dwordx4 v[20:23], v{tO}, s[{Od}:{Od+3}], s3 offen' + OSC)
a.label('L_st2')
a('s_mov_b64 exec, -1')
st(0); st(3)
if STAMP:
    a('s_waitcnt vmcnt(0) lgkmcnt(0)')
    stamp()
    a('s_waitcnt lgkmcnt(0)')
    a(f's_lshl_b32 s58, s2, 3')
    a(f's_add_u32 s58, s58, s{sW}')
    a('s_lshl_b32 s58, s58, 7')
    a(f's_add_u32 s58, s58, {WS_STAMP:#x}')
    a('v_mov_b32 v4, 0')
    a('s_mov_b64 exec, 1')
    for i in range(nstamp[0]):
        a(f'v_mov_b32 v6, s{70+2*i}')
        a(f'buffer_store_dword v6, v4, s[{WSd}:{WSd+3}], s58 offen offset:{4*i}')
    if FINE == 0:
        a('s_sub_u32 s90, s90, s88'); a('v_mov_b32 v6, s90'); a(f'buffer_store_dword v6, v4, s[{WSd}:{WSd+3}], s58 offen offset:{4*31}')
    a('s_mov_b64 exec, -1')
    if X('it'):
        a('s_mov_b64 exec, 0x7fffffff'); a(f'v_lshlrev_b32 v4, 2, v{LANE}'); a(f'buffer_store_dword v250, v4, s[{WSd}:{WSd+3}], s58 offen offset:4'); a('s_mov_b64 exec, -1')
    print('nstamps', nstamp[0])
if BENCH: a('s_endpgm')
a(f's_cmp_lg_u32 s{sSAFE}, 0')
a('s_cbranch_scc1 L_main_end')
a('s_waitcnt lgkmcnt(0)')
a('v_readfirstlane_b32 s58, v24')
a('s_cmp_eq_u32 s58, 0')
a('s_cbranch_scc1 L_main_end')
a(f's_mov_b32 s{sSAFE}, 1')
a('s_waitcnt vmcnt(0)')
a('s_barrier')
celladdr()
a('s_branch L_cells')
a.label('L_again')
a(f's_cmp_lg_u32 s{sMORE}, 0')
a('s_cbranch_scc1 L_reinit')
a(f's_ff1_i32_b64 s58, s[{BM}:{BM+1}]')
a('s_cmp_eq_i32 s58, -1')
a('s_cbranch_scc1 L_pophi')
a(f's_bitset0_b64 s[{BM}:{BM+1}], s58')
a('s_branch L_popped')
a.label('L_pophi')
a(f's_ff1_i32_b64 s58, s[{BM+2}:{BM+3}]')
a(f's_bitset0_b64 s[{BM+2}:{BM+3}], s58')
a('s_add_u32 s58, s58, 64')
a.label('L_popped')
a(f's_mul_i32 s59, s58, {CH*32}')
a(f'v_mov_b32 v{CB}, s59')
a(f's_mul_i32 s59, s58, {CH*4}')
a('s_lshl_b32 s58, s58, 2')
a(f's_add_u32 s58, s58, {WS_OVFLEN:#x}')
a('v_mov_b32 v4, 0')
a('v_lshlrev_b32 v5, 5, v0')
a(f'buffer_load_dword v6, v4, s[{WSd}:{WSd+3}], s58 offen')
a(f's_add_u32 s58, s59, {WS_OVFREC:#x}')
a(f'buffer_load_dwordx4 v[{REC}:{REC+3}], v5, s[{WSd}:{WSd+3}], s58 offen')
a(f'buffer_load_dwordx4 v[{REC+4}:{REC+7}], v5, s[{WSd}:{WSd+3}], s58 offen offset:16')
a(f's_add_u32 s58, s59, {WS_OVFBKT:#x}')
a(f'buffer_load_dwordx4 v[{U}:{U+3}], v5, s[{WSd}:{WSd+3}], s58 offen')
a(f'buffer_load_dwordx4 v[{U+4}:{U+7}], v5, s[{WSd}:{WSd+3}], s58 offen offset:16')
a(f's_mul_i32 s57, s2, {CS}')
a('s_waitcnt vmcnt(0)')
for k in range(8):
    a(f'v_add_u32 v8, {4*k}, v5')
    a('v_cmp_lt_u32 vcc, v8, v6')
    a(f'v_cmp_eq_u32 s[58:59], s57, v{U+k}')
    a('s_and_b64 vcc, vcc, s[58:59]')
    a.nop(1)
    a(f'v_cndmask_b32 v{REC+k}, -1, v{REC+k}, vcc')
a('s_branch L_reinit')
a.label('L_main_end')
a('s_endpgm')
print('vgprs', NVG, 'lds', LDS_MAIN)

hdr = open('gather_scatter__mpnn_edge_mlp__graph.s.ref').read().split('; Override')[0]
hdr += f'; @launch kernel=pre_kernel grid=({PRE_WGS},1,1) block=(512,1,1) lds={LDS_PRE}\n'
hdr += f'; @launch kernel=main_kernel grid=(256,1,1) block=(512,1,1) lds={LDS_MAIN}\n'
hdr += '.amdgcn_target "amdgcn-amd-amdhsa--gfx950"\n.text\n'
def kd(name, vg):
    return f'''.amdhsa_kernel {name}
  .amdhsa_next_free_vgpr {vg}
  .amdhsa_next_free_sgpr 102
  .amdhsa_accum_offset {vg}
  .amdhsa_group_segment_fixed_size 0
  .amdhsa_kernarg_size 72
  .amdhsa_user_sgpr_count 2
  .amdhsa_user_sgpr_kernarg_segment_ptr 1
  .amdhsa_system_sgpr_workgroup_id_x 1
  .amdhsa_float_denorm_mode_32 3
.end_amdhsa_kernel
'''
tail = '.section .rodata,"a"\n.p2align 6\n' + kd('pre_kernel', 160) + '.p2align 6\n' + kd('main_kernel', 256)
open(OUTF, 'w').write(hdr + a.text() + tail)
for e in check(a.lines): print(e)
print('lines', len(a.lines))
```

```python
import sys, struct
from asmlib import *

STAMP = '--stamp' in sys.argv
OUTF = [a for a in sys.argv[1:] if not a.startswith('--')][0]

N, E = 12500, 400000
NPB = 49
NCH, CH = 125, 3200
WS_P = 4096
WS_CELLS = 0x400000
WS_FRAG = 0x800000
WS_OVFLEN = 0x900000
WS_OVFREC = 0x910000
WS_OVFBKT = 0xB00000
WS_STAMP = 0xD00000
WS_SIZE = 0x1000000
NEGLOG2E = struct.unpack('<I', struct.pack('<f', -1.4426950408889634))[0]
NEGLN2 = struct.unpack('<I', struct.pack('<f', -0.6931471805599453))[0]
PADV = 0x80000000
GR = int(([x.split('=')[1] for x in sys.argv if x.startswith('--gr=')] or [100])[0])
NGEMM = -(-N // GR)
PRE_WGS = NCH + NGEMM + 4

X = lambda f: ('--x-'+f) in sys.argv
opt = lambda n, d: int(([x.split('=')[1] for x in sys.argv if x.startswith('--'+n+'=')] or [d])[0])
LDS_PRE = 98304
a = Asm()
def srd(d, base, size):
    a(f's_mov_b32 s{d}, s{base}')
    a(f's_and_b32 s{d+1}, s{base+1}, 0xffff')
    a(f's_mov_b32 s{d+2}, {size:#x}')
    a(f's_mov_b32 s{d+3}, 0x20000')

PST = '--pstamp' in sys.argv
def ps(i):
    if PST: a(f's_memtime s[{70+2*i}:{71+2*i}]')
def pend():
    if PST:
        ps(4)
        a('s_waitcnt vmcnt(0) lgkmcnt(0)')
        ps(5)
        a('s_memrealtime s[84:85]')
        a('s_waitcnt lgkmcnt(0)')
        a('s_lshl_b32 s58, s2, 3')
        a('s_add_u32 s58, s58, s3')
        a('s_lshl_b32 s58, s58, 6')
        a(f's_add_u32 s58, s58, {0xD80000:#x}')
        a('v_mov_b32 v4, 0')
        a('s_mov_b64 exec, 1')
        for i in range(8):
            a(f'v_mov_b32 v6, s{70+2*i}')
            a(f'buffer_store_dword v6, v4, s[36:39], s58 offen offset:{4*i}')
        a('s_mov_b64 exec, -1')
a('.globl pre_kernel\n.p2align 8\n.type pre_kernel,@function')
a.label('pre_kernel')
a(f's_cmp_ge_u32 s2, {PRE_WGS}')
a('s_cbranch_scc1 L_pre_end')
ps(0)
if PST: a('s_memrealtime s[82:83]')
XS, SRC, DST, W, WS = 20, 24, 28, 32, 36
a(f's_load_dwordx2 s[{DST}:{DST+1}], s[0:1], 24')
a(f's_load_dwordx2 s[{XS}:{XS+1}], s[0:1], 0')
a(f's_load_dwordx2 s[{SRC}:{SRC+1}], s[0:1], 16')
a('s_load_dwordx4 s[12:15], s[0:1], 32')
a(f's_load_dwordx2 s[{WS}:{WS+1}], s[0:1], 64')
a('v_lshrrev_b32 v2, 6, v0')
a('v_and_b32 v3, 63, v0')
a('v_readfirstlane_b32 s3, v2')
a(f's_mov_b32 s{WS+2}, {WS_SIZE:#x}'); a(f's_mov_b32 s{WS+3}, 0x20000')
a(f's_cmp_ge_u32 s2, {NCH}')
a('s_cbranch_scc1 L_pre_gemm')
CS = 132
L_OVC = 256*CS
D0, S0, B4, RK, TK = 8, 16, 24, 32, 48
SC1 = '' if X('nosc1') else ' sc1'
a(f's_mul_i32 s40, s2, {CH*4}')
a('s_add_u32 s41, s40, 8192')
a('v_lshlrev_b32 v1, 4, v0')
for d in (SRC, DST): a(f's_mov_b32 s{d+2}, {E*4:#x}'); a(f's_mov_b32 s{d+3}, 0x20000')
a('v_mul_u32_u24 v4, 12, v0')
a('s_cmp_ge_u32 s3, 6')
a('s_waitcnt lgkmcnt(0)')
ps(1)
a(f'buffer_load_dwordx4 v[8:11], v1, s[{DST}:{DST+3}], s40 offen')
a('s_cbranch_scc1 L_p_no2')
a(f'buffer_load_dwordx3 v[12:14], v4, s[{DST}:{DST+3}], s41 offen')
a(f'buffer_load_dwordx3 v[20:22], v4, s[{SRC}:{SRC+3}], s41 offen')
a.label('L_p_no2')
a(f'buffer_load_dwordx4 v[16:19], v1, s[{SRC}:{SRC+3}], s40 offen')
a('v_min_u32 v40, 256, v0')
a('v_cmp_gt_u32 vcc, 256, v0')
a(f'v_mul_u32_u24 v40, {CS}, v40')
a('v_mov_b32 v42, 4')
a('v_mov_b32 v41, 0')
a('v_cndmask_b32 v43, v41, v42, vcc')
a('ds_write_b32 v40, v43')
for k in range(4, 7): a(f'v_mov_b32 v{RK+k}, 0')
a(f'v_lshlrev_b32 v{TK}, 16, v0')
a(f'v_add_u32 v{TK}, 0x4000000, v{TK}')
for k in range(1, 4): a(f'v_add_u32 v{TK+k}, {k<<14:#x}, v{TK}')
a(f'v_mul_u32_u24 v{TK+4}, {3<<14:#x}, v0')
a(f'v_add_u32 v{TK+4}, {0x4000000+(2048<<14):#x}, v{TK+4}')
for k in range(5, 7): a(f'v_add_u32 v{TK+k}, {(k-4)<<14:#x}, v{TK+4}')
a(f's_mov_b32 s46, {CS}')
a('v_lshrrev_b32 v44, 3, v0')
a('v_and_b32 v46, 7, v0')
a(f'v_mul_u32_u24 v45, {CS}, v44')
a('v_lshlrev_b32 v47, 14, v44')
a('v_lshl_add_u32 v47, v46, 4, v47')
a('v_and_b32 v60, 4, v0')
a('v_lshlrev_b32 v60, 4, v60')
a('v_and_b32 v46, 3, v0')
a('v_lshl_add_u32 v56, v46, 2, v45')
a('v_add_u32 v56, v56, v60')
for k in range(1, 4): a(f'v_add_u32 v{56+k}, {64*CS*k}, v56')
a(f's_lshl_b32 s47, s2, 7')
a(f's_add_u32 s47, s47, {WS_CELLS:#x}')
a('s_waitcnt lgkmcnt(0)')
a('s_barrier')
def part1(k):
    a(f'v_mul_u32_u24_sdwa v{B4+k}, s46, v{D0+k} dst_sel:DWORD dst_unused:UNUSED_PAD src0_sel:DWORD src1_sel:BYTE_0')
    a(f'v_lshlrev_b32_sdwa v{D0+k}, 26, v{D0+k} dst_sel:DWORD dst_unused:UNUSED_PAD src0_sel:DWORD src1_sel:BYTE_1')
    a(f'ds_add_rtn_u32 v{RK+k}, v{B4+k}, v42')
def part2(k):
    a(f'v_add3_u32 v{S0+k}, v{S0+k}, v{D0+k}, v{TK+k}')
def part3(k):
    a(f'v_min_u32 v44, 128, v{RK+k}')
    a(f'v_add_u32 v44, v44, v{B4+k}')
    a(f'ds_write_b32 v44, v{S0+k}')
a('s_cmp_ge_u32 s3, 6')
a('s_cbranch_scc1 L_p_short')
a('s_waitcnt vmcnt(3)')
ps(2)
for k in range(4): part1(k)
a('s_waitcnt vmcnt(2)')
for k in range(4, 7): part1(k)
a('s_waitcnt vmcnt(1)')
for k in range(4, 7): part2(k)
a('s_waitcnt lgkmcnt(0)')
for k in range(4, 7): part3(k)
a('s_branch L_p_join')
a.label('L_p_short')
if X('ptlb'):
    a('v_lshlrev_b32 v12, 16, v3')
    a(f'buffer_load_dword v13, v12, s[{WS}:{WS+3}], s47 offen')
a('s_waitcnt vmcnt(%d)' % (2 if X('ptlb') else 1))
ps(2)
for k in range(4): part1(k)
a('s_waitcnt lgkmcnt(0)')
a.label('L_p_join')
a('s_waitcnt vmcnt(0)')
for k in range(4): part2(k)
for k in range(4): part3(k)
a(f'v_max3_u32 v44, v{RK}, v{RK+1}, v{RK+2}')
a(f'v_max3_u32 v44, v44, v{RK+3}, v{RK+4}')
a(f'v_max3_u32 v44, v44, v{RK+5}, v{RK+6}')
a('v_cmp_lt_u32 vcc, 124, v44')
a('s_cbranch_vccz L_p_noovf')
a(f's_add_u32 s44, s40, {WS_OVFREC:#x}')
a(f's_add_u32 s45, s40, {WS_OVFBKT:#x}')
for k in range(7):
    a(f'v_cmp_lt_u32 vcc, 124, v{RK+k}')
    a('s_mov_b64 exec, vcc')
    a(f's_cbranch_execz L_p_ov{k}')
    a(f'ds_add_rtn_u32 v44, v41, v42 offset:{L_OVC}')
    a('s_waitcnt lgkmcnt(0)')
    a(f'buffer_store_dword v{S0+k}, v44, s[{WS}:{WS+3}], s44 offen')
    a(f'buffer_store_dword v{B4+k}, v44, s[{WS}:{WS+3}], s45 offen')
    a('s_waitcnt vmcnt(0)')
    a.label(f'L_p_ov{k}')
    a('s_mov_b64 exec, -1')
a.label('L_p_noovf')
a('s_waitcnt lgkmcnt(0)')
a('s_barrier')
ps(3)
for k in range(4):
    a(f'ds_read_b32 v{24+k}, v45 offset:{64*CS*k}')
    a(f'ds_read2_b32 v[{8+4*k}:{9+4*k}], v{56+k} offset0:0 offset1:4')
    a(f'ds_read2_b32 v[{10+4*k}:{11+4*k}], v{56+k} offset0:8 offset1:12')
a(f'ds_read_b32 v28, v41 offset:{L_OVC}')
for k in range(4):
    a(f's_waitcnt lgkmcnt({10-3*k})')
    if not X('fullcell'):
        a(f'v_cmp_lt_u32 vcc, v60, v{24+k}')
        a('s_mov_b64 exec, vcc')
    a(f'buffer_store_dwordx4 v[{8+4*k}:{11+4*k}], v47, s[{WS}:{WS+3}], s47 offen' + SC1)
    a('s_mov_b64 exec, -1')
    if k < 3: a('s_add_u32 s47, s47, 0x100000')
pend()
a('s_cmp_lg_u32 s3, 0')
a('s_cbranch_scc1 L_pre_end')
a('s_lshl_b32 s44, s2, 2')
a(f's_add_u32 s44, s44, {WS_OVFLEN:#x}')
a('s_mov_b64 exec, 1')
a('s_waitcnt lgkmcnt(0)')
a(f'buffer_store_dword v28, v41, s[{WS}:{WS+3}], s44 offen')
a('s_endpgm')

a.label('L_pre_gemm')
a(f's_sub_u32 s40, s2, {NCH}')
a(f's_sub_u32 s41, s40, {NGEMM}')
a('s_mov_b32 s42, 0')
a('s_cmp_eq_u32 s41, 0')
a('s_cselect_b32 s42, 0x8000, s42')
a('s_cmp_eq_u32 s41, 2')
a('s_cselect_b32 s42, 0x8000, s42')
a('s_cmp_eq_u32 s41, 3')
a('s_cselect_b32 s42, 0x10000, s42')
a('v_lshrrev_b32 v4, 4, v3')
a('v_and_b32 v5, 15, v3')
a('v_lshlrev_b32 v6, 2, v4')
a('v_xor_b32 v6, v6, v5')
a('v_lshlrev_b32 v6, 4, v6')
a('v_lshl_add_u32 v6, v4, 8, v6')
a('s_lshl_b32 s43, s3, 12')
a('s_add_u32 s42, s42, s43')
def wdma():
    a('s_mov_b32 m0, s43')
    a('s_nop 0')
    for i in range(4): a(f'buffer_load_dwordx4 v6, s[{W}:{W+3}], s42 offen offset:{1024*i} lds')
a('v_xor_b32 v8, v4, v5')
a('v_lshlrev_b32 v8, 4, v8')
a('v_lshl_add_u32 v28, v4, 8, v8')
for i in range(1, 4): a(f'v_xor_b32 v{28+i}, {64*i}, v28')
a('s_add_u32 s44, s43, 32768')
a('s_mov_b32 m0, s44')
a(f's_mul_i32 s45, s40, {GR*256}')
a(f's_add_u32 s50, s45, {GR*256}')
a(f's_min_u32 s{XS+2}, s50, {N*256:#x}')
a(f's_mov_b32 s{XS+3}, 0x20000')
a(f's_mov_b32 s{W+3}, 0x20000')
a('s_add_u32 s44, s45, s43')
a('s_lshr_b32 s51, s2, 3')
a('s_and_b32 s51, s51, 7')
a('s_lshl_b32 s51, s51, 12')
a('v_lshlrev_b32 v9, 7, v3')
a(f's_add_u32 s54, s50, {WS_P}'); a(f's_mov_b32 s55, 0x20000')
a('s_sub_u32 s48, s41, 1')
a('s_cmp_lt_u32 s48, 2')
a(f's_mov_b32 s48, {272*256:#x}')
a(f's_cselect_b32 s{W+2}, 0x10000, s48')
a('s_waitcnt lgkmcnt(0)')
ps(1)
for i in range(4): a(f'buffer_load_dwordx4 v{28+i}, s[{XS}:{XS+3}], s44 offen offset:{1024*i} lds')
a(f's_cselect_b32 s{W}, s14, s12')
a(f's_cselect_b32 s{W+1}, s15, s13')
a(f's_mov_b32 s52, s{WS}'); a(f's_mov_b32 s53, s{WS+1}')
a('s_cmp_lg_u32 s3, 7')
a('s_cbranch_scc1 L_g_not')
a('s_mov_b64 exec, 0xffffffff')
a(f'buffer_load_dword v159, v9, s[{W}:{W+3}], s51 offen')
if X('ptlb'):
    a('s_mov_b64 exec, 1')
    a(f'buffer_load_dword v159, v9, s[{WS}:{WS+3}], s54 offen')
a('s_mov_b64 exec, -1')
a('s_waitcnt vmcnt(%d)' % (1 if X('ptlb') else 0)) if not X('w7now') else None
a.label('L_g_not')
a('s_and_b32 s46, s3, 3')
a('s_lshr_b32 s47, s3, 2')
a('s_lshl_b32 s49, s47, 1')
a(f's_cmp_lt_u32 s40, {NGEMM}')
a('s_cselect_b32 s49, s49, s46')
a('v_lshrrev_b32 v10, 5, v3')
a('v_and_b32 v11, 1, v4')
a('v_bfe_u32 v12, v3, 2, 2')
a('v_and_b32 v13, 1, v3')
a('v_bfe_u32 v14, v3, 1, 1')
a('v_lshl_add_u32 v15, v13, 1, v11')
a('v_lshl_add_u32 v16, v11, 1, v14')
a('s_cmp_eq_u32 s41, 3')
a('s_cselect_b64 vcc, -1, 0')
a('v_cndmask_b32 v15, v15, v16, vcc')
a('v_cndmask_b32 v16, v14, v13, vcc')
a('v_xor_b32 v17, s49, v12')
a('v_lshl_add_u32 v15, v17, 2, v15')
a('v_lshlrev_b32 v15, 4, v15')
a('v_lshl_add_u32 v15, v16, 3, v15')
a('v_lshl_add_u32 v17, v10, 3, v12')
a('v_lshl_add_u32 v15, v17, 8, v15')
a('v_and_b32 v18, 31, v3')
WF, XF, ACC = 32, 96, 128
a(f's_cmp_lt_u32 s40, {NGEMM}')
a('s_cbranch_scc1 L_g_go')
wdma()
a('s_waitcnt vmcnt(0)')
a('s_barrier')
a('s_branch L_g_frag')
a.label('L_g_go')
a('v_xor_b32 v16, 64, v15')
a('s_lshl_b32 s48, s46, 5')
a('v_add_u32 v19, s48, v18')
a('v_and_b32 v20, 15, v18')
a('v_xor_b32 v20, v20, v10')
a('v_lshlrev_b32 v20, 4, v20')
a('v_lshl_add_u32 v20, v19, 8, v20')
a('v_and_b32 v21, 7, v18')
a('v_lshlrev_b32 v22, 1, v10')
a('v_xor_b32 v21, v21, v22')
a('v_lshlrev_b32 v21, 4, v21')
a('v_lshl_add_u32 v21, v18, 7, v21')
a('s_add_u32 s48, s43, 65536')
a('v_add_u32 v21, s48, v21')
a('v_lshrrev_b32 v24, 3, v3')
a('v_and_b32 v25, 7, v3')
a('v_xor_b32 v22, v24, v25')
a('v_lshlrev_b32 v22, 4, v22')
a('v_lshl_add_u32 v22, v24, 7, v22')
a('v_add_u32 v22, s48, v22')
a('v_lshlrev_b32 v23, 4, v25')
a('v_lshl_add_u32 v23, v24, 8, v23')
a('s_lshl_b32 s48, s46, 13')
a('s_add_u32 s48, s48, s45')
a('s_lshl_b32 s49, s47, 7')
a('s_add_u32 s48, s48, s49')
a(f's_add_u32 s48, s48, {WS_P}')
a('s_add_u32 s49, s48, 4096')
def trr(s):
    for b in range(2):
        for u in range(2):
            a(f'ds_read_b64_tr_b16 v[{WF+32*b+4*s+2*u}:{WF+32*b+4*s+2*u+1}], v{15+b} offset:{4096*s+1024*u}')
def xrd():
    for s in range(8):
        if s: a(f'v_xor_b32 v24, {32*s}, v20')
        a(f'ds_read_b128 v[{XF+4*s}:{XF+4*s+3}], v{24 if s else 20} offset:32768')
def mm(s, b):
    c = '0' if s == 0 else f'v[{ACC+16*b}:{ACC+16*b+15}]'
    a(f'v_mfma_f32_32x32x16_bf16 v[{ACC+16*b}:{ACC+16*b+15}], v[{WF+32*b+4*s}:{WF+32*b+4*s+3}], v[{XF+4*s}:{XF+4*s+3}], {c}')
def tr1(s, b):
    for u in range(2):
        a(f'ds_read_b64_tr_b16 v[{WF+32*b+4*s+2*u}:{WF+32*b+4*s+2*u+1}], v{15+b} offset:{4096*s+1024*u}')
a('v_xor_b32 v27, 16, v21')
a('v_xor_b32 v25, 64, v21')
a('v_xor_b32 v26, 80, v21')
a('s_waitcnt vmcnt(%d)' % opt('wd', 3))
wdma()
a('s_waitcnt vmcnt(4)')
a('s_barrier')
xrd()
a('s_waitcnt vmcnt(0) lgkmcnt(0)')
ps(2)
a('s_barrier')
ps(3)
if PST: a('s_waitcnt lgkmcnt(0)')
seq = [(s, 0) for s in range(8)] + [(s, 1) for s in range(8)]
AH = 6
for t in range(AH): tr1(*seq[t])
def epi(b):
    o = [f'v_mul_f32 v{ACC+16*b+r}, {NEGLOG2E:#x}, v{ACC+16*b+r}' for r in range(16)]
    o += [f'v_cvt_pk_bf16_f32 v{ACC+16*b+r}, v{ACC+16*b+2*r}, v{ACC+16*b+2*r+1}' for r in range(8)]
    return o
def wr(b):
    a(f'ds_write_b128 v{25 if b else 21}, v[{ACC+16*b}:{ACC+16*b+3}]')
    a(f'ds_write_b128 v{26 if b else 27}, v[{ACC+16*b+4}:{ACC+16*b+7}]')
e0 = epi(0)
for t in range(16):
    a(f's_waitcnt lgkmcnt({2*min(AH-1, 15-t)})')
    mm(*seq[t])
    if t + AH < 16: tr1(*seq[t+AH])
    if t == 10: a.nop(4)
    if t >= 10:
        for l in e0[4*(t-10):4*(t-9)]: a(l)
wr(0)
a.nop(6)
for l in epi(1): a(l)
wr(1)
for i in range(4): a(f'ds_read_b128 v[{XF+4*i}:{XF+4*i+3}], v22 offset:{1024*i}')
for i in range(4):
    a(f's_waitcnt lgkmcnt({3-i})')
    a(f'buffer_store_dwordx4 v[{XF+4*i}:{XF+4*i+3}], v23, s[52:55], s{48+(i>>1)} offen offset:{2048*(i&1)}' + ('' if X('pnosc1') else ' sc1'))
pend()
a('s_endpgm')
a.label('L_g_frag')
a('v_lshlrev_b32 v22, 4, v3')
a('s_cmp_eq_u32 s41, 3')
a('s_cbranch_scc1 L_g_w3')
a('s_lshl_b32 s48, s3, 1')
a('v_add_u32 v15, s48, v14')
a('s_cmp_eq_u32 s41, 2')
a('s_cbranch_scc1 L_g_wu2')
a('v_lshlrev_b32 v16, 2, v12')
a('v_xor_b32 v16, v16, v15')
a('v_lshlrev_b32 v16, 4, v16')
a('v_lshl_add_u32 v16, v13, 3, v16')
a('v_lshl_add_u32 v17, v4, 3, v12')
a('v_lshl_add_u32 v16, v17, 8, v16')
for s in range(4):
    for u in range(2): a(f'ds_read_b64_tr_b16 v[{WF+4*s+2*u}:{WF+4*s+2*u+1}], v16 offset:{8192*s+1024*u}')
a('s_branch L_g_fst')
a.label('L_g_wu2')
a('v_lshlrev_b32 v16, 2, v4')
a('v_xor_b32 v16, v16, v15')
a('v_lshlrev_b32 v16, 4, v16')
a('v_lshl_add_u32 v16, v13, 3, v16')
a('v_lshl_add_u32 v17, v12, 5, v4')
a('v_lshl_add_u32 v16, v17, 8, v16')
for u in range(2):
    for s in range(4): a(f'ds_read_b64_tr_b16 v[{WF+4*s+2*u}:{WF+4*s+2*u+1}], v16 offset:{1024*s+4096*u}')
a.label('L_g_fst')
a('s_lshl_b32 s48, s41, 15')
a('s_lshl_b32 s49, s3, 12')
a('s_add_u32 s48, s48, s49')
a(f's_add_u32 s48, s48, {WS_FRAG:#x}')
a('s_waitcnt lgkmcnt(0)')
for s in range(4): a(f'buffer_store_dwordx4 v[{WF+4*s}:{WF+4*s+3}], v22, s[{WS}:{WS+3}], s48 offen offset:{1024*s}')
a('s_endpgm')
a.label('L_g_w3')
a('s_cmp_lg_u32 s47, 0')
a('s_cbranch_scc1 L_pre_end')
for u in range(2): a(f'ds_read_b64_tr_b16 v[{WF+2*u}:{WF+2*u+1}], v15 offset:{1024*u}')
a('s_lshl_b32 s48, s46, 10')
a(f's_add_u32 s48, s48, {WS_FRAG+3*32768:#x}')
a('s_waitcnt lgkmcnt(0)')
for r in range(4):
    a(f'v_lshlrev_b32 v40, 16, v{WF+r}')
    a(f'v_and_b32 v41, 0xffff0000, v{WF+r}')
    a(f'v_mul_f32 v40, {NEGLOG2E:#x}, v40')
    a(f'v_mul_f32 v41, {NEGLOG2E:#x}, v41')
    a(f'v_cvt_pk_bf16_f32 v{WF+r}, v40, v41')
a(f'buffer_store_dwordx4 v[{WF}:{WF+3}], v22, s[{WS}:{WS+3}], s48 offen')
a.label('L_pre_end')
a('s_endpgm')

BENCH = '--bench' in sys.argv
RSTR = 272
L_PT = 0
L_EO = 54*256
L_QS = 108*256
QSTR = 13*256
L_QT = L_QS + QSTR; L_QW = L_QT + QSTR; L_QK = L_QW + QSTR
L_HIST = L_QK + QSTR
L_MISC = L_HIST + 256
L_ZERO = L_MISC + 64
L_HEAD = L_ZERO + 512
L_CARRY = L_HEAD + 8192
L_XI = L_HEAD
L_NODE = L_CARRY + 15*512
NSTR = 784
L_STG = (L_NODE + 50*NSTR + 255) // 256 * 256
assert L_XI % 64 == 0
HB = 4096
LDS_MAIN = L_STG + 16*HB
assert LDS_MAIN <= 163840 and L_NODE % 16 == 0 and L_EO + 50*RSTR <= L_QS

class RA_:
    def __init__(s, st): s.n = st
    def __call__(s, k=1, al=1):
        s.n = (s.n + al - 1)//al*al; r = s.n; s.n += k; return r
al = RA_(16)
ZB = [al(16), al(16)]; U = al(16); PA = [al(16), al(16)]
NF = al(4); D = al(4); RC = al(4); MB = al(16); KK = al(4); AA = al(4); DA = al(4); PTr = al(4)
EC = al(4); EN = al(4); QB = [al(2), al(2)]; TM = al(2); TC = al(2)
I0 = al(4); I1 = al(4); LC1 = I0; W3 = al(16); R = al(16); WU2 = al(16); REC = al(8)
G = al(2); RA = al(2); TA = al(); TAr = al(); SP = al(); SE = al(); EOr = al(); EV = al(); MK = al(); CB = al()
vQA = al(); vQ1 = al(); vQP = al(); vQE = al()
LC = al(); CA = al(); CT = al(); H16 = al(); I4 = al(); CIr = al(2)
NVG = al.n
Uq = lambda q, s_: U + 8*(q>>1) + 2*((s_+3)&3) + (1-(q&1))
RCq = lambda q: RC + (q^1)
assert U % 2 == 0 and D % 2 == 0 and NF % 2 == 0 and RC % 2 == 0
assert NVG <= 256
LANE, MM, HH = 1, 2, 3
XF = 16
W2F = 80
WU1F = 96
QACC = 112
HA, RK, PV, EVv = AA, WU2+8, AA+8, WU2
assert AA == 128 and TC >= AA+24
vW, vXF, vQW, cP1, cP2, cP3, cP4, vTCH, vPF = 243, 244, 248, 249, 252, 253, 254, 251, 255
sQM = 100
PS, WSd, Ed, Xd, Od = 8, 12, 16, 20, 24
sW, sNODE0, sT, sTC, sSAFE, sMORE, sFIRST, sBML, sM0A, sM0B, sNZ = 28, 29, 30, 31, 32, 33, 34, 35, 36, 37, 38
XM = 40
SO = 92
BM = 60
sSLOW, sN, sPASS = 64, 65, 66
nstamp = [0]
def stamp():
    if STAMP and nstamp[0] < 11:
        a(f's_memtime s[{70+2*nstamp[0]}:{71+2*nstamp[0]}]'); nstamp[0] += 1
FINE = opt('fine', 0)
def st(level):
    if FINE == level: stamp()

a('.globl main_kernel\n.p2align 8\n.type main_kernel,@function')
a.label('main_kernel')
a('s_cmp_ge_u32 s2, 256')
a('s_cbranch_scc1 L_main_end')
stamp()
if STAMP and FINE == 0: a('s_memrealtime s[86:87]')
for d_, o_ in ((WSd, 64), (Xd, 0), (PS, 64), (Ed, 8), (Od, 48)): a(f's_load_dwordx2 s[{d_}:{d_+1}], s[0:1], {o_}')
a(f'v_lshrrev_b32 v4, 6, v0')
a(f'v_and_b32 v{LANE}, 63, v0')
a(f'v_readfirstlane_b32 s{sW}, v4')
a(f'v_and_b32 v{MM}, 31, v0')
a(f'v_bfe_u32 v{HH}, v0, 5, 1')
a(f's_lshl_b32 s{sNODE0}, s2, 8')
a(f's_mov_b32 s{sSAFE}, 0')
a(f's_mov_b32 s{sFIRST}, 1')
a(f's_mul_i32 s{sM0A}, s{sW}, {2*HB}')
a(f's_add_u32 s{sM0A}, s{sM0A}, {L_STG}')
a(f's_add_u32 s{sM0B}, s{sM0A}, {HB}')
for i in range(8): a(f's_mov_b32 s{SO+i}, {WS_P-1024*(i&3)+128*(i>>2)}')
a(f'v_lshrrev_b32 v4, 4, v{LANE}')
a(f'v_and_b32 v5, 15, v{LANE}')
a(f's_lshl_b32 s58, s{sW}, 3')
a('v_add_u32 v6, s58, v4')
a('v_and_b32 v7, 15, v6')
a('v_xor_b32 v7, v7, v5')
a('v_lshlrev_b32 v7, 4, v7')
a('v_lshl_add_u32 v16, v6, 16, v7')
a('v_xor_b32 v17, 64, v16')
a(f'v_add_u32 v17, {4*65536-1024}, v17')
a('v_cmp_gt_u32 s[68:69], 49, v6')
a(f's_lshl_b32 s58, s{sW}, 11')
a(f's_add_u32 s58, s58, {L_XI}')
a('s_mov_b32 m0, s58')
a(f's_mov_b32 s{WSd+2}, {WS_SIZE:#x}'); a(f's_mov_b32 s{WSd+3}, 0x20000')
a(f's_mov_b32 s{Xd+2}, {N*256:#x}'); a(f's_mov_b32 s{Xd+3}, 0x20000')
a(f's_mov_b32 s{PS+2}, 0'); a(f's_mov_b32 s{PS+3}, 0x20000')
a(f's_mov_b32 s{Ed+2}, 0'); a(f's_mov_b32 s{Ed+3}, 0x20000')
a(f's_mov_b32 s{Od+2}, {N*256:#x}'); a(f's_mov_b32 s{Od+3}, 0x20000')
def celladdr():
    a(f'v_mov_b32 v{REC}, 0')
    a('v_and_b32 v9, 3, v0')
    a('v_lshlrev_b32 v5, 5, v0')
    a('v_lshlrev_b32 v9, 4, v9')
    a('v_sub_u32 v5, v5, v9')
    a('s_lshl_b32 s58, s2, 14')
    a(f's_add_u32 s58, s58, {WS_CELLS:#x}')
    a('v_cmp_gt_u32 vcc, 500, v0')
    a('s_mov_b64 exec, vcc')
celladdr()
a('s_waitcnt lgkmcnt(0)')
st(1)
a.label('L_cells')
a(f'buffer_load_dwordx4 v[{REC}:{REC+3}], v5, s[{WSd}:{WSd+3}], s58 offen')
a(f'buffer_load_dwordx4 v[{REC+4}:{REC+7}], v5, s[{WSd}:{WSd+3}], s58 offen offset:64')
a('s_mov_b64 exec, -1')
a(f's_mov_b32 s{sBML}, 0')
a(f's_cmp_eq_u32 s{sFIRST}, 0')
a('s_cbranch_scc1 L_skipfirst')
W3L = not X('w3g')
def xblk():
    a(f's_cmp_lt_u32 s{sW}, 6')
    a('s_cbranch_scc0 L_x67')
    a(f'buffer_load_dwordx4 v16, s[{Xd}:{Xd+3}], s{sNODE0} offen lds')
    a(f'buffer_load_dwordx4 v17, s[{Xd}:{Xd+3}], s{sNODE0} offen offset:1024 lds')
    a('s_branch L_xd')
    a.label('L_x67')
    a('s_lshr_b32 s58, s2, 3')
    a('s_mul_i32 s58, s58, 3200')
    a(f's_add_u32 s58, s58, {WS_FRAG:#x}')
    a(f'v_lshlrev_b32 v9, 7, v{LANE}')
    a(f's_cmp_eq_u32 s{sW}, 6')
    a('s_cbranch_scc0 L_x7')
    a('s_mov_b64 exec, s[68:69]')
    a(f'buffer_load_dwordx4 v16, s[{Xd}:{Xd+3}], s{sNODE0} offen lds')
    a('s_mov_b64 exec, 0x1ffffff')
    a(f'buffer_load_dword v251, v9, s[{WSd}:{WSd+3}], s58 offen')
    a('s_branch L_x8')
    a.label('L_x7')
    a(f's_mov_b32 s{Ed+2}, {E*32 if X("tlb") else 0:#x}')
    a(f'v_lshlrev_b32 v9, 18, v{LANE}')
    a(f'buffer_load_dword v251, v9, s[{Ed}:{Ed+3}], 0 offen')
    a('s_mov_b64 exec, %s' % ('0x1fff' if X('tlb') else '1'))
    a(f'buffer_load_dword v251, v9, s[{WSd}:{WSd+3}], 0 offen')
    a.label('L_x8')
    a('s_mov_b64 exec, -1')
    a.label('L_xd')
    if W3L:
        a(f's_lshl_b32 s58, s{sW}, 9')
        a(f's_add_u32 s59, s58, {L_STG+HB}')
        a('s_mov_b32 m0, s59')
        a(f's_add_u32 s58, s58, {WS_FRAG+3*32768:#x}')
        a(f'v_lshlrev_b32 v{vW}, 4, v{LANE}')
        a('s_mov_b64 exec, 0xffffffff')
        a(f'buffer_load_dwordx4 v{vW}, s[{WSd}:{WSd+3}], s58 offen lds')
        a('s_mov_b64 exec, -1')
    st(1)
XL = opt('xl', 2)
if XL == 0: xblk()
a(f'v_bfe_u32 v{cP3}, v{MM}, 2, 1')
a(f'v_lshrrev_b32 v{cP4}, 1, v{MM}')
a(f'v_and_b32 v{cP4}, 12, v{cP4}')
cP2 = cP4
a(f'v_and_b32 v6, 3, v{MM}')
a(f'v_lshlrev_b32 v{I4}, 2, v6')
a(f'v_lshlrev_b32 v{H16}, 4, v{HH}')
a(f'v_lshlrev_b32 v{vW}, 4, v{LANE}')
a(f'v_lshlrev_b32 v{vPF}, 7, v{LANE}')
def onehot4(dst, vj):
    return [f'v_cmp_gt_u32 vcc, 4, v{vj}', f'v_lshlrev_b32 v9, 4, v{vj}', f'v_mov_b32 v{dst+1}, 0',
            f'v_cndmask_b32 v{dst}, 0, v8, vcc', f'v_lshlrev_b64 v[{dst}:{dst+1}], v9, v[{dst}:{dst+1}]']
CA2, vF = I0+1, I0+2
late_c = [f'v_bfe_u32 v4, v{LANE}, 3, 1', 'v_mul_u32_u24 v4, 1088, v4', f'v_lshl_add_u32 v4, v{HH}, 9, v4', f'v_add3_u32 v4, v4, v{CT}, s{sM0A}',
          f'v_and_b32 v9, 4, v{LANE}', 'v_cmp_ne_u32 vcc, 0, v9', f'v_subrev_u32 v4, {L_NODE+512}, v4', f'v_mov_b32 v9, {0x30080:#x}',
          f'v_cndmask_b32 v{RA}, v9, v4, vcc', f'v_xor_b32 v{RA+1}, 64, v{RA}', f'v_or_b32 v{CA2}, 0x80000000, v{CA}',
          'v_mov_b32 v8, 0x3f80', f'v_sub_u32 v4, v{cP3}, v{HH}', f'v_lshrrev_b32 v9, 3, v{MM}', 'v_lshl_add_u32 v4, v4, 2, v9'] + onehot4(TC, 4)
if XL == 2: xblk()
a.label('L_skipfirst')
a(f's_mov_b32 s{sPASS}, 0')
st(1)
a('v_lshrrev_b32 v4, 2, v0')
a(f'v_mul_u32_u24 v{CB}, {CH*32}, v4')
a(f'v_mov_b32 v{G}, -1')
a(f'v_mov_b32 v{G+1}, -1')
a(f's_mov_b32 s{sNZ}, {(L_HEAD-L_QS)//16-512}')
a.label('L_reinit')
for i in range(4): a(f'v_mov_b32 v{12+i}, 0')
a('v_lshlrev_b32 v4, 4, v0')
a(f'ds_write_b128 v4, v[12:15] offset:{L_QS}')
a(f'v_cmp_gt_u32 vcc, s{sNZ}, v0')
for i in range(4): a(f'v_bfrev_b32 v{48+i}, 1')
a('s_mov_b64 exec, vcc')
a(f'ds_write_b128 v4, v[12:15] offset:{L_QS+8192}')
a('s_mov_b64 exec, -1')
a(f'v_cmp_gt_u32 vcc, {L_QS//16-1536}, v0')
for k in range(3): a(f'ds_write_b128 v4, v[48:51] offset:{8192*k}')
a('s_mov_b64 exec, vcc')
a(f'ds_write_b128 v4, v[48:51] offset:{8192*3}')
a('s_mov_b64 exec, -1')
if XL == 1:
    a(f's_cmp_eq_u32 s{sFIRST}, 0')
    a('s_cbranch_scc1 L_nox')
    xblk()
    a('s_branch L_nox2')
    a.label('L_nox')
    a('s_waitcnt vmcnt(0)')
    a.label('L_nox2')
else:
    a(f's_cmp_eq_u32 s{sFIRST}, 0')
    a('s_cbranch_scc0 L_nox2')
    a('s_waitcnt vmcnt(0)')
    a.label('L_nox2')
a(f's_mov_b32 s{sNZ}, {(L_MISC-L_QS)//16-512}')
a('v_mov_b32 v11, 4')
a(f's_lshl_b32 s56, s{sW}, 12')
a(f's_add_u32 s56, s56, {WS_FRAG:#x}')
a('s_add_u32 s4, s56, 0x8000')
if any('p' in x for x in sys.argv if x.startswith('--sched=')):
    a('s_lshr_b32 s6, s2, 3')
    a(f's_mul_i32 s6, s6, {784*128}')
    a(f's_mul_i32 s7, s{sW}, {98*128}')
    a('s_add_u32 s6, s6, s7')
    a(f's_add_u32 s6, s6, {WS_P}')
a('s_movk_i32 s39, 0xfc')
a(f's_movk_i32 s57, {RSTR//4}')
vHD, vHW, vHK, cH1 = 15, TAr, EOr, CIr
a(f's_lshl_b32 s5, s{sW}, 1')
a('s_add_u32 s5, s5, 1')
a(f'v_add_u32 v4, s5, v{HH}')
a(f'v_mul_u32_u24 v5, {RSTR}, v4')
a(f'v_lshl_add_u32 v{SP}, v{cP2}, 2, v5')
a(f'v_add_u32 v4, s5, v{cP3}')
a(f'v_mul_u32_u24 v4, {RSTR}, v4')
a(f'v_lshl_add_u32 v4, v{cP4}, 2, v4')
a(f'v_add_u32 v{SE}, v4, v{I4}')
mid = [f'v_and_b32 v4, 7, v{LANE}', f'v_lshlrev_b32 v{LC}, 4, v4', f'v_xor_b32 v{LC1}, 64, v{LC}',
  f'v_subrev_u32 v4, 1, v{LANE}', 'v_cmp_gt_u32 vcc, 16, v4', f'v_mul_u32_u24 v8, {NSTR}, v{LANE}', f'v_mul_u32_u24 v12, {RSTR}, v{LANE}',
  f'v_cndmask_b32 v{vHD}, 0, 16, vcc', f'v_lshl_add_u32 v12, v{vHD}, 2, v12',
  f's_or_b32 s{sSLOW}, s{sSAFE}, s{sPASS}', 's_cselect_b32 s67, 0, -1', 's_cselect_b32 s59, -1, 0', 's_cselect_b32 s3, 1, 4',
  f'v_or_b32 v{vF}, 0x80000000, v8', f'v_and_b32 v9, s59, v{vF}', f'v_lshrrev_b32 v{cH1}, 2, v{LANE}',
  f'v_cmp_eq_u32 vcc, 12, v{I4}', f'v_lshlrev_b32 v4, 9, v{cH1}', f'v_add_u32 v4, {(L_HEAD-L_NODE+0x80000000):#x}, v4', 'v_cndmask_b32 v4, 0, v4, vcc',
  f'v_mul_u32_u24 v6, {NSTR}, v{cH1}', f'v_add_u32 v6, {NSTR+0x80000000:#x}, v6', f'v_cmp_ne_u32 vcc, 0, v{I4}', f'v_bfi_b32 v{vHW}, s59, v6, v4',
  'v_mov_b32 v4, s67', f'v_cndmask_b32 v{vHK}, 0, v4, vcc']
mid2 = [f'v_lshlrev_b32 v{CA}, 4, v{MM}', f'v_add_u32 v{CA}, {L_NODE}, v{CA}', f'v_and_b32 v5, 16, v{LANE}', f'v_add_u32 v5, v5, v{I4}',
  f'v_lshlrev_b32 v5, 1, v5', f'v_add_u32 v{CT}, {L_NODE+512}, v5', f'v_add_u32 v4, s5, v{HH}', f'v_mul_u32_u24 v4, {NSTR}, v4', f'v_add_u32 v{TA}, v4, v{CT}',
  f'v_and_b32 v4, 15, v{LANE}', f'v_mul_u32_u24 v4, {NSTR}, v4', 'v_lshrrev_b32 v5, 4, v0', 'v_lshl_add_u32 v4, v5, 3, v4', f'v_add_u32 v{vQW}, {L_NODE+NSTR+512}, v4',
  f'v_and_b32 v{cP1}, 12, v{LANE}'] + [f'v_mov_b32 v{EN+i}, 0' for i in range(4)] + \
  ['v_lshrrev_b32 v4, 5, v0', f'v_mul_u32_u24 v4, {NSTR}, v4', f'v_add_u32 v4, v4, v{CA}', f'v_mul_u32_u24 v5, 320, v{HH}', 'v_sub_u32 v5, v4, v5', f'v_min_u32 v6, {49*NSTR}, v8',
   '\n'.join(['s_not_b64 exec, s[0:1]'] + [f'ds_write_b128 v4, v[{EN}:{EN+3}] offset:{NSTR*(16*k+2)}' for k in range(3)] +
             [f's_cmp_eq_u32 s{sW}, 0', 's_cselect_b64 exec, exec, 0', f'ds_write_b128 v5, v[{EN}:{EN+3}] offset:320', f'ds_write_b32 v6, v{EN} offset:{L_NODE+768}', 's_mov_b64 exec, -1'])]
a(f's_mov_b32 s{PS+2}, {0 if "--nop" in sys.argv else WS_P+N*256:#x}')
a(f's_mov_b32 s{Ed+2}, {0 if "--noe" in sys.argv else E*32:#x}')
def dma(half):
    return [f'buffer_load_dwordx4 v{DA+i}, s[{PS}:{PS+3}], s{SO+4*half+i} offen offset:{1024*i} lds' for i in range(4)]
def eload(dst): return f'buffer_load_dwordx4 v[{dst}:{dst+3}], v{EV}, s[{Ed}:{Ed+3}], 0 offen' + (' nt' if X('ent') else '')
hq = dma(0)
a(f'v_lshlrev_b32 v14, 2, v{LANE}')
a(f's_cmp_lg_u32 s{sFIRST}, 0')
a(f's_cselect_b64 s[{sQM}:{sQM+1}], -1, 0')
def fragl(dst, so, s): return f'buffer_load_dwordx4 v[{dst+4*s}:{dst+4*s+3}], v{vW}, s[{WSd}:{WSd+3}], s{so} offen offset:{1024*s}'
vm = ['c0', 'c1', 'x', 'x'] + (['x'] if W3L else [])
wq = [('W2', fragl(W2F, 56, s)) for s in range(4)] + [('WU1', fragl(WU1F, 4, s)) for s in range(4)] + ([] if W3L else [('W3', fragl(W3, 5, s)) for s in range(4)])
sched = ([x.split('=')[1] for x in sys.argv if x.startswith('--sched=')] or ['wwww,,,wwww,,,h,h,h,h,' + ('' if W3L else 'wwww')])[0].split(',')
def slot(i, out=None):
    o = []
    sp = sched[i] if i < len(sched) else ''
    import re as _re
    for t in _re.findall(r'w|h|e|p\d+', sp):
        if t == 'w':
            tag, l = wq.pop(0); vm.append(tag); o.append(l)
        elif t == 'e':
            o.append(eload(EC)); vm.append('e')
        elif t == 'h':
            o.append(hq.pop(0)); vm.append('h0')
        else:
            nl = int(t[1:])
            o += [f's_bfm_b64 exec, {nl}, 0'] if nl < 64 else []
            o += [f'buffer_load_dword v{vTCH}, v{vPF}, s[{WSd}:{WSd+3}], s6 offen', 's_mov_b64 exec, -1', f's_addk_i32 s6, {nl*128}']
            vm.append('p')
    if out is not None: out += ['\n'.join(o)] if o else []
    else:
        for l in o: a(l)
def vwait(tag):
    idx = max(i for i, t in enumerate(vm) if t == tag)
    return f's_waitcnt vmcnt({len(vm)-1-idx})'
a('s_mov_b64 s[68:69], 0')
a('s_movk_i32 s3, 80')
a('s_movk_i32 s67, 96')
a('s_movk_i32 s7, 112')
a(f's_or_b32 s58, s{sBML}, s{sPASS}')
a('s_cselect_b64 s[0:1], -1, 0')
a('s_mov_b32 s58, 0x11111111')
a('s_mov_b32 s59, 0x11111111')
a('s_waitcnt lgkmcnt(0)')
st(1)
a('s_barrier')
slot(0)
st(0); st(1)
a('s_cmp_lg_u32 s0, 0')
a('s_cbranch_scc1 L_gen')
a(vwait('c0'))
st(1); st(2)
a(f'v_sub_u32_dpp v4, v{REC}, v{I4} quad_perm:[0,0,0,0] row_mask:0xf bank_mask:0xf')
a(f'v_cmp_lt_u32 vcc, 128, v{REC}')
for k in range(8): a(f'v_cmp_lt_i32 s[{XM+2*k}:{XM+2*k+1}], {[0,16,32,48,64,"s3","s67","s7"][k]}, v4')
a('s_and_b64 s[68:69], vcc, s[58:59]')
a(f's_andn2_b64 s[{XM}:{XM+1}], s[{XM}:{XM+1}], s[58:59]')
a.label('L_nohdr')
def dec(k):
    a(f'v_lshlrev_b32 v{PV+k}, 8, v{REC+k}')
    a(f'v_bfe_u32 v{EVv+k}, v{REC+k}, 14, 12')
    a(f'v_and_b32 v{PV+k}, 0x3fff00, v{PV+k}')
    a(f'v_lshl_add_u32 v{EVv+k}, v{EVv+k}, 5, v{CB}')
def hadr(k): a(f'v_and_b32_sdwa v{HA+k}, s39, v{REC+k} dst_sel:DWORD dst_unused:UNUSED_PAD src0_sel:DWORD src1_sel:BYTE_3')
for k in range(4): hadr(k)
slot(1)
for k in range(4):
    a(f's_mov_b64 exec, s[{XM+2*k}:{XM+2*k+1}]')
    a(f'ds_add_rtn_u32 v{RK+k}, v{HA+k}, v11 offset:{L_HIST}')
a(vwait('c1'))
for k in range(4, 8):
    a(f's_or_b64 s[58:59], s[{XM+2*k}:{XM+2*k+1}], s[0:1]')
    a('s_cbranch_scc0 L_h7')
    a(f's_mov_b64 exec, s[{XM+2*k}:{XM+2*k+1}]')
    hadr(k)
    a(f'ds_add_rtn_u32 v{RK+k}, v{HA+k}, v11 offset:{L_HIST}')
    dec(k)
    a.label('L_h%d' % k)
a('s_mov_b64 exec, s[68:69]')
a('s_cbranch_execz L_noovf')
a('v_lshrrev_b32 v4, 2, v0')
a('v_lshrrev_b32 v5, 5, v4')
a('v_lshlrev_b32 v5, 2, v5')
a('v_lshlrev_b32 v4, v4, 1')
a(f'ds_or_b32 v5, v4 offset:{L_MISC}')
a('v_mov_b32 v5, 0')
a(f'ds_write_b32 v5, v11 offset:{L_HIST+252}')
a.label('L_noovf')
a('s_mov_b64 exec, -1')
slot(2)
for k in range(4): dec(k)
ET = opt('et', 0)
HB4 = AA + 16
if ET:
    for k in range(4): a(f'v_subrev_u32 v{HB4+k}, 4, v{HA+k}')
a(f's_mov_b32 m0, s{sM0A}')
a('s_waitcnt lgkmcnt(0)')
st(1); st(2)
def etouch(k):
    a(f'v_cmpx_gt_u32 vcc, 64, v{HB4+k}')
    a(f'buffer_load_dword v{vTCH}, v{EVv+k}, s[{Ed}:{Ed+3}], 0 offen'); vm.append('et')
    if ET >= 3: a(f'buffer_load_dword v{vTCH}, v{PV+k}, s[{PS}:{PS+3}], s{SO} offen'); vm.append('et')
if ET:
    for k in range(4): a(f'v_or_b32 v{HB4+k}, v{HB4+k}, v{RK+k}')
if ET in (1, 3):
    for k in range(4):
        a(f's_mov_b64 exec, s[{XM+2*k}:{XM+2*k+1}]')
        etouch(k)
    a('s_mov_b64 exec, -1')
for k in range(4): a(f'v_min_u32 v{4+k}, 256, v{RK+k}')
for k in range(4): a(f'v_mad_u32_u24 v{4+k}, v{HA+k}, s57, v{4+k}')
for k in range(4):
    a(f's_mov_b64 exec, s[{XM+2*k}:{XM+2*k+1}]')
    a(f'ds_write2st64_b32 v{4+k}, v{PV+k}, v{EVv+k} offset0:0 offset1:{L_EO//256}')
    if ET in (2, 4): etouch(k)
for k in range(4, 8):
    a(f's_or_b64 s[58:59], s[{XM+2*k}:{XM+2*k+1}], s[0:1]')
    a('s_cbranch_scc0 L_s7')
    a(f's_mov_b64 exec, s[{XM+2*k}:{XM+2*k+1}]')
    a(f'v_min_u32 v4, 256, v{RK+k}')
    a(f'v_mad_u32_u24 v4, v{HA+k}, s57, v4')
    a(f'ds_write2st64_b32 v4, v{PV+k}, v{EVv+k} offset0:0 offset1:{L_EO//256}')
a.label('L_s7')
a('s_mov_b64 exec, -1')
slot(3)
B2B = not X('nob2b')
if not B2B: a(vwait('x'))
a('s_waitcnt lgkmcnt(0)')
st(1); st(2)
a('s_barrier')
a.label('L_b2done')
st(1); st(2)
a(f'ds_read_b32 v{EV}, v{SE} offset:{L_EO}')
a(f'ds_read_b32 v5, v14 offset:{L_HIST}')
a(f'ds_read_b128 v[{DA}:{DA+3}], v{SP}')
def xfr(s): return [f'ds_read_b128 v[{XF+16*s+4*nu}:{XF+16*s+4*nu+3}], v{vXF+s} offset:{L_XI+4096*nu}' for nu in range(4)]
a(f'v_and_b32 v4, 15, v{LANE}')
a(f'v_lshrrev_b32 v6, 4, v{LANE}')
a('v_xor_b32 v6, v6, v4')
a('v_lshlrev_b32 v6, 4, v6')
a(f'v_lshl_add_u32 v{vXF}, v4, 8, v6')
for s in range(1, 4): a(f'v_xor_b32 v{vXF+s}, {64*s}, v{vXF}')
a('s_waitcnt lgkmcnt(%d)' % (0 if FINE in (1, 2) else 2))
a(f'v_add_u32 v{EV}, v{EV}, v{H16}')
if 'e' not in ''.join(sched): a(eload(EC)); vm.append('e')
st(2)
if B2B:
    for l in mid[:3]: a(l)
    a('s_waitcnt lgkmcnt(0)')
    a('v_readlane_b32 s58, v5, 63')
    for i in range(4): a(f'v_add_u32 v{DA+i}, v{DA+i}, v{LC1 if i & 1 else LC}')
    a('s_cmp_lg_u32 s58, 0')
    a('s_cbranch_scc1 L_ovf1')
    slot(11)
    for l in mid[3:]: a(l)
    a(vwait('x'))
    a('s_barrier')
    for s in range(3):
        for l in xfr(s): a(l)
else:
    for s in range(3):
        for l in xfr(s): a(l)
    for l in mid: a(l)
    a('s_waitcnt lgkmcnt(%d)' % (0 if FINE == 2 else 12))
    for i in range(4): a(f'v_add_u32 v{DA+i}, v{DA+i}, v{LC1 if i & 1 else LC}')
slot(4)
a('v_lshrrev_b32 v5, 2, v5')
a('v_cmp_lt_u32 vcc, 64, v5')
a('v_min_u32 v5, 64, v5')
a(f'v_sub_u32 v5, v5, v{vHD} clamp')
a('v_add_u32 v5, 3, v5')
a('v_and_b32 v5, -4, v5')
a('v_mov_b32 v6, v5')
a('s_waitcnt lgkmcnt(10)')
fl = [[l] for l in xfr(3)] + [[], []]
o5 = []; slot(5, o5); fl[4] = o5
pre = ['s_cmp_lg_u64 vcc, 0', f's_cselect_b32 s{sMORE}, 1, 0']
for l in pre: a(l)
for n_, sh in enumerate(('row_shr:1 row_mask:0xf', 'row_shr:2 row_mask:0xf', 'row_shr:4 row_mask:0xf', 'row_shr:8 row_mask:0xf', 'row_bcast:15 row_mask:0xa', 'row_bcast:31 row_mask:0xc')):
    a(f'v_add_u32_dpp v6, v6, v6 {sh} bank_mask:0xf')
    if n_ < 5:
        if n_ < 4: a('s_nop 0')
        for l in fl[n_]: a(l)
        if n_ == 4: a.nop(2 if not fl[4] else 1)
a('v_sub_u32 v7, v6, v5')
a(f's_cmp_lg_u32 s{sMORE}, 0')
a(f'v_readlane_b32 s{sT}, v6, 63')
a('s_cbranch_scc0 L_nomore')
for k in range(8):
    a(f'v_cmp_lt_u32 vcc, 255, v{RK+k}')
    a(f's_and_b64 vcc, vcc, s[{XM+2*k}:{XM+2*k+1}]')
    a.nop(1)
    a(f'v_cndmask_b32 v{REC+k}, -1, v{REC+k}, vcc')
a.label('L_nomore')
st(2)
a(f's_add_u32 s{sN}, s{sT}, 255')
a(f's_lshr_b32 s{sN}, s{sN}, 8')
a(f's_max_u32 s{sN}, s{sN}, s3')
a(f'v_cvt_f32_u32 v6, s{sN}')
a(f's_lshl_b32 s58, s{sW}, 2')
a('v_rcp_f32 v6, v6')
a(vwait('W2'))
a('s_waitcnt lgkmcnt(0)')
L = []; m = L.append
slot(6, L)
m('v_cmp_lt_u32 s[68:69], s58, v5')
m('v_mul_f32 v6, 0x47800000, v6')
m('s_add_u32 s59, s58, 4')
m('v_cvt_u32_f32 v6, v6')
m('v_add_u32 v4, s58, v7')
m('v_add_u32 v7, 2, v6')
m('v_cmp_eq_u32 vcc, s59, v5')
m('s_mov_b32 s39, 0x100000')
m(f'v_add_u32 v{SP}, 32, v4')
m(f'v_cndmask_b32 v6, v9, v{vF}, vcc')
m('v_mad_u32_u24 v11, v4, v7, s39')
m(f'v_mad_u32_u24 v7, v{SP}, v7, s39')
m('s_add_u32 s59, s58, 36')
m('v_cmp_eq_u32 vcc, s59, v5')
m('v_lshrrev_b32 v11, 20, v11')
m('v_lshrrev_b32 v7, 20, v7')
m(f'v_cndmask_b32 v{I1+1}, v9, v{vF}, vcc')
m('v_lshl_add_u32 v4, v11, 4, v4')
m(f'v_lshl_add_u32 v{SP}, v7, 4, v{SP}')
m('s_cmp_eq_u32 s58, 0\ns_cselect_b32 s59, 0, s67')
m('v_lshl_add_u32 v12, s58, 2, v12')
m('v_mov_b32 v11, s59')
m('s_add_u32 s58, s58, 32')
m('v_cmp_lt_u32 vcc, s58, v5')
m(f'v_add_u32 v{SE}, 128, v12')
m(f'v_mov_b32 v{MK}, s67')
m(f's_lshl_b32 s57, s{sN}, 5\ns_lshl_b32 s7, s{sN}, 4\ns_add_u32 s7, s7, 16')
m(f'v_mad_u32_u24 v13, s7, v{cH1}, v{I4}')
blk = [f'ds_write2st64_b32 v13, v{vHW}, v{vHK} offset0:{L_QW//256} offset1:{L_QK//256}',
       's_mov_b64 exec, s[68:69]',
       f'ds_write2st64_b32 v4, v12, v8 offset0:{L_QS//256} offset1:{L_QT//256}',
       f'ds_write2st64_b32 v4, v6, v11 offset0:{L_QW//256} offset1:{L_QK//256}',
       's_mov_b64 exec, vcc',
       f'ds_write2st64_b32 v{SP}, v{SE}, v8 offset0:{L_QS//256} offset1:{L_QT//256}',
       f'ds_write2st64_b32 v{SP}, v{I1+1}, v{MK} offset0:{L_QW//256} offset1:{L_QK//256}',
       's_mov_b64 exec, -1']
m('\n'.join(blk))
slot(7, L)
L += mid2
m(f's_mul_i32 s59, s7, s{sW}')
m('s_lshl_b32 s59, s59, 1')
m(f'v_mul_u32_u24 v4, s7, v{HH}')
m(f'v_add_u32 v{vQA}, s59, v4')
m(f'v_add_u32 v{vQ1}, v{vQA}, v{cP1}')
m(f'v_add_u32 v{vQP}, v{vQA}, v{cP2}')
m(f'v_mad_u32_u24 v4, s7, v{cP3}, v{cP4}')
m(f'v_add_u32 v{vQE}, s59, v4')
m(f'v_add_u32 v14, s7, v{vQA}')
qm = []
for s in range(4):
    for nu in range(4):
        c = '0' if s == 0 else f'v[{QACC+4*nu}:{QACC+4*nu+3}]'
        qm.append(f'v_mfma_f32_16x16x32_bf16 v[{QACC+4*nu}:{QACC+4*nu+3}], v[{W2F+4*s}:{W2F+4*s+3}], v[{XF+16*s+4*nu}:{XF+16*s+4*nu+3}], {c}')
QSP = opt('qsp', 3)
for n_, l in enumerate(L):
    if n_ % QSP == 0 and qm: a(qm.pop(0))
    a(l)
for l in qm: a(l)
slot(8)
a('s_mov_b32 s58, 0x00010001')
a(f's_and_b32 s58, s58, s{sQM}')
a('s_mov_b32 s59, s58')
if W3L: a(f'v_add_u32 v4, {L_STG+HB}, v{vW}')
a(f's_mov_b64 exec, s[{sQM}:{sQM+1}]')
if W3L:
    for s in range(4): a(f'ds_read_b128 v[{W3+4*s}:{W3+4*s+3}], v4 offset:{1024*s}')
else: a.nop(1)
for nu in range(4):
    if nu == 3: a('s_mov_b64 exec, s[58:59]')
    for r in range(4): a(f'v_mul_f32 v{QACC+4*nu+r}, {NEGLOG2E:#x}, v{QACC+4*nu+r}')
    for r in range(2): a(f'v_cvt_pk_bf16_f32 v{QACC+4*nu+r}, v{QACC+4*nu+2*r}, v{QACC+4*nu+2*r+1}')
    a(f'ds_write_b64 v{vQW}, v[{QACC+4*nu}:{QACC+4*nu+1}] offset:{16*NSTR*nu}')
a('s_mov_b64 exec, -1')
slot(9)
a('s_waitcnt lgkmcnt(0)')
st(0); st(2)
a('s_barrier')
st(2); st(4)
def qbread(buf, beta):
    return [f'ds_read_b64_tr_b16 v[{QB[buf]}:{QB[buf]+1}], v{TA} offset:{64*beta}']
def paread(half):
    return [f'ds_read_b64_tr_b16 v[{PA[b]+4*q+2*j}:{PA[b]+4*q+2*j+1}], v{RA+b} offset:{HB*half+2048*j+128*q}' for b in range(2) for q in range(4) for j in range(2)]
def mfmas(beta):
    z = ZB[beta & 1]; zz = f'v[{z}:{z+15}]'
    q = QB[beta & 1]; p = PA[beta & 1]
    return [f'v_mfma_f32_32x32x8_bf16 {zz}, v[{TM}:{TM+1}], v[{q}:{q+1}], v[{p}:{p+15}]',
            f'v_mfma_f32_32x32x16_bf16 {zz}, v[{EC}:{EC+3}], v[{W3+4*beta}:{W3+4*beta+3}], {zz}']
a(f'ds_read_b32 v6, v{vQE} offset:{L_QS+16}')
a(f'ds_read_b32 v7, v{vQP} offset:{L_QS+16}')
a(f'ds_read_b32 v{SE}, v{vQE} offset:{L_QS+32}')
a(f'ds_read_b32 v{SP}, v{vQP} offset:{L_QS+32}')
a(f'ds_read_b32 v12, v14 offset:{L_QT-4}')
a(f'ds_read_b32 v13, v14 offset:{L_QW-4}')
a('v_mov_b32 v5, 0')
a(f'ds_write_b32 v{vQA}, v5 offset:{L_QK+16}')
a(f'ds_read_b128 v[{EN}:{EN+3}], v5 offset:{L_MISC}')
for l in qbread(0, 0) + qbread(1, 1): a(l)
rest = [(l, 'h0') for l in hq] + [(f's_mov_b32 m0, s{sM0B}\ns_nop 0', None)] + [(l, 'h1') for l in dma(1)]
def hiss(n):
    while rest and (n > 0 or rest[0][1] is None):
        l, t = rest.pop(0); a(l)
        if t: vm.append(t); n -= 1
HP = [int(c) for c in str(opt('hp', 121))]
hiss(HP[0])
st(2); st(4)
slot(10)
assert not wq
a(f's_cmp_eq_u32 s{sFIRST}, 0')
a(vwait('WU1'))
a('s_cbranch_scc1 L_noq')
for s in range(4):
    for nu in range(4):
        c = '0' if s == 0 else f'v[{R+4*nu}:{R+4*nu+3}]'
        a(f'v_mfma_f32_16x16x32_bf16 v[{R+4*nu}:{R+4*nu+3}], v[{WU1F+4*s}:{WU1F+4*s+3}], v[{XF+16*s+4*nu}:{XF+16*s+4*nu+3}], {c}')
        for l in late_c[:2]: a(l)
        late_c = late_c[2:]
for l in late_c: a(l)
a(f's_mov_b32 s{sFIRST}, 0')
a.nop(4)
for r in range(16): a(f'v_mul_f32 v{R+r}, {NEGLOG2E:#x}, v{R+r}')
a.label('L_noq')
a(f'v_ashrrev_i32 v{MK}, 31, v{EV}')
for i in range(2): a(f'v_bitop3_b32 v{TM+i}, v{TC+i}, v{MK}, v{MK} bitop3:0x30')
hiss(HP[1])
a('s_waitcnt lgkmcnt(0)')
a(f'v_add_u32 v6, v6, v{I4}')
a(f'ds_read_b32 v{EOr}, v6 offset:{L_EO}')
a(f'ds_read_b128 v[{PTr}:{PTr+3}], v7')
T1 = opt('t1', 0)
if T1: a(f'ds_read_b32 v{CIr}, v6')
a('v_cmp_eq_u32 vcc, 0, v13')
a(f's_lshl_b32 s58, s{sW}, 10')
a(f's_add_u32 s58, s58, {L_CARRY-L_ZERO}')
a(f'v_lshl_add_u32 v4, v{HH}, 9, s58')
a('s_mov_b64 exec, vcc')
a(f'ds_write_b32 v12, v4 offset:{L_NODE+768}')
a('s_mov_b64 exec, -1')
a(f's_mul_i32 s58, s57, s{sW}')
a(f's_sub_i32 s58, s{sT}, s58')
a('s_max_i32 s58, s58, 0')
a('s_add_u32 s58, s58, 15')
a('s_lshr_b32 s58, s58, 4')
a(f's_min_u32 s{sN}, s{sN}, s58')
a(f's_add_u32 s{sN}, s{sN}, 1')
a(f's_mov_b32 s{sPASS}, 1')
a(f's_mov_b32 s{sTC}, 2')
tA1, tA2, tC1, tC2, tW1, tW2, tH, tF, tCY, tO = 4, 5, 6, 7, 8, 9, 11, 12, 13, 14
a(f's_cmp_lt_u32 s{sW}, 4')
a('s_cselect_b32 s58, 48, 16')
a('v_lshrrev_b32 v15, 4, v0')
a(f'v_mul_u32_u24 v{tC1}, {NSTR}, v15')
a(f's_mul_i32 s59, s58, {NSTR}')
a(f'v_add_u32 v{tC1}, {L_NODE+NSTR}, v{tC1}')
a(f'v_add_u32 v{tC2}, s59, v{tC1}')
a(f'v_and_b32 v{tF}, 15, v0')
a(f'v_lshlrev_b32 v250, 4, v{tF}')
a(f'v_add_u32 v{tA1}, v250, v{tC1}')
a(f'v_add_u32 v{tA2}, v250, v{tC2}')
a(f'v_and_b32 v{tW1}, 15, v15')
a(f'v_xor_b32 v{tW1}, v{tW1}, v{tF}')
a(f'v_lshlrev_b32 v{tW1}, 4, v{tW1}')
a(f'v_lshl_add_u32 v{tW1}, v15, 8, v{tW1}')
a(f'v_add_u32 v{tW1}, {L_STG}, v{tW1}')
a('s_lshl_b32 s59, s58, 8')
a(f'v_add_u32 v{tW2}, s59, v{tW1}')
a(f'v_lshl_add_u32 v{tH}, v15, 9, v250')
a(f'v_lshlrev_b32 v{tCY}, 4, v0')
a(f'v_lshl_add_u32 v{tO}, v15, 16, v250')
a(f's_lshl_b32 s3, s58, 16')
a(f's_add_u32 s3, s3, s{sNODE0}')
hiss(HP[2])
a(f's_cmp_eq_u32 s{sW}, 0')
a('s_cselect_b32 s6, 0xffff, 0')
a('s_mov_b32 s7, 0')
a(f's_cmp_lt_u32 s{sW}, 4')
a('s_cselect_b64 s[6:7], s[6:7], -1')
a('s_add_u32 s56, s56, 0x10000')
tOW, tO3, KV = I1, vPF, 15
a(f'v_lshrrev_b32 v{tOW}, 1, v15')
a(f'v_xor_b32 v{tOW}, v{tOW}, v{tF}')
a(f'v_lshlrev_b32 v{tOW}, 4, v{tOW}')
a(f'v_lshl_add_u32 v{tOW}, v{tF}, 8, v{tOW}')
a(f'v_and_b32 v{tO3}, 1, v15')
a(f'v_lshl_add_u32 v{tOW}, v{tO3}, 3, v{tOW}')
a(f'v_add_u32 v{tOW}, {L_STG+16384}, v{tOW}')
a(f'v_lshlrev_b32 v{tO3}, 3, v15')
a(f'v_lshl_add_u32 v{tO3}, v{tF}, 1, v{tO3}')
a(f'v_add_u32 v{tO3}, {L_STG+16384+48*256}, v{tO3}')
a(f'v_mov_b32 v{KV}, {NEGLOG2E:#x}')
a('s_movk_i32 s39, 0x207')
a(f'v_add_u32 v{tF}, {L_STG}, v{vXF}')
a(f's_cmp_eq_u32 s{sBML}, 0')
a('s_cbranch_scc0 L_np2')
a(f's_mov_b32 s{sBML}, 1')
for i in range(4): a(f'v_readfirstlane_b32 s{BM+i}, v{EN+i}')
a.label('L_np2')
a(f's_or_b64 s[58:59], s[{BM}:{BM+1}], s[{BM+2}:{BM+3}]')
a(f's_cselect_b32 s5, 1, s{sMORE}')
a(f's_lshl_b32 s4, s{sSAFE}, 3')
a(f's_add_u32 s4, s4, s{sW}')
for i in range(4):
    a(f'v_mov_b32 v{AA+i}, 0')
    a(f'v_mov_b32 v{KK+i}, 0')
    a(f'v_mov_b32 v{MB+12+i}, 0')
    a(f'v_mov_b32 v{NF+i}, 0')
    a(f'v_mov_b32 v{D+i}, 1.0')
a('s_waitcnt lgkmcnt(0)')
a(f'v_add_u32 v{EV}, v{EOr}, v{H16}')
if T1: a(f'v_lshl_add_u32 v{CIr}, v{H16}, 3, v{CIr}')
a(f'v_ashrrev_i32 v{MK}, 31, v{EV}')
if BENCH: a(f's_mov_b32 s{sN}, {opt("bn", 50)}')
if opt('unp', 0): a(f'v_mov_b32 v{I0}, 0xffff0000')
st(4)
a(f's_bitcmp1_b32 s{sW}, {opt("wbit", 2)}')
a('s_cbranch_scc%d L_prime_B' % opt('wsel', 1))
PEEL = opt('peel', 1)
EL = not X('eearly')
def nxt(): return dma(0) + [eload(EN)] if EL else [eload(EN)] + dma(0)
def prime2(tag):
    ns = nstamp[0]
    for l, t in rest: a(l)
    st(4)
    a(f's_cmp_gt_u32 s{sN}, 1')
    a(f's_cselect_b32 s{PS+2}, s{PS+2}, 0')
    a(f's_cselect_b32 s{Ed+2}, s{Ed+2}, 0')
    for i in range(4): a(f'v_add_u32 v{DA+i}, v{PTr+i}, v{LC1 if i & 1 else LC}')
    a(f's_mov_b32 m0, s{sM0A}')
    mf0 = mfmas(0)
    tch = f'buffer_load_dword v{CIr+1}, v{CIr}, s[{PS}:{PS+3}], s{SO} offen'
    def b4():
        a('s_barrier')
        st(4)
        a(f'ds_read_b32 v{tC1}, v{tC1} offset:768')
        a(f'ds_read_b32 v{tC2}, v{tC2} offset:768')
    if T1 in (1, 3) or X('b4e'): b4()
    if T1 in (1, 2): a(eload(EN)); a(tch)
    if T1 == 3: a(eload(EN))
    a('s_waitcnt vmcnt(%d)' % {0: 4, 1: 6, 2: 6, 3: 5}[T1])
    for l in paread(0): a(l)
    a('s_waitcnt lgkmcnt(%d)' % (0 if STAMP else 8))
    a(mf0[0])
    a(mf0[1])
    a('s_waitcnt lgkmcnt(0)')
    if X('nb4'):
        for l in nxt(): a(l)
    if T1 in (0, 2) and not X('b4e'): b4()
    st(0); st(2); st(4)
    if FINE == 9: a('s_memtime s[84:85]')
    if STAMP and FINE == 0: a('s_memrealtime s[88:89]')
    if not PEEL and not X('nb4'):
        for l in nxt(): a(l)
    else: a.nop(4)
    a('s_waitcnt lgkmcnt(0)')
    a(f'v_add_u32 v{tC1}, v250, v{tC1}')
    a(f'v_add_u32 v{tC2}, v250, v{tC2}')
    a.nop(3)
    st(4)
    if tag == 'A': nstamp[0] = ns
    a(f's_cmp_lg_u32 s{sSLOW}, 0')
    a('s_cbranch_scc1 L_pre_s')

def aadd():
    if not X('mask'): return [f'v_add_u32 v{AA+q}, v{AA+q}, v{CA2}' for q in range(4)]
    return [f'v_add_co_u32 v{AA+q}, s[{XM+2*q}:{XM+2*q+1}], v{AA+q}, v{CA2}' for q in range(4)]
def dswr(safe):
    if not safe and not X('mask'): return [f'ds_write_b128 v{AA+q}, v[{MB+4*q}:{MB+4*q+3}]' for q in range(4)]
    if not safe: return sum(([f's_mov_b64 exec, s[{XM+2*q}:{XM+2*q+1}]', f'ds_write_b128 v{AA+q}, v[{MB+4*q}:{MB+4*q+3}]'] for q in range(4)), []) + ['s_mov_b64 exec, -1']
    o = []
    for q in range(4):
        o += [f'ds_add_f32 v{AA+q}, v{MB+4*q+b} offset:{4*b}' for b in range(4)] + ['s_waitcnt lgkmcnt(0)']
    return o
def guard():
    if not X('g4'): return [f'v_bitop3_b32 v{G+i}, v{G+i}, v{RC+2*i}, v{RC+2*i+1} bitop3:0x80' for i in range(2)]
    return [f'v_and_b32 v{G+(q&1)}, v{G+(q&1)}, v{RC+q}' for q in range(4)]
def mchain(beta):
    m = [MB+4*q+beta for q in range(4)]
    o = []
    for q in range(4):
        o += [f'v_and_b32 v{m[q]}, v{m[(q-1)&3]}, v{KK+q}', f'v_fmac_f32 v{m[q]}, v{NF+q}, v{RCq(q)}']
    return o
def loop(safe, mode):
    sfx = '_s' if safe else '_' + mode
    if safe:
        a.label('L_pre_s')
        if PEEL:
            for l in nxt(): a(l)
        for i in range(12): a(f'v_mov_b32 v{MB+i}, 0')
    bz = 0 if BENCH else 16
    TPs = []; PPs = []
    for beta in range(4):
        body = []; e = body.append
        z = ZB[beta & 1]
        tr = [f'v_rcp_f32 v{RCq(q)}, v{D+q}' for q in range(4)] + [f'v_exp_f32 v{Uq(r>>2,r&3)}, v{z+r}' for r in range(16)]
        mf = mfmas((beta+1) & 3)
        if X('m16'):
            b1 = (beta+1) & 3; zn = ZB[b1 & 1]; q_ = QB[b1 & 1]; p_ = PA[b1 >> 1] + 8*(b1 & 1)
            m1 = [f'v_mfma_f32_16x16x16_bf16 v[{zn+4*i}:{zn+4*i+3}], v[{TM}:{TM+1}], v[{q_}:{q_+1}], 0' for i in range(4)]
            m2 = [f'v_mfma_f32_16x16x32_bf16 v[{zn+4*i}:{zn+4*i+3}], v[{p_+4*(i&1)}:{p_+4*(i&1)+3}], v[{(W3+4*b1) if i&2 else I0}:{(W3+4*b1+3) if i&2 else I0+3}], v[{zn+4*i}:{zn+4*i+3}]' for i in range(4)]
            mf = m1 + m2
            if X('m16b'): mf = [l.replace(f', v[{zn+4*i}:{zn+4*i+3}]', ', 0') if False else l for i, l in enumerate(m2)]
        if X('noq'): mf = [mf[1].rsplit(',', 1)[0] + ', 0'] + mf[2:] + ['s_nop 0']
        if X('nomf2'): mf = mf[:2] + ['s_nop 0', 's_nop 0']
        if X('nomf3'): mf = mf[:1] + ['s_nop 0']*3
        if X('noexp'): tr = [t.replace('v_exp_f32', 'v_lshlrev_b32').replace(', v', ', 0, v') if 'exp' in t else t for t in tr]
        qb = qbread(beta & 1, (beta+2) & 3)
        early = []; late = []; post = []
        if beta == 0:
            fill = qb + [f'ds_read_b128 v[{PTr}:{PTr+3}], v{SP}', f'ds_read_b32 v{TAr}, v{vQ1} offset:{L_QT+16}', 's_waitcnt vmcnt(5)'] + paread(1)
            ext = aadd() + [f'v_add_u32 v{SE}, v{SE}, v{I4}']
        if beta == 1:
            early = [f's_mov_b32 m0, s{sM0B}', f'ds_read_b128 v[{KK}:{KK+3}], v{vQA} offset:{L_QK}']
            fill = dma(1) + qb + [f'ds_read_b32 v{EOr}, v{SE} offset:{L_EO}'] + dswr(safe)
            if not X('dswl'): fill = qb + [f'ds_read_b32 v{EOr}, v{SE} offset:{L_EO}'] + dswr(safe) + dma(1)
            late = ['s_waitcnt lgkmcnt(6)']
            ext = [f'v_add_u32 v{DA+i}, v{PTr+i}, v{LC1 if i & 1 else LC}' for i in range(4)] + [f'v_add_u32 v{TA}, v{TAr}, v{CT}']
        if beta == 2:
            fill = qb + [f's_cmp_lt_u32 s{sTC}, s{sN}', f's_cselect_b32 s{PS+2}, s{PS+2}, 0', f's_cselect_b32 s{Ed+2}, s{Ed+2}, 0', f's_add_u32 s{sTC}, s{sTC}, 1',
                         's_waitcnt vmcnt(%d)' % (5 if EL else 4)] + paread(0)
            ext = [f'v_bitop3_b32 v{TM+i}, v{TC+i}, v{MK}, v{MK} bitop3:0x30' for i in range(2)] + [f'v_add_u32 v{EV}, v{EOr}, v{H16}']
            post = (['s_waitcnt vmcnt(4)'] if EL else []) + [f'v_mov_b32 v{EC+i}, v{EN+i}' for i in range(4)]
        if beta == 3:
            fill = [f's_mov_b32 m0, s{sM0A}'] + qb + ([] if (not X('rdl')) else nxt()) + [f'ds_read_b128 v[{AA}:{AA+3}], v{vQA} offset:{L_QW}',
                    f'ds_read_b32 v{SP}, v{vQP} offset:{L_QS+48}', f'ds_read_b32 v{SE}, v{vQE} offset:{L_QS+48}',
                    f's_sub_u32 s58, s{sTC}, 2', f's_cmp_lt_u32 s58, s{sN}'] + (nxt() if (not X('rdl')) else [])
            tr = tr + [f'v_ashrrev_i32 v{MK}, 31, v{EV}']
            ext = [f'v_add_u32 v{p}, {bz}, v{p}' for p in (vQA, vQ1, vQP, vQE)]
        if X('it'):
            fill = fill + ['s_memtime s[100:101]']
            early = early + [f's_mov_b32 s91, m0', f's_mov_b32 m0, s90', 'v_writelane_b32 v250, s100, m0', 's_mov_b32 m0, s91', 's_add_u32 s90, s90, 1'] if beta != 0 else [f's_mov_b32 s91, m0', f's_mov_b32 m0, s90', 'v_writelane_b32 v250, s100, m0', 's_mov_b32 m0, s91', 's_add_u32 s90, s90, 1']
        if X('mvs'):
            sc = [f's_cmp_lt_u32 s{sTC}, s{sN}', f's_cselect_b32 s{PS+2}, s{PS+2}, 0', f's_cselect_b32 s{Ed+2}, s{Ed+2}, 0', f's_add_u32 s{sTC}, s{sTC}, 1']
            if beta == 2: fill = [l for l in fill if l not in sc]
            if beta == 3: fill = sc + fill
        if X('ashp') and beta == 3:
            ext = ext + [tr.pop()]
        if X('nowl') and mode == 'A' and beta == 1: late = []; fill = fill + ['s_waitcnt lgkmcnt(6)']
        if FINE == 9:
            if beta == opt('tb', 3): fill = fill + ['s_memtime s[84:85]']
            if beta == (opt('tb', 3)+1) % 4: fill = ['s_lshl_b64 s[76:77], s[76:77], 16', 's_lshr_b32 s82, s79, 16', 's_or_b32 s76, s76, s82', 's_lshl_b64 s[78:79], s[78:79], 16', 's_sub_u32 s82, s84, s70', 's_and_b32 s82, s82, 0xffff', 's_or_b32 s78, s78, s82'] + fill
        if X('halftr') and beta in (0, 2): fill = fill[:-8]
        if X('mvtr'):
            if beta in (0, 2): fill = fill[:-8]
            else: fill = paread(0)[8:] + fill
        if X('nodsw'): fill = [l for l in fill if not l.startswith('ds_write')]
        if X('nords'): fill = [l for l in fill if not l.startswith('ds_read')]
        if X('nodma'): fill = [l for l in fill if not l.startswith('buffer_')]
        if opt('unp', 0) and not safe:
            zn = ZB[(beta+1) & 1]
            mf = [mf[0].rsplit(',', 1)[0] + f', v[{zn}:{zn+15}]', mf[1]]
            b2 = (beta+2) & 3; p_ = PA[b2 >> 1] + 8*(b2 & 1)
            lo = {1: 'v_lshlrev_b32 v{d}, 16, v{s}', 2: 'v_mov_b32_sdwa v{d}, v{s} dst_sel:WORD_1 dst_unused:UNUSED_PAD src0_sel:WORD_0', 3: 'v_and_b32 v{d}, v{k}, v{s}',
                  4: 'v_cvt_f32_bf16 v{d}, v{s}'}[opt('unp', 0)]
            ext = ext + [f'v_and_b32 v{z+2*i+1}, v{I0}, v{p_+i}' for i in range(8)] + [lo.format(d=z+2*i, s=p_+i, k=I0) for i in range(8)]
        MSP = opt('msp', 6)
        FAT = opt('fatA', 0) if mode == 'A' else len(tr) - opt('fatB', 0)
        if X('noext'): ext = []
        e('s_setprio %d' % (opt('pA', 1) if mode == 'A' else opt('pB', 2)))
        e('s_waitcnt lgkmcnt(0)')
        for l in early: e(l)
        mi = 0
        ilv = {}
        ILA = [int(c, 36) for c in (([x.split('=')[1] for x in sys.argv if x.startswith('--ila=')] or ['0000'])[0])]
        ILB = [int(c, 36) for c in (([x.split('=')[1] for x in sys.argv if x.startswith('--ilb=')] or ['0000'])[0])]
        if not safe:
            if mode == 'A' and ILA[beta]:
                k_ = ILA[beta]; mv = fill[-k_:]; fill = fill[:-k_]
                for n_, l in enumerate(mv): ilv.setdefault(n_ // opt('ipt', 1), []).append(l)
            if mode == 'B' and ILB[beta]:
                k_ = ILB[beta]; mv = fill[:k_]; fill = fill[k_:]
                st_ = len(tr) - 1 - (k_ + opt('ipt', 1) - 1) // opt('ipt', 1)
                for n_, l in enumerate(mv): ilv.setdefault(max(0, st_) + n_ // opt('ipt', 1), []).append(l)
        if FAT == 0:
            if beta in (0, 2) or X('mfirst'): e(mf[0]); mi = 1
            for l in fill: e(l)
        for idx, t in enumerate(tr):
            e(t)
            if idx % MSP == 0 and mi < len(mf): e(mf[mi]); mi += 1
            for l in ilv.get(idx, []): e(l)
            if idx == FAT - 1:
                for l in fill: e(l)
        for l in late: e(l)
        TPs.append(body); body = []; e = body.append
        e('s_setprio %d' % (opt('qA', 3) if mode == 'A' else opt('qB', 0)))
        mc = mchain((beta-1) & 3)
        if not safe:
            pl = [f'v_add_f32 v{D+q}, 1.0, v{Uq(q,0)}' for q in range(4)]
            for stp in range(1, 4):
                for q in range(4):
                    dst = NF+q if stp == 3 else z+4*q+stp
                    pl.append(f'v_fma_f32 v{dst}, v{z+4*q+stp}, v{D+q}, v{z+4*q+stp-1}')
                for q in range(4):
                    dst = NF+q if stp == 3 else z+4*q+stp
                    pl.append(f'v_fmac_f32 v{dst}, v{z+4*q+stp-1}, v{Uq(q,stp)}')
                for q in range(4): pl.append(f'v_fmac_f32 v{D+q}, v{D+q}, v{Uq(q,stp)}')
            gd = guard()
            if X('pk'):
                P2 = lambda r: f'v[{r}:{r+1}]'
                pl = [f'v_pk_add_f32 {P2(D+2*p)}, {P2(U+8*p)}, 1.0 op_sel_hi:[1,0]' for p in range(2)]
                for stp in range(1, 4):
                    for p in range(2):
                        dst = NF+2*p if stp == 3 else z+8*p+2*stp
                        pl.append(f'v_pk_fma_f32 {P2(dst)}, {P2(z+8*p+2*stp)}, {P2(D+2*p)}, {P2(z+8*p+2*stp-2)}')
                    for p in range(2): pl.append(f'v_pk_fma_f32 {P2(D+2*p)}, {P2(D+2*p)}, {P2(U+8*p+2*stp)}, {P2(D+2*p)}')
                    for p in range(2):
                        dst = NF+2*p if stp == 3 else z+8*p+2*stp
                        pl.append(f'v_pk_fma_f32 {P2(dst)}, {P2(z+8*p+2*stp-2)}, {P2(U+8*p+2*stp)}, {P2(dst)}')
                if X('pk2'):
                    xs = mc[:]; ex = ext + [] ; o = []
                    while xs or ex:
                        if xs: o.append(xs.pop(0))
                        if ex: o.append(ex.pop(0))
                    pl = o + pl; mc = []; ext = []
                else:
                    o = []
                    for n_, l in enumerate(pl):
                        if n_ % 2 == 0 and mc: o.append(mc.pop(0))
                        o.append(l)
                    pl = o
            ci = 0
            for idx, l in enumerate(pl):
                if idx % 3 == 0 and ci < len(mc): e(mc[ci]); ci += 1
                e(l)
            for l in ext + gd + post: e(l)
            if mode == 'A' and opt('qt', 0): body.insert(len(body) - opt('qt', 0), 's_setprio 3')
        else:
            for l in mc: e(l)
            for r in range(16): e(f'v_add_f32 v{U+r}, 1.0, v{U+r}')
            for r in range(16): e(f'v_rcp_f32 v{U+r}, v{U+r}')
            for q in range(4): e(f'v_mul_f32 v{NF+q}, v{z+4*q}, v{Uq(q,0)}')
            for stp in range(1, 4):
                for q in range(4): e(f'v_fmac_f32 v{NF+q}, v{z+4*q+stp}, v{Uq(q,stp)}')
            for l in ext + post: e(l)
        PPs.append(body)
    if not safe and T1 in (1, 2):
        for l in TPs[0]: a(l.replace('vmcnt(5)', 'vmcnt(6)'))
        a(f's_branch L_pp0{sfx}')
    elif not safe and PEEL >= 3:
        pa1 = paread(1)
        for l in TPs[0] + PPs[0]:
            if l in pa1 or 'vmcnt' in l: continue
            a(l)
        if PEEL == 3: seq_ = ['s_waitcnt vmcnt(0)'] + pa1 + nxt()
        if PEEL == 4: seq_ = nxt() + ['s_waitcnt vmcnt(5)'] + pa1
        if PEEL == 5: seq_ = (nxt() + ['s_waitcnt vmcnt(5)'] + pa1) if mode == 'A' else (['s_waitcnt vmcnt(0)'] + pa1 + nxt())
        for l in seq_: a(l)
        a(f's_branch L_tp1{sfx}')
    elif not safe and PEEL:
        ld = nxt()
        pa1 = paread(1)[-1]
        for l in TPs[0]:
            if PEEL == 1 and l == qbread(0, 2)[0]:
                for x in ld: a(x)
            if PEEL == 2 and 'vmcnt(5)' in l: l = 's_waitcnt vmcnt(0)'
            a(l)
            if PEEL == 2 and l == pa1:
                for x in ld: a(x)
        a(f's_branch L_pp0{sfx}')
    elif mode == 'B': a('s_branch L_mid_B')
    if mode == 'A':
        if not safe: a('.p2align 6')
        a.label('L_loop' + sfx)
        for b in range(4):
            for l in ([f'L_tp1{sfx}:'] if b == 1 else []) + TPs[b] + ([f'L_pp0{sfx}:'] if b == 0 else []) + PPs[b]: a(l)
        a(f's_cbranch_scc1 L_loop{sfx}')
        for s_ in range(4): a(fragl(WU2, 56, s_))
    else:
        a('.p2align 6')
        a.label('L_loop' + sfx)
        for l in PPs[3]: a(l)
        a.label('L_mid' + sfx)
        for b in range(4):
            for l in ([f'L_tp1{sfx}:'] if b == 1 else []) + TPs[b] + ([f'L_pp0{sfx}:'] if b == 0 else []) + (PPs[b] if b < 3 else []): a(l)
        a(f's_cbranch_scc1 L_loop{sfx}')
        for s_ in range(4): a(fragl(WU2, 56, s_))
        for l in PPs[3]: a(l)
    if mode == 'B':
        a.label('L_drain'); a('s_setprio 0')
    if mode == 'A' and not safe:
        a('s_branch L_drain'); return
    for q in range(4): a(f'v_rcp_f32 v{RCq(q)}, v{D+q}')
    a('s_waitcnt lgkmcnt(0)')
    for l in aadd(): a(l)
    for l in mchain(3): a(l)
    for l in dswr(safe): a(l)
    for l in guard(): a(l)
    if not safe:
        a(f'ds_write_b128 v{tCY}, v[{MB+12}:{MB+15}] offset:{L_CARRY}')
prime2('A')
loop(False, 'A')
loop(True, 'A')
a('s_branch L_done')
a.label('L_prime_B')
prime2('B')
loop(False, 'B')
a.label('L_done')
st(0); st(3)
if STAMP and FINE == 0: a('s_memrealtime s[90:91]')
a('s_cmp_lg_u32 s5, 0')
a('s_waitcnt vmcnt(4) lgkmcnt(0)')
st(3)
a('s_barrier')
st(0); st(3)
a('s_cbranch_scc1 L_again')
AG = 16
def rd2(dst, adr, off):
    for u in range(2): a(f'ds_read_b128 v[{dst+4*u}:{dst+4*u+3}], v{adr} offset:{off+256*u}')
rd2(AG, tA1, 0); rd2(AG+8, tC1, L_ZERO)
a('s_cmp_lt_u32 s4, 4')
a('s_mov_b64 exec, s[6:7]')
rd2(AG+16, tA2, 0); rd2(AG+24, tC2, L_ZERO)
a('s_mov_b64 exec, -1')
a(f'v_and_b32 v250, v{G}, v{G+1}')
fa = [tF, tA1, tA2, tC1]
for s in range(1, 4): a(f'v_xor_b32 v{fa[s]}, {64*s}, v{tF}')
a('v_cmp_gt_u32 vcc, 0x20000000, v250')
a('s_mov_b32 s58, 0x00010001')
a('s_mov_b32 s59, 0x00010001')
a('v_mov_b32 v250, 0')
a('s_mov_b64 s[68:69], vcc')
a('s_cbranch_scc0 L_nohead')
rd2(AG+32, tH, L_HEAD)
a('s_waitcnt lgkmcnt(0)')
for r in range(8): a(f'v_add_f32 v{AG+r}, v{AG+r}, v{AG+32+r}')
a.label('L_nohead')
a('s_waitcnt lgkmcnt(%d)' % (0 if STAMP else 4))
for r in range(8): a(f'v_add_f32 v{AG+r}, v{AG+r}, v{AG+8+r}')
for r in range(4): a(f'v_cvt_pk_bf16_f32 v{AG+8+r}, v{AG+2*r}, v{AG+2*r+1}')
a(f'ds_write_b128 v{tW1}, v[{AG+8}:{AG+11}]')
a('s_mov_b64 exec, s[6:7]')
a('s_cbranch_execz L_cv2')
a('s_waitcnt lgkmcnt(1)')
for r in range(8): a(f'v_add_f32 v{AG+16+r}, v{AG+16+r}, v{AG+24+r}')
for r in range(4): a(f'v_cvt_pk_bf16_f32 v{AG+24+r}, v{AG+16+2*r}, v{AG+16+2*r+1}')
a(f'ds_write_b128 v{tW2}, v[{AG+24}:{AG+27}]')
a.label('L_cv2')
a('s_mov_b64 exec, -1')
a('s_waitcnt lgkmcnt(0)')
st(3)
a('s_barrier')
st(3)
EACC = 96
def frd(s, nu): a(f'ds_read_b128 v[{XF+16*s+4*nu}:{XF+16*s+4*nu+3}], v{fa[s]} offset:{4096*nu}')
def fmm(s, nu):
    c = f'v[{R+4*nu}:{R+4*nu+3}]' if s == 0 else f'v[{EACC+4*nu}:{EACC+4*nu+3}]'
    return f'v_mfma_f32_16x16x32_bf16 v[{EACC+4*nu}:{EACC+4*nu+3}], v[{WU2+4*s}:{WU2+4*s+3}], v[{XF+16*s+4*nu}:{XF+16*s+4*nu+3}], {c}'
if STAMP: a('s_waitcnt lgkmcnt(0)')
for s in range(4): frd(s, 0); frd(s, 1)
for s in range(4): frd(s, 2)
a('s_mov_b64 exec, s[58:59]')
for s in range(3): frd(s, 3)
a('s_waitcnt lgkmcnt(13) vmcnt(0)')
frd(3, 3)
a('s_mov_b64 exec, -1')
Y = 112
a('s_mov_b32 s58, 0x000f000f')
a('s_mov_b32 s59, 0x000f000f')
for s in range(4):
    if s: a(f's_waitcnt lgkmcnt({14-2*s})')
    for nu in range(2): a(fmm(s, nu))
def silu(regs, tmp):
    o = [[f'v_exp_f32 v{tmp+i}, v{r}' for i, r in enumerate(regs)],
         [f'v_fma_f32 v{tmp+i}, v{tmp+i}, v{KV}, v{KV}' for i, r in enumerate(regs)],
         [f'v_rcp_f32 v{tmp+i}, v{tmp+i}' for i, r in enumerate(regs)],
         [f'v_mul_f32 v{tmp+i}, v{r}, v{tmp+i}' for i, r in enumerate(regs)]]
    return sum(o, [])
def fin(nu, tmp):
    return [f'v_cvt_pk_bf16_f32 v{tmp}, v{tmp}, v{tmp+1}', f'v_cvt_pk_bf16_f32 v{tmp+1}, v{tmp+2}, v{tmp+3}',
            f'ds_write_b64 v{tOW}, v[{tmp}:{tmp+1}] offset:{4096*nu}']
a('s_waitcnt lgkmcnt(0)')
st(3)
L = silu(list(range(EACC, EACC+8)), Y)
mq = [fmm(s, nu) for s in range(4) for nu in (2, 3)]
a(mq.pop(0)); a(mq.pop(0)); a.nop(5)
for n_, l in enumerate(L):
    a(l)
    if n_ < 6: a(mq.pop(0))
f01 = fin(0, Y) + fin(1, Y+4)
E3 = EACC + 12
for r in range(1, 4):
    a(f'v_mov_b32_dpp v{E3}, v{E3+r} row_shr:{r} row_mask:0xf bank_mask:0xf')
    for l in f01[:2]: a(l)
    f01 = f01[2:]
a(f'v_add_f32 v{EACC}, v{EACC}, v{EACC+4}')
a(f'v_add_f32 v{EACC}, v{EACC}, v{EACC+8}')
for l in silu(list(range(EACC+8, EACC+13)), Y+8): a(l)
a(f'v_cmp_class_f32 vcc, v{EACC}, s39')
for l in fin(2, Y+8): a(l)
a('s_or_b64 s[68:69], s[68:69], vcc')
a('s_mov_b64 exec, s[58:59]')
a(f'v_cmp_class_f32 vcc, v{E3}, s39')
a(f'v_cvt_pk_bf16_f32 v{Y+12}, v{Y+12}, v{Y+12}')
a(f'ds_write_b16 v{tO3}, v{Y+12}')
a('s_or_b64 exec, s[68:69], vcc')
a(f'ds_write_b32 v250, v{KV} offset:{L_MISC+16}')
a('s_mov_b64 exec, -1')
a('s_waitcnt lgkmcnt(0)')
st(3)
a('s_barrier')
a(f'ds_read_b128 v[16:19], v{tW1} offset:16384')
a('s_mov_b64 exec, s[6:7]')
a(f'ds_read_b128 v[20:23], v{tW2} offset:16384')
a('s_mov_b64 exec, -1')
a(f'ds_read_b32 v24, v250 offset:{L_MISC+16}')
OSC = '' if X('onosc1') else ' sc1'
a('s_waitcnt lgkmcnt(%d)' % (0 if STAMP else 2))
a(f'buffer_store_dwordx4 v[16:19], v{tO}, s[{Od}:{Od+3}], s{sNODE0} offen' + OSC)
a('s_mov_b64 exec, s[6:7]')
a('s_cbranch_execz L_st2')
a('s_waitcnt lgkmcnt(1)')
a(f'buffer_store_dwordx4 v[20:23], v{tO}, s[{Od}:{Od+3}], s3 offen' + OSC)
a.label('L_st2')
a('s_mov_b64 exec, -1')
st(0); st(3)
if STAMP:
    a('s_waitcnt vmcnt(0) lgkmcnt(0)')
    stamp()
    a('s_waitcnt lgkmcnt(0)')
    a(f's_lshl_b32 s58, s2, 3')
    a(f's_add_u32 s58, s58, s{sW}')
    a('s_lshl_b32 s58, s58, 7')
    a(f's_add_u32 s58, s58, {WS_STAMP:#x}')
    a('v_mov_b32 v4, 0')
    a('s_mov_b64 exec, 1')
    if FINE == 9:
        for i in range(8):
            a(f's_bfe_u32 s82, s{[77,76,79,78][i>>1]}, {0x100000 + (0 if i & 1 else 16):#x}'); a('s_add_u32 s82, s82, s70'); a('v_mov_b32 v6, s82'); a(f'buffer_store_dword v6, v4, s[{WSd}:{WSd+3}], s58 offen offset:{8+4*i}')
    for i in range(nstamp[0]):
        a(f'v_mov_b32 v6, s{70+2*i}')
        a(f'buffer_store_dword v6, v4, s[{WSd}:{WSd+3}], s58 offen offset:{4*i}')
    if FINE == 0:
        a('s_memrealtime s[40:41]'); a('s_waitcnt lgkmcnt(0)')
        for r_, o_ in ((86, 27), (88, 28), (90, 29), (40, 30)): a(f'v_mov_b32 v6, s{r_}'); a(f'buffer_store_dword v6, v4, s[{WSd}:{WSd+3}], s58 offen offset:{4*o_}')
        a('s_sub_u32 s90, s90, s88'); a('v_mov_b32 v6, s90'); a(f'buffer_store_dword v6, v4, s[{WSd}:{WSd+3}], s58 offen offset:{4*31}')
    a('s_mov_b64 exec, -1')
    if X('it'):
        a('s_mov_b64 exec, 0x7fffffff'); a(f'v_lshlrev_b32 v4, 2, v{LANE}'); a(f'buffer_store_dword v250, v4, s[{WSd}:{WSd+3}], s58 offen offset:4'); a('s_mov_b64 exec, -1')
    print('nstamps', nstamp[0])
if BENCH: a('s_endpgm')
a(f's_cmp_lg_u32 s{sSAFE}, 0')
a('s_cbranch_scc1 L_main_end')
a('s_waitcnt lgkmcnt(0)')
a('v_readfirstlane_b32 s58, v24')
a('s_cmp_eq_u32 s58, 0')
a('s_cbranch_scc1 L_main_end')
a(f's_mov_b32 s{sSAFE}, 1')
a('s_waitcnt vmcnt(0)')
a('s_barrier')
celladdr()
a('s_branch L_cells')
a.label('L_ovf1')
a('s_barrier')
a(f's_cmp_lg_u32 s{sW}, 7')
a('s_cbranch_scc1 L_ovfe')
a('v_mov_b32 v4, 0')
a(f'ds_read_b128 v[16:19], v4 offset:{L_MISC}')
a(f'ds_write_b32 v4, v4 offset:{L_HIST+252}')
a(f'v_subrev_u32 v5, 52, v{LANE}')
a('v_lshlrev_b32 v5, 5, v5')
a('s_waitcnt lgkmcnt(0)')
for i in range(4): a(f'v_readfirstlane_b32 s{BM+i}, v{16+i}')
a(f's_ff1_i32_b64 s58, s[{BM}:{BM+1}]')
a(f's_ff1_i32_b64 s59, s[{BM+2}:{BM+3}]')
a('s_add_u32 s59, s59, 64')
a('s_cmp_eq_i32 s58, -1')
a('s_cselect_b32 s3, s59, s58')
a('s_mov_b32 s68, 0')
a('s_mov_b32 s69, 0xfff00000')
a('s_mov_b64 exec, s[68:69]')
a('s_lshl_b32 s58, s3, 2')
a(f's_add_u32 s58, s58, {WS_OVFLEN:#x}')
a(f'buffer_load_dword v6, v4, s[{WSd}:{WSd+3}], s58 offen')
a(f's_mul_i32 s59, s3, {CH*4}')
a(f's_add_u32 s58, s59, {WS_OVFREC:#x}')
a(f'buffer_load_dwordx4 v[{REC}:{REC+3}], v5, s[{WSd}:{WSd+3}], s58 offen')
a(f'buffer_load_dwordx4 v[{REC+4}:{REC+7}], v5, s[{WSd}:{WSd+3}], s58 offen offset:16')
a(f's_add_u32 s58, s59, {WS_OVFBKT:#x}')
a(f'buffer_load_dwordx4 v[16:19], v5, s[{WSd}:{WSd+3}], s58 offen')
a(f'buffer_load_dwordx4 v[20:23], v5, s[{WSd}:{WSd+3}], s58 offen offset:16')
a(f's_mul_i32 s59, s3, {CH*32}')
a(f'v_mov_b32 v{CB}, s59')
a(f's_mul_i32 s7, s2, {CS}')
a('s_waitcnt vmcnt(0)')
a('v_cmp_lt_u32 vcc, 384, v6')
a('s_cbranch_vccnz L_ovfe')
for k in range(8):
    a('s_mov_b64 exec, s[68:69]')
    a(f'v_add_u32 v7, {4*k}, v5')
    a('v_cmp_lt_u32 vcc, v7, v6')
    a(f'v_cmp_eq_u32 s[58:59], s7, v{16+k}')
    a('s_and_b64 vcc, vcc, s[58:59]')
    a(f's_or_b64 s[{XM+2*k}:{XM+2*k+1}], s[{XM+2*k}:{XM+2*k+1}], vcc')
    hadr(k)
    dec(k)
    a('s_mov_b64 exec, vcc')
    a(f'ds_add_rtn_u32 v{RK+k}, v{HA+k}, v11 offset:{L_HIST}')
    a('s_waitcnt lgkmcnt(0)')
    a(f'v_min_u32 v7, 256, v{RK+k}')
    a(f'v_mad_u32_u24 v7, v{HA+k}, s57, v7')
    a(f'ds_write2st64_b32 v7, v{PV+k}, v{EVv+k} offset0:0 offset1:{L_EO//256}')
a('s_mov_b64 exec, 1')
a('s_lshr_b32 s58, s3, 5')
a('s_lshl_b32 s58, s58, 2')
a('s_lshl_b32 s59, 1, s3')
a('v_mov_b32 v5, s58')
a('v_mov_b32 v6, s59')
a(f'ds_xor_b32 v5, v6 offset:{L_MISC}')
a.label('L_ovfe')
a('s_mov_b64 exec, -1')
a('s_waitcnt vmcnt(0) lgkmcnt(0)')
a('s_barrier')
a('s_branch L_b2done')
a.label('L_gen')
for k in range(8): a(f'v_cmp_ne_u32 s[{XM+2*k}:{XM+2*k+1}], -1, v{REC+k}')
a('s_branch L_nohdr')
a.label('L_again')
a(f's_cmp_lg_u32 s{sMORE}, 0')
a('s_cbranch_scc1 L_reinit')
a(f's_ff1_i32_b64 s58, s[{BM}:{BM+1}]')
a('s_cmp_eq_i32 s58, -1')
a('s_cbranch_scc1 L_pophi')
a(f's_bitset0_b64 s[{BM}:{BM+1}], s58')
a('s_branch L_popped')
a.label('L_pophi')
a(f's_ff1_i32_b64 s58, s[{BM+2}:{BM+3}]')
a(f's_bitset0_b64 s[{BM+2}:{BM+3}], s58')
a('s_add_u32 s58, s58, 64')
a.label('L_popped')
a(f's_mul_i32 s59, s58, {CH*32}')
a(f'v_mov_b32 v{CB}, s59')
a(f's_mul_i32 s59, s58, {CH*4}')
a('s_lshl_b32 s58, s58, 2')
a(f's_add_u32 s58, s58, {WS_OVFLEN:#x}')
a('v_mov_b32 v4, 0')
a('v_lshlrev_b32 v5, 5, v0')
a(f'buffer_load_dword v6, v4, s[{WSd}:{WSd+3}], s58 offen')
a(f's_add_u32 s58, s59, {WS_OVFREC:#x}')
a(f'buffer_load_dwordx4 v[{REC}:{REC+3}], v5, s[{WSd}:{WSd+3}], s58 offen')
a(f'buffer_load_dwordx4 v[{REC+4}:{REC+7}], v5, s[{WSd}:{WSd+3}], s58 offen offset:16')
a(f's_add_u32 s58, s59, {WS_OVFBKT:#x}')
a(f'buffer_load_dwordx4 v[{U}:{U+3}], v5, s[{WSd}:{WSd+3}], s58 offen')
a(f'buffer_load_dwordx4 v[{U+4}:{U+7}], v5, s[{WSd}:{WSd+3}], s58 offen offset:16')
a(f's_mul_i32 s57, s2, {CS}')
a('s_waitcnt vmcnt(0)')
for k in range(8):
    a(f'v_add_u32 v8, {4*k}, v5')
    a('v_cmp_lt_u32 vcc, v8, v6')
    a(f'v_cmp_eq_u32 s[58:59], s57, v{U+k}')
    a('s_and_b64 vcc, vcc, s[58:59]')
    a.nop(1)
    a(f'v_cndmask_b32 v{REC+k}, -1, v{REC+k}, vcc')
a('s_branch L_reinit')
a.label('L_main_end')
a('s_endpgm')
print('vgprs', NVG, 'lds', LDS_MAIN)

hdr = open('gather_scatter__mpnn_edge_mlp__graph.s.ref').read().split('; Override')[0]
hdr += f'; @launch kernel=pre_kernel grid=({PRE_WGS},1,1) block=(512,1,1) lds={LDS_PRE}\n'
hdr += f'; @launch kernel=main_kernel grid=(256,1,1) block=(512,1,1) lds={LDS_MAIN}\n'
hdr += '.amdgcn_target "amdgcn-amd-amdhsa--gfx950"\n.text\n'
def kd(name, vg):
    return f'''.amdhsa_kernel {name}
  .amdhsa_next_free_vgpr {vg}
  .amdhsa_next_free_sgpr 102
  .amdhsa_accum_offset {vg}
  .amdhsa_group_segment_fixed_size 0
  .amdhsa_kernarg_size 72
  .amdhsa_user_sgpr_count 2
  .amdhsa_user_sgpr_kernarg_segment_ptr 1
  .amdhsa_system_sgpr_workgroup_id_x 1
  .amdhsa_float_denorm_mode_32 3
.end_amdhsa_kernel
'''
tail = '.section .rodata,"a"\n.p2align 6\n' + kd('pre_kernel', 160) + '.p2align 6\n' + kd('main_kernel', 256)
open(OUTF, 'w').write(hdr + a.text() + tail)
for e in check(a.lines): print(e)
print('lines', len(a.lines))
```

```python
import sys, struct
from asmlib import *

STAMP = '--stamp' in sys.argv
OUTF = [a for a in sys.argv[1:] if not a.startswith('--')][0]

N, E = 12500, 400000
NPB = 49
NCH, CH = 125, 3200
WS_P = 4096
WS_CELLS = 0x400000
WS_FRAG = 0x800000
WS_OVFLEN = 0x900000
WS_OVFREC = 0x910000
WS_OVFBKT = 0xB00000
WS_STAMP = 0xD00000
WS_SIZE = 0x1000000
NEGLOG2E = struct.unpack('<I', struct.pack('<f', -1.4426950408889634))[0]
NEGLN2 = struct.unpack('<I', struct.pack('<f', -0.6931471805599453))[0]
PADV = 0x80000000
GR = int(([x.split('=')[1] for x in sys.argv if x.startswith('--gr=')] or [100])[0])
NGEMM = -(-N // GR)
PRE_WGS = NCH + NGEMM + 4

X = lambda f: ('--x-'+f) in sys.argv
opt = lambda n, d: int(([x.split('=')[1] for x in sys.argv if x.startswith('--'+n+'=')] or [d])[0])
LDS_PRE = 98304
a = Asm()
def srd(d, base, size):
    a(f's_mov_b32 s{d}, s{base}')
    a(f's_and_b32 s{d+1}, s{base+1}, 0xffff')
    a(f's_mov_b32 s{d+2}, {size:#x}')
    a(f's_mov_b32 s{d+3}, 0x20000')

PST = '--pstamp' in sys.argv
def ps(i):
    if PST: a(f's_memtime s[{70+2*i}:{71+2*i}]')
def pend():
    if PST:
        ps(4)
        a('s_waitcnt vmcnt(0) lgkmcnt(0)')
        ps(5)
        a('s_memrealtime s[84:85]')
        a('s_waitcnt lgkmcnt(0)')
        a('s_lshl_b32 s58, s2, 3')
        a('s_add_u32 s58, s58, s3')
        a('s_lshl_b32 s58, s58, 6')
        a(f's_add_u32 s58, s58, {0xD80000:#x}')
        a('v_mov_b32 v4, 0')
        a('s_mov_b64 exec, 1')
        for i in range(8):
            a(f'v_mov_b32 v6, s{70+2*i}')
            a(f'buffer_store_dword v6, v4, s[36:39], s58 offen offset:{4*i}')
        a('s_mov_b64 exec, -1')
a('.globl pre_kernel\n.p2align 8\n.type pre_kernel,@function')
a.label('pre_kernel')
a(f's_cmp_ge_u32 s2, {PRE_WGS}')
a('s_cbranch_scc1 L_pre_end')
ps(0)
if PST: a('s_memrealtime s[82:83]')
XS, SRC, DST, W, WS = 20, 24, 28, 32, 36
a(f's_load_dwordx2 s[{DST}:{DST+1}], s[0:1], 24')
a(f's_load_dwordx2 s[{XS}:{XS+1}], s[0:1], 0')
a(f's_load_dwordx2 s[{SRC}:{SRC+1}], s[0:1], 16')
a('s_load_dwordx4 s[12:15], s[0:1], 32')
a(f's_load_dwordx2 s[{WS}:{WS+1}], s[0:1], 64')
a('v_lshrrev_b32 v2, 6, v0')
a('v_and_b32 v3, 63, v0')
a('v_readfirstlane_b32 s3, v2')
a(f's_mov_b32 s{WS+2}, {WS_SIZE:#x}'); a(f's_mov_b32 s{WS+3}, 0x20000')
a(f's_cmp_ge_u32 s2, {NCH}')
a('s_cbranch_scc1 L_pre_gemm')
CS = 132
L_OVC = 256*CS
D0, S0, B4, RK, TK = 8, 16, 24, 32, 48
SC1 = '' if X('nosc1') else ' sc1'
a(f's_mul_i32 s40, s2, {CH*4}')
a('s_add_u32 s41, s40, 8192')
a('v_lshlrev_b32 v1, 4, v0')
for d in (SRC, DST): a(f's_mov_b32 s{d+2}, {E*4:#x}'); a(f's_mov_b32 s{d+3}, 0x20000')
a('v_mul_u32_u24 v4, 12, v0')
a('s_cmp_ge_u32 s3, 6')
a('s_waitcnt lgkmcnt(0)')
ps(1)
a(f'buffer_load_dwordx4 v[8:11], v1, s[{DST}:{DST+3}], s40 offen')
a('s_cbranch_scc1 L_p_no2')
a(f'buffer_load_dwordx3 v[12:14], v4, s[{DST}:{DST+3}], s41 offen')
a(f'buffer_load_dwordx3 v[20:22], v4, s[{SRC}:{SRC+3}], s41 offen')
a.label('L_p_no2')
a(f'buffer_load_dwordx4 v[16:19], v1, s[{SRC}:{SRC+3}], s40 offen')
a('v_min_u32 v40, 256, v0')
a('v_cmp_gt_u32 vcc, 256, v0')
a(f'v_mul_u32_u24 v40, {CS}, v40')
a('v_mov_b32 v42, 4')
a('v_mov_b32 v41, 0')
a('v_cndmask_b32 v43, v41, v42, vcc')
a('ds_write_b32 v40, v43')
for k in range(4, 7): a(f'v_mov_b32 v{RK+k}, 0')
a(f'v_lshlrev_b32 v{TK}, 16, v0')
a(f'v_add_u32 v{TK}, 0x4000000, v{TK}')
for k in range(1, 4): a(f'v_add_u32 v{TK+k}, {k<<14:#x}, v{TK}')
a(f'v_mul_u32_u24 v{TK+4}, {3<<14:#x}, v0')
a(f'v_add_u32 v{TK+4}, {0x4000000+(2048<<14):#x}, v{TK+4}')
for k in range(5, 7): a(f'v_add_u32 v{TK+k}, {(k-4)<<14:#x}, v{TK+4}')
a(f's_mov_b32 s46, {CS}')
a('v_lshrrev_b32 v44, 3, v0')
a('v_and_b32 v46, 7, v0')
a(f'v_mul_u32_u24 v45, {CS}, v44')
a('v_lshlrev_b32 v47, 14, v44')
a('v_lshl_add_u32 v47, v46, 4, v47')
a('v_and_b32 v60, 4, v0')
a('v_lshlrev_b32 v60, 4, v60')
a('v_and_b32 v46, 3, v0')
a('v_lshl_add_u32 v56, v46, 2, v45')
a('v_add_u32 v56, v56, v60')
for k in range(1, 4): a(f'v_add_u32 v{56+k}, {64*CS*k}, v56')
a(f's_lshl_b32 s47, s2, 7')
a(f's_add_u32 s47, s47, {WS_CELLS:#x}')
a('s_waitcnt lgkmcnt(0)')
a('s_barrier')
def part1(k):
    a(f'v_mul_u32_u24_sdwa v{B4+k}, s46, v{D0+k} dst_sel:DWORD dst_unused:UNUSED_PAD src0_sel:DWORD src1_sel:BYTE_0')
    a(f'v_lshlrev_b32_sdwa v{D0+k}, 26, v{D0+k} dst_sel:DWORD dst_unused:UNUSED_PAD src0_sel:DWORD src1_sel:BYTE_1')
    a(f'ds_add_rtn_u32 v{RK+k}, v{B4+k}, v42')
def part2(k):
    a(f'v_add3_u32 v{S0+k}, v{S0+k}, v{D0+k}, v{TK+k}')
def part3(k):
    a(f'v_min_u32 v44, 128, v{RK+k}')
    a(f'v_add_u32 v44, v44, v{B4+k}')
    a(f'ds_write_b32 v44, v{S0+k}')
a('s_cmp_ge_u32 s3, 6')
a('s_cbranch_scc1 L_p_short')
a('s_waitcnt vmcnt(3)')
ps(2)
for k in range(4): part1(k)
a('s_waitcnt vmcnt(2)')
for k in range(4, 7): part1(k)
a('s_waitcnt vmcnt(1)')
for k in range(4, 7): part2(k)
a('s_waitcnt lgkmcnt(0)')
for k in range(4, 7): part3(k)
a('s_branch L_p_join')
a.label('L_p_short')
if X('ptlb'):
    a('v_lshlrev_b32 v12, 16, v3')
    a(f'buffer_load_dword v13, v12, s[{WS}:{WS+3}], s47 offen')
a('s_waitcnt vmcnt(%d)' % (2 if X('ptlb') else 1))
ps(2)
for k in range(4): part1(k)
a('s_waitcnt lgkmcnt(0)')
a.label('L_p_join')
a('s_waitcnt vmcnt(0)')
for k in range(4): part2(k)
for k in range(4): part3(k)
a(f'v_max3_u32 v44, v{RK}, v{RK+1}, v{RK+2}')
a(f'v_max3_u32 v44, v44, v{RK+3}, v{RK+4}')
a(f'v_max3_u32 v44, v44, v{RK+5}, v{RK+6}')
a('v_cmp_lt_u32 vcc, 124, v44')
a('s_cbranch_vccz L_p_noovf')
a(f's_add_u32 s44, s40, {WS_OVFREC:#x}')
a(f's_add_u32 s45, s40, {WS_OVFBKT:#x}')
for k in range(7):
    a(f'v_cmp_lt_u32 vcc, 124, v{RK+k}')
    a('s_mov_b64 exec, vcc')
    a(f's_cbranch_execz L_p_ov{k}')
    a(f'ds_add_rtn_u32 v44, v41, v42 offset:{L_OVC}')
    a('s_waitcnt lgkmcnt(0)')
    a(f'buffer_store_dword v{S0+k}, v44, s[{WS}:{WS+3}], s44 offen')
    a(f'buffer_store_dword v{B4+k}, v44, s[{WS}:{WS+3}], s45 offen')
    a('s_waitcnt vmcnt(0)')
    a.label(f'L_p_ov{k}')
    a('s_mov_b64 exec, -1')
a.label('L_p_noovf')
a('s_waitcnt lgkmcnt(0)')
a('s_barrier')
ps(3)
for k in range(4):
    a(f'ds_read_b32 v{24+k}, v45 offset:{64*CS*k}')
    a(f'ds_read2_b32 v[{8+4*k}:{9+4*k}], v{56+k} offset0:0 offset1:4')
    a(f'ds_read2_b32 v[{10+4*k}:{11+4*k}], v{56+k} offset0:8 offset1:12')
a(f'ds_read_b32 v28, v41 offset:{L_OVC}')
for k in range(4):
    a(f's_waitcnt lgkmcnt({10-3*k})')
    if not X('fullcell'):
        a(f'v_cmp_lt_u32 vcc, v60, v{24+k}')
        a('s_mov_b64 exec, vcc')
    a(f'buffer_store_dwordx4 v[{8+4*k}:{11+4*k}], v47, s[{WS}:{WS+3}], s47 offen' + SC1)
    a('s_mov_b64 exec, -1')
    if k < 3: a('s_add_u32 s47, s47, 0x100000')
pend()
a('s_cmp_lg_u32 s3, 0')
a('s_cbranch_scc1 L_pre_end')
a('s_lshl_b32 s44, s2, 2')
a(f's_add_u32 s44, s44, {WS_OVFLEN:#x}')
a('s_mov_b64 exec, 1')
a('s_waitcnt lgkmcnt(0)')
a(f'buffer_store_dword v28, v41, s[{WS}:{WS+3}], s44 offen')
a('s_endpgm')

a.label('L_pre_gemm')
a(f's_sub_u32 s40, s2, {NCH}')
a(f's_sub_u32 s41, s40, {NGEMM}')
a('s_mov_b32 s42, 0')
a('s_cmp_eq_u32 s41, 0')
a('s_cselect_b32 s42, 0x8000, s42')
a('s_cmp_eq_u32 s41, 2')
a('s_cselect_b32 s42, 0x8000, s42')
a('s_cmp_eq_u32 s41, 3')
a('s_cselect_b32 s42, 0x10000, s42')
a('v_lshrrev_b32 v4, 4, v3')
a('v_and_b32 v5, 15, v3')
a('v_lshlrev_b32 v6, 2, v4')
a('v_xor_b32 v6, v6, v5')
a('v_lshlrev_b32 v6, 4, v6')
a('v_lshl_add_u32 v6, v4, 8, v6')
a('s_lshl_b32 s43, s3, 12')
a('s_add_u32 s42, s42, s43')
def wdma():
    a('s_mov_b32 m0, s43')
    a('s_nop 0')
    for i in range(4): a(f'buffer_load_dwordx4 v6, s[{W}:{W+3}], s42 offen offset:{1024*i} lds')
a('v_xor_b32 v8, v4, v5')
a('v_lshlrev_b32 v8, 4, v8')
a('v_lshl_add_u32 v28, v4, 8, v8')
for i in range(1, 4): a(f'v_xor_b32 v{28+i}, {64*i}, v28')
a('s_add_u32 s44, s43, 32768')
a('s_mov_b32 m0, s44')
a(f's_mul_i32 s45, s40, {GR*256}')
a(f's_add_u32 s50, s45, {GR*256}')
a(f's_min_u32 s{XS+2}, s50, {N*256:#x}')
a(f's_mov_b32 s{XS+3}, 0x20000')
a(f's_mov_b32 s{W+3}, 0x20000')
a('s_add_u32 s44, s45, s43')
a('s_lshr_b32 s51, s2, 3')
a('s_and_b32 s51, s51, 7')
a('s_lshl_b32 s51, s51, 12')
a('v_lshlrev_b32 v9, 7, v3')
a(f's_add_u32 s54, s50, {WS_P}'); a(f's_mov_b32 s55, 0x20000')
a('s_sub_u32 s48, s41, 1')
a('s_cmp_lt_u32 s48, 2')
a(f's_mov_b32 s48, {272*256:#x}')
a(f's_cselect_b32 s{W+2}, 0x10000, s48')
a('s_waitcnt lgkmcnt(0)')
ps(1)
for i in range(4): a(f'buffer_load_dwordx4 v{28+i}, s[{XS}:{XS+3}], s44 offen offset:{1024*i} lds')
a(f's_cselect_b32 s{W}, s14, s12')
a(f's_cselect_b32 s{W+1}, s15, s13')
a(f's_mov_b32 s52, s{WS}'); a(f's_mov_b32 s53, s{WS+1}')
a('s_cmp_lg_u32 s3, 7')
a('s_cbranch_scc1 L_g_not')
a('s_mov_b64 exec, 0xffffffff')
a(f'buffer_load_dword v159, v9, s[{W}:{W+3}], s51 offen')
if X('ptlb'):
    a('s_mov_b64 exec, 1')
    a(f'buffer_load_dword v159, v9, s[{WS}:{WS+3}], s54 offen')
a('s_mov_b64 exec, -1')
a('s_waitcnt vmcnt(%d)' % (1 if X('ptlb') else 0)) if not X('w7now') else None
a.label('L_g_not')
a('s_and_b32 s46, s3, 3')
a('s_lshr_b32 s47, s3, 2')
a('s_lshl_b32 s49, s47, 1')
a(f's_cmp_lt_u32 s40, {NGEMM}')
a('s_cselect_b32 s49, s49, s46')
a('v_lshrrev_b32 v10, 5, v3')
a('v_and_b32 v11, 1, v4')
a('v_bfe_u32 v12, v3, 2, 2')
a('v_and_b32 v13, 1, v3')
a('v_bfe_u32 v14, v3, 1, 1')
a('v_lshl_add_u32 v15, v13, 1, v11')
a('v_lshl_add_u32 v16, v11, 1, v14')
a('s_cmp_eq_u32 s41, 3')
a('s_cselect_b64 vcc, -1, 0')
a('v_cndmask_b32 v15, v15, v16, vcc')
a('v_cndmask_b32 v16, v14, v13, vcc')
a('v_xor_b32 v17, s49, v12')
a('v_lshl_add_u32 v15, v17, 2, v15')
a('v_lshlrev_b32 v15, 4, v15')
a('v_lshl_add_u32 v15, v16, 3, v15')
a('v_lshl_add_u32 v17, v10, 3, v12')
a('v_lshl_add_u32 v15, v17, 8, v15')
a('v_and_b32 v18, 31, v3')
WF, XF, ACC = 32, 96, 128
a(f's_cmp_lt_u32 s40, {NGEMM}')
a('s_cbranch_scc1 L_g_go')
wdma()
a('s_waitcnt vmcnt(0)')
a('s_barrier')
a('s_branch L_g_frag')
a.label('L_g_go')
a('v_xor_b32 v16, 64, v15')
a('s_lshl_b32 s48, s46, 5')
a('v_add_u32 v19, s48, v18')
a('v_and_b32 v20, 15, v18')
a('v_xor_b32 v20, v20, v10')
a('v_lshlrev_b32 v20, 4, v20')
a('v_lshl_add_u32 v20, v19, 8, v20')
a('v_and_b32 v21, 7, v18')
a('v_lshlrev_b32 v22, 1, v10')
a('v_xor_b32 v21, v21, v22')
a('v_lshlrev_b32 v21, 4, v21')
a('v_lshl_add_u32 v21, v18, 7, v21')
a('s_add_u32 s48, s43, 65536')
a('v_add_u32 v21, s48, v21')
a('v_lshrrev_b32 v24, 3, v3')
a('v_and_b32 v25, 7, v3')
a('v_xor_b32 v22, v24, v25')
a('v_lshlrev_b32 v22, 4, v22')
a('v_lshl_add_u32 v22, v24, 7, v22')
a('v_add_u32 v22, s48, v22')
a('v_lshlrev_b32 v23, 4, v25')
a('v_lshl_add_u32 v23, v24, 8, v23')
a('s_lshl_b32 s48, s46, 13')
a('s_add_u32 s48, s48, s45')
a('s_lshl_b32 s49, s47, 7')
a('s_add_u32 s48, s48, s49')
a(f's_add_u32 s48, s48, {WS_P}')
a('s_add_u32 s49, s48, 4096')
def trr(s):
    for b in range(2):
        for u in range(2):
            a(f'ds_read_b64_tr_b16 v[{WF+32*b+4*s+2*u}:{WF+32*b+4*s+2*u+1}], v{15+b} offset:{4096*s+1024*u}')
def xrd():
    for s in range(8):
        if s: a(f'v_xor_b32 v24, {32*s}, v20')
        a(f'ds_read_b128 v[{XF+4*s}:{XF+4*s+3}], v{24 if s else 20} offset:32768')
def mm(s, b):
    c = '0' if s == 0 else f'v[{ACC+16*b}:{ACC+16*b+15}]'
    a(f'v_mfma_f32_32x32x16_bf16 v[{ACC+16*b}:{ACC+16*b+15}], v[{WF+32*b+4*s}:{WF+32*b+4*s+3}], v[{XF+4*s}:{XF+4*s+3}], {c}')
def tr1(s, b):
    for u in range(2):
        a(f'ds_read_b64_tr_b16 v[{WF+32*b+4*s+2*u}:{WF+32*b+4*s+2*u+1}], v{15+b} offset:{4096*s+1024*u}')
a('v_xor_b32 v27, 16, v21')
a('v_xor_b32 v25, 64, v21')
a('v_xor_b32 v26, 80, v21')
a('s_waitcnt vmcnt(%d)' % opt('wd', 3))
wdma()
a('s_waitcnt vmcnt(4)')
a('s_barrier')
xrd()
a('s_waitcnt vmcnt(0) lgkmcnt(0)')
ps(2)
a('s_barrier')
ps(3)
if PST: a('s_waitcnt lgkmcnt(0)')
seq = [(s, 0) for s in range(8)] + [(s, 1) for s in range(8)]
AH = 6
for t in range(AH): tr1(*seq[t])
def epi(b):
    o = [f'v_mul_f32 v{ACC+16*b+r}, {NEGLOG2E:#x}, v{ACC+16*b+r}' for r in range(16)]
    o += [f'v_cvt_pk_bf16_f32 v{ACC+16*b+r}, v{ACC+16*b+2*r}, v{ACC+16*b+2*r+1}' for r in range(8)]
    return o
def wr(b):
    a(f'ds_write_b128 v{25 if b else 21}, v[{ACC+16*b}:{ACC+16*b+3}]')
    a(f'ds_write_b128 v{26 if b else 27}, v[{ACC+16*b+4}:{ACC+16*b+7}]')
e0 = epi(0)
for t in range(16):
    a(f's_waitcnt lgkmcnt({2*min(AH-1, 15-t)})')
    mm(*seq[t])
    if t + AH < 16: tr1(*seq[t+AH])
    if t == 10: a.nop(4)
    if t >= 10:
        for l in e0[4*(t-10):4*(t-9)]: a(l)
wr(0)
a.nop(6)
for l in epi(1): a(l)
wr(1)
for i in range(4): a(f'ds_read_b128 v[{XF+4*i}:{XF+4*i+3}], v22 offset:{1024*i}')
for i in range(4):
    a(f's_waitcnt lgkmcnt({3-i})')
    a(f'buffer_store_dwordx4 v[{XF+4*i}:{XF+4*i+3}], v23, s[52:55], s{48+(i>>1)} offen offset:{2048*(i&1)}' + ('' if X('pnosc1') else ' sc1'))
pend()
a('s_endpgm')
a.label('L_g_frag')
a('v_lshlrev_b32 v22, 4, v3')
a('s_cmp_eq_u32 s41, 3')
a('s_cbranch_scc1 L_g_w3')
a('s_lshl_b32 s48, s3, 1')
a('v_add_u32 v15, s48, v14')
a('s_cmp_eq_u32 s41, 2')
a('s_cbranch_scc1 L_g_wu2')
a('v_lshlrev_b32 v16, 2, v12')
a('v_xor_b32 v16, v16, v15')
a('v_lshlrev_b32 v16, 4, v16')
a('v_lshl_add_u32 v16, v13, 3, v16')
a('v_lshl_add_u32 v17, v4, 3, v12')
a('v_lshl_add_u32 v16, v17, 8, v16')
for s in range(4):
    for u in range(2): a(f'ds_read_b64_tr_b16 v[{WF+4*s+2*u}:{WF+4*s+2*u+1}], v16 offset:{8192*s+1024*u}')
a('s_branch L_g_fst')
a.label('L_g_wu2')
a('v_lshlrev_b32 v16, 2, v4')
a('v_xor_b32 v16, v16, v15')
a('v_lshlrev_b32 v16, 4, v16')
a('v_lshl_add_u32 v16, v13, 3, v16')
a('v_lshl_add_u32 v17, v12, 5, v4')
a('v_lshl_add_u32 v16, v17, 8, v16')
for u in range(2):
    for s in range(4): a(f'ds_read_b64_tr_b16 v[{WF+4*s+2*u}:{WF+4*s+2*u+1}], v16 offset:{1024*s+4096*u}')
a.label('L_g_fst')
a('s_lshl_b32 s48, s41, 15')
a('s_lshl_b32 s49, s3, 12')
a('s_add_u32 s48, s48, s49')
a(f's_add_u32 s48, s48, {WS_FRAG:#x}')
a('s_waitcnt lgkmcnt(0)')
for s in range(4): a(f'buffer_store_dwordx4 v[{WF+4*s}:{WF+4*s+3}], v22, s[{WS}:{WS+3}], s48 offen offset:{1024*s}')
a('s_endpgm')
a.label('L_g_w3')
a('s_cmp_lg_u32 s47, 0')
a('s_cbranch_scc1 L_pre_end')
for u in range(2): a(f'ds_read_b64_tr_b16 v[{WF+2*u}:{WF+2*u+1}], v15 offset:{1024*u}')
a('s_lshl_b32 s48, s46, 10')
a(f's_add_u32 s48, s48, {WS_FRAG+3*32768:#x}')
a('s_waitcnt lgkmcnt(0)')
for r in range(4):
    a(f'v_lshlrev_b32 v40, 16, v{WF+r}')
    a(f'v_and_b32 v41, 0xffff0000, v{WF+r}')
    a(f'v_mul_f32 v40, {NEGLOG2E:#x}, v40')
    a(f'v_mul_f32 v41, {NEGLOG2E:#x}, v41')
    a(f'v_cvt_pk_bf16_f32 v{WF+r}, v40, v41')
a(f'buffer_store_dwordx4 v[{WF}:{WF+3}], v22, s[{WS}:{WS+3}], s48 offen')
a.label('L_pre_end')
a('s_endpgm')

BENCH = '--bench' in sys.argv
RSTR = 272
L_PT = 0
L_EO = 54*256
L_QS = 108*256
QSTR = 13*256
L_QT = L_QS + QSTR; L_QW = L_QT + QSTR; L_QK = L_QW + QSTR
L_HIST = L_QK + QSTR
L_MISC = L_HIST + 256
L_ZERO = L_MISC + 64
L_HEAD = L_ZERO + 512
L_CARRY = L_HEAD + 8192
L_XI = L_HEAD
L_NODE = L_CARRY + 15*512
NSTR = 784
L_STG = (L_NODE + 50*NSTR + 255) // 256 * 256
assert L_XI % 64 == 0
HB = 4096
LDS_MAIN = L_STG + 16*HB
assert LDS_MAIN <= 163840 and L_NODE % 16 == 0 and L_EO + 50*RSTR <= L_QS

class RA_:
    def __init__(s, st): s.n = st
    def __call__(s, k=1, al=1):
        s.n = (s.n + al - 1)//al*al; r = s.n; s.n += k; return r
al = RA_(16)
ZB = [al(16), al(16)]; U = al(16); PA = [al(16), al(16)]
NF = al(4); D = al(4); RC = al(4); MB = al(16); KK = al(4); AA = al(4); DA = al(4); PTr = al(4)
EC = al(4); EN = al(4); QB = [al(2), al(2)]; TM = al(2); TC = al(2)
I0 = al(4); I1 = al(4); LC1 = I0; W3 = al(16); R = al(16); WU2 = al(16); REC = al(8)
G = al(2); RA = al(2); TA = al(); TAr = al(); SP = al(); SE = al(); EOr = al(); EV = al(); MK = al(); CB = al()
vQA = al(); vQ1 = al(); vQP = al(); vQE = al()
LC = al(); CA = al(); CT = al(); H16 = al(); I4 = al(); CIr = al(2)
NVG = al.n
Uq = lambda q, s_: U + 8*(q>>1) + 2*((s_+3)&3) + (1-(q&1))
RCq = lambda q: RC + (q^1)
assert U % 2 == 0 and D % 2 == 0 and NF % 2 == 0 and RC % 2 == 0
assert NVG <= 256
LANE, MM, HH = 1, 2, 3
XF = 16
W2F = 80
WU1F = 96
QACC = 112
HA, RK, PV, EVv = AA, WU2+8, AA+8, WU2
assert AA == 128 and TC >= AA+24
vW, vXF, vQW, cP1, cP2, cP3, cP4, vTCH, vPF = 243, 244, 248, 249, 252, 253, 254, 251, 255
sQM = 100
PS, WSd, Ed, Xd, Od = 8, 12, 16, 20, 24
sW, sNODE0, sT, sTC, sSAFE, sMORE, sFIRST, sBML, sM0A, sM0B, sNZ = 28, 29, 30, 31, 32, 33, 34, 35, 36, 37, 38
XM = 40
SO = 92
BM = 60
sSLOW, sN, sPASS = 64, 65, 66
nstamp = [0]
def stamp():
    if STAMP and nstamp[0] < 11:
        a(f's_memtime s[{70+2*nstamp[0]}:{71+2*nstamp[0]}]'); nstamp[0] += 1
FINE = opt('fine', 0)
def st(level):
    if FINE == level: stamp()

a('.globl main_kernel\n.p2align 8\n.type main_kernel,@function')
a.label('main_kernel')
a('s_cmp_ge_u32 s2, 256')
a('s_cbranch_scc1 L_main_end')
stamp()
if STAMP and FINE == 0: a('s_memrealtime s[86:87]')
for d_, o_ in ((WSd, 64), (Xd, 0), (PS, 64), (Ed, 8), (Od, 48)): a(f's_load_dwordx2 s[{d_}:{d_+1}], s[0:1], {o_}')
a(f'v_lshrrev_b32 v4, 6, v0')
a(f'v_and_b32 v{LANE}, 63, v0')
a(f'v_readfirstlane_b32 s{sW}, v4')
a(f'v_and_b32 v{MM}, 31, v0')
a(f'v_bfe_u32 v{HH}, v0, 5, 1')
a(f's_lshl_b32 s{sNODE0}, s2, 8')
a(f's_mov_b32 s{sSAFE}, 0')
a(f's_mov_b32 s{sFIRST}, 1')
a(f's_mul_i32 s{sM0A}, s{sW}, {2*HB}')
a(f's_add_u32 s{sM0A}, s{sM0A}, {L_STG}')
a(f's_add_u32 s{sM0B}, s{sM0A}, {HB}')
for i in range(8): a(f's_mov_b32 s{SO+i}, {WS_P-1024*(i&3)+128*(i>>2)}')
a(f'v_lshrrev_b32 v4, 4, v{LANE}')
a(f'v_and_b32 v5, 15, v{LANE}')
a(f's_lshl_b32 s58, s{sW}, 3')
a('v_add_u32 v6, s58, v4')
a('v_and_b32 v7, 15, v6')
a('v_xor_b32 v7, v7, v5')
a('v_lshlrev_b32 v7, 4, v7')
a('v_lshl_add_u32 v16, v6, 16, v7')
a('v_xor_b32 v17, 64, v16')
a(f'v_add_u32 v17, {4*65536-1024}, v17')
a('v_cmp_gt_u32 s[68:69], 49, v6')
a(f's_lshl_b32 s58, s{sW}, 11')
a(f's_add_u32 s58, s58, {L_XI}')
a('s_mov_b32 m0, s58')
a(f's_mov_b32 s{WSd+2}, {WS_SIZE:#x}'); a(f's_mov_b32 s{WSd+3}, 0x20000')
a(f's_mov_b32 s{Xd+2}, {N*256:#x}'); a(f's_mov_b32 s{Xd+3}, 0x20000')
a(f's_mov_b32 s{PS+2}, 0'); a(f's_mov_b32 s{PS+3}, 0x20000')
a(f's_mov_b32 s{Ed+2}, 0'); a(f's_mov_b32 s{Ed+3}, 0x20000')
a(f's_mov_b32 s{Od+2}, {N*256:#x}'); a(f's_mov_b32 s{Od+3}, 0x20000')
def celladdr():
    a(f'v_mov_b32 v{REC}, 0')
    a('v_and_b32 v9, 3, v0')
    a('v_lshlrev_b32 v5, 5, v0')
    a('v_lshlrev_b32 v9, 4, v9')
    a('v_sub_u32 v5, v5, v9')
    a('s_lshl_b32 s58, s2, 14')
    a(f's_add_u32 s58, s58, {WS_CELLS:#x}')
    a('v_cmp_gt_u32 vcc, 500, v0')
    a('s_mov_b64 exec, vcc')
celladdr()
a('s_waitcnt lgkmcnt(0)')
st(1)
a.label('L_cells')
a(f'buffer_load_dwordx4 v[{REC}:{REC+3}], v5, s[{WSd}:{WSd+3}], s58 offen')
a(f'buffer_load_dwordx4 v[{REC+4}:{REC+7}], v5, s[{WSd}:{WSd+3}], s58 offen offset:64')
a('s_mov_b64 exec, -1')
a(f's_mov_b32 s{sBML}, 0')
a(f's_cmp_eq_u32 s{sFIRST}, 0')
a('s_cbranch_scc1 L_skipfirst')
W3L = not X('w3g')
def xblk():
    a(f's_cmp_lt_u32 s{sW}, 6')
    a('s_cbranch_scc0 L_x67')
    a(f'buffer_load_dwordx4 v16, s[{Xd}:{Xd+3}], s{sNODE0} offen lds')
    a(f'buffer_load_dwordx4 v17, s[{Xd}:{Xd+3}], s{sNODE0} offen offset:1024 lds')
    a('s_branch L_xd')
    a.label('L_x67')
    a('s_lshr_b32 s58, s2, 3')
    a('s_mul_i32 s58, s58, 3200')
    a(f's_add_u32 s58, s58, {WS_FRAG:#x}')
    a(f'v_lshlrev_b32 v9, 7, v{LANE}')
    a(f's_cmp_eq_u32 s{sW}, 6')
    a('s_cbranch_scc0 L_x7')
    a('s_mov_b64 exec, s[68:69]')
    a(f'buffer_load_dwordx4 v16, s[{Xd}:{Xd+3}], s{sNODE0} offen lds')
    a('s_mov_b64 exec, 0x1ffffff')
    a(f'buffer_load_dword v251, v9, s[{WSd}:{WSd+3}], s58 offen')
    a('s_branch L_x8')
    a.label('L_x7')
    a(f's_mov_b32 s{Ed+2}, {E*32 if X("tlb") else 0:#x}')
    a(f'v_lshlrev_b32 v9, 18, v{LANE}')
    a(f'buffer_load_dword v251, v9, s[{Ed}:{Ed+3}], 0 offen')
    a('s_mov_b64 exec, %s' % ('0x1fff' if X('tlb') else '1'))
    a(f'buffer_load_dword v251, v9, s[{WSd}:{WSd+3}], 0 offen')
    a.label('L_x8')
    a('s_mov_b64 exec, -1')
    a.label('L_xd')
    if W3L:
        a(f's_lshl_b32 s58, s{sW}, 9')
        a(f's_add_u32 s59, s58, {L_STG+HB}')
        a('s_mov_b32 m0, s59')
        a(f's_add_u32 s58, s58, {WS_FRAG+3*32768:#x}')
        a(f'v_lshlrev_b32 v{vW}, 4, v{LANE}')
        a('s_mov_b64 exec, 0xffffffff')
        a(f'buffer_load_dwordx4 v{vW}, s[{WSd}:{WSd+3}], s58 offen lds')
        a('s_mov_b64 exec, -1')
    st(1)
XL = opt('xl', 2)
if XL == 0: xblk()
a(f'v_bfe_u32 v{cP3}, v{MM}, 2, 1')
a(f'v_lshrrev_b32 v{cP4}, 1, v{MM}')
a(f'v_and_b32 v{cP4}, 12, v{cP4}')
cP2 = cP4
a(f'v_and_b32 v6, 3, v{MM}')
a(f'v_lshlrev_b32 v{I4}, 2, v6')
a(f'v_lshlrev_b32 v{H16}, 4, v{HH}')
a(f'v_lshlrev_b32 v{vW}, 4, v{LANE}')
a(f'v_lshlrev_b32 v{vPF}, 7, v{LANE}')
def onehot4(dst, vj):
    return [f'v_cmp_gt_u32 vcc, 4, v{vj}', f'v_lshlrev_b32 v9, 4, v{vj}', f'v_mov_b32 v{dst+1}, 0',
            f'v_cndmask_b32 v{dst}, 0, v8, vcc', f'v_lshlrev_b64 v[{dst}:{dst+1}], v9, v[{dst}:{dst+1}]']
CA2, vF = I0+1, I0+2
late_c = [f'v_bfe_u32 v4, v{LANE}, 3, 1', 'v_mul_u32_u24 v4, 1088, v4', f'v_lshl_add_u32 v4, v{HH}, 9, v4', f'v_add3_u32 v4, v4, v{CT}, s{sM0A}',
          f'v_and_b32 v9, 4, v{LANE}', 'v_cmp_ne_u32 vcc, 0, v9', f'v_subrev_u32 v4, {L_NODE+512}, v4', f'v_mov_b32 v9, {0x30080:#x}',
          f'v_cndmask_b32 v{RA}, v9, v4, vcc', f'v_xor_b32 v{RA+1}, 64, v{RA}', f'v_or_b32 v{CA2}, 0x80000000, v{CA}',
          'v_mov_b32 v8, 0x3f80', f'v_sub_u32 v4, v{cP3}, v{HH}', f'v_lshrrev_b32 v9, 3, v{MM}', 'v_lshl_add_u32 v4, v4, 2, v9'] + onehot4(TC, 4)
if XL == 2: xblk()
a.label('L_skipfirst')
a(f's_mov_b32 s{sPASS}, 0')
st(1)
a('v_lshrrev_b32 v4, 2, v0')
a(f'v_mul_u32_u24 v{CB}, {CH*32}, v4')
a(f'v_mov_b32 v{G}, -1')
a(f'v_mov_b32 v{G+1}, -1')
a(f's_mov_b32 s{sNZ}, {(L_HEAD-L_QS)//16-512}')
a.label('L_reinit')
for i in range(4): a(f'v_mov_b32 v{12+i}, 0')
a('v_lshlrev_b32 v4, 4, v0')
a(f'ds_write_b128 v4, v[12:15] offset:{L_QS}')
a(f'v_cmp_gt_u32 vcc, s{sNZ}, v0')
for i in range(4): a(f'v_bfrev_b32 v{48+i}, 1')
a('s_mov_b64 exec, vcc')
a(f'ds_write_b128 v4, v[12:15] offset:{L_QS+8192}')
a('s_mov_b64 exec, -1')
a(f'v_cmp_gt_u32 vcc, {L_QS//16-1536}, v0')
for k in range(3): a(f'ds_write_b128 v4, v[48:51] offset:{8192*k}')
a('s_mov_b64 exec, vcc')
a(f'ds_write_b128 v4, v[48:51] offset:{8192*3}')
a('s_mov_b64 exec, -1')
if XL == 1:
    a(f's_cmp_eq_u32 s{sFIRST}, 0')
    a('s_cbranch_scc1 L_nox')
    xblk()
    a('s_branch L_nox2')
    a.label('L_nox')
    a('s_waitcnt vmcnt(0)')
    a.label('L_nox2')
else:
    a(f's_cmp_eq_u32 s{sFIRST}, 0')
    a('s_cbranch_scc0 L_nox2')
    a('s_waitcnt vmcnt(0)')
    a.label('L_nox2')
a(f's_mov_b32 s{sNZ}, {(L_MISC-L_QS)//16-512}')
a('v_mov_b32 v11, 4')
a(f's_lshl_b32 s56, s{sW}, 12')
a(f's_add_u32 s56, s56, {WS_FRAG:#x}')
a('s_add_u32 s4, s56, 0x8000')
if any('p' in x for x in sys.argv if x.startswith('--sched=')):
    a('s_lshr_b32 s6, s2, 3')
    a(f's_mul_i32 s6, s6, {784*128}')
    a(f's_mul_i32 s7, s{sW}, {98*128}')
    a('s_add_u32 s6, s6, s7')
    a(f's_add_u32 s6, s6, {WS_P}')
a('s_movk_i32 s39, 0xfc')
a(f's_movk_i32 s57, {RSTR//4}')
vHD, vHW, vHK, cH1 = 15, TAr, EOr, CIr
a(f's_lshl_b32 s5, s{sW}, 1')
a('s_add_u32 s5, s5, 1')
a(f'v_add_u32 v4, s5, v{HH}')
a(f'v_mul_u32_u24 v5, {RSTR}, v4')
a(f'v_lshl_add_u32 v{SP}, v{cP2}, 2, v5')
a(f'v_add_u32 v4, s5, v{cP3}')
a(f'v_mul_u32_u24 v4, {RSTR}, v4')
a(f'v_lshl_add_u32 v4, v{cP4}, 2, v4')
a(f'v_add_u32 v{SE}, v4, v{I4}')
mid = [f'v_and_b32 v4, 7, v{LANE}', f'v_lshlrev_b32 v{LC}, 4, v4', f'v_xor_b32 v{LC1}, 64, v{LC}',
  f'v_subrev_u32 v4, 1, v{LANE}', 'v_cmp_gt_u32 vcc, 16, v4', f'v_mul_u32_u24 v8, {NSTR}, v{LANE}', f'v_mul_u32_u24 v12, {RSTR}, v{LANE}',
  f'v_cndmask_b32 v{vHD}, 0, 16, vcc', f'v_lshl_add_u32 v12, v{vHD}, 2, v12',
  f's_or_b32 s{sSLOW}, s{sSAFE}, s{sPASS}', 's_cselect_b32 s67, 0, -1', 's_cselect_b32 s59, -1, 0', 's_cselect_b32 s3, 1, 4',
  f'v_or_b32 v{vF}, 0x80000000, v8', f'v_and_b32 v9, s59, v{vF}', f'v_lshrrev_b32 v{cH1}, 2, v{LANE}',
  f'v_cmp_eq_u32 vcc, 12, v{I4}', f'v_lshlrev_b32 v4, 9, v{cH1}', f'v_add_u32 v4, {(L_HEAD-L_NODE+0x80000000):#x}, v4', 'v_cndmask_b32 v4, 0, v4, vcc',
  f'v_mul_u32_u24 v6, {NSTR}, v{cH1}', f'v_add_u32 v6, {NSTR+0x80000000:#x}, v6', f'v_cmp_ne_u32 vcc, 0, v{I4}', f'v_bfi_b32 v{vHW}, s59, v6, v4',
  'v_mov_b32 v4, s67', f'v_cndmask_b32 v{vHK}, 0, v4, vcc']
mid2 = [f'v_lshlrev_b32 v{CA}, 4, v{MM}', f'v_add_u32 v{CA}, {L_NODE}, v{CA}', f'v_and_b32 v5, 16, v{LANE}', f'v_add_u32 v5, v5, v{I4}',
  f'v_lshlrev_b32 v5, 1, v5', f'v_add_u32 v{CT}, {L_NODE+512}, v5', f'v_add_u32 v4, s5, v{HH}', f'v_mul_u32_u24 v4, {NSTR}, v4', f'v_add_u32 v{TA}, v4, v{CT}',
  f'v_and_b32 v4, 15, v{LANE}', f'v_mul_u32_u24 v4, {NSTR}, v4', 'v_lshrrev_b32 v5, 4, v0', 'v_lshl_add_u32 v4, v5, 3, v4', f'v_add_u32 v{vQW}, {L_NODE+NSTR+512}, v4',
  f'v_and_b32 v{cP1}, 12, v{LANE}'] + [f'v_mov_b32 v{EN+i}, 0' for i in range(4)] + \
  ['v_lshrrev_b32 v4, 5, v0', f'v_mul_u32_u24 v4, {NSTR}, v4', f'v_add_u32 v4, v4, v{CA}', f'v_mul_u32_u24 v5, 320, v{HH}', 'v_sub_u32 v5, v4, v5', f'v_min_u32 v6, {49*NSTR}, v8',
   '\n'.join(['s_not_b64 exec, s[0:1]'] + [f'ds_write_b128 v4, v[{EN}:{EN+3}] offset:{NSTR*(16*k+2)}' for k in range(3)] +
             [f's_cmp_eq_u32 s{sW}, 0', 's_cselect_b64 exec, exec, 0', f'ds_write_b128 v5, v[{EN}:{EN+3}] offset:320', f'ds_write_b32 v6, v{EN} offset:{L_NODE+768}', 's_mov_b64 exec, -1'])]
a(f's_mov_b32 s{PS+2}, {0 if "--nop" in sys.argv else WS_P+N*256:#x}')
a(f's_mov_b32 s{Ed+2}, {0 if "--noe" in sys.argv else E*32:#x}')
def dma(half):
    return [f'buffer_load_dwordx4 v{DA+i}, s[{PS}:{PS+3}], s{SO+4*half+i} offen offset:{1024*i} lds' for i in range(4)]
def eload(dst): return f'buffer_load_dwordx4 v[{dst}:{dst+3}], v{EV}, s[{Ed}:{Ed+3}], 0 offen' + (' nt' if X('ent') else '')
hq = dma(0)
a(f'v_lshlrev_b32 v14, 2, v{LANE}')
a(f's_cmp_lg_u32 s{sFIRST}, 0')
a(f's_cselect_b64 s[{sQM}:{sQM+1}], -1, 0')
def fragl(dst, so, s): return f'buffer_load_dwordx4 v[{dst+4*s}:{dst+4*s+3}], v{vW}, s[{WSd}:{WSd+3}], s{so} offen offset:{1024*s}'
vm = ['c0', 'c1', 'x', 'x'] + (['x'] if W3L else [])
wq = [('W2', fragl(W2F, 56, s)) for s in range(4)] + [('WU1', fragl(WU1F, 4, s)) for s in range(4)] + ([] if W3L else [('W3', fragl(W3, 5, s)) for s in range(4)])
sched = ([x.split('=')[1] for x in sys.argv if x.startswith('--sched=')] or ['wwww,,,ww,ww,,h,h,h,h,' + ('' if W3L else 'wwww')])[0].split(',')
def slot(i, out=None):
    o = []
    sp = sched[i] if i < len(sched) else ''
    import re as _re
    for t in _re.findall(r'w|h|e|p\d+', sp):
        if t == 'w':
            tag, l = wq.pop(0); vm.append(tag); o.append(l)
        elif t == 'e':
            o.append(eload(EC)); vm.append('e')
        elif t == 'h':
            o.append(hq.pop(0)); vm.append('h0')
        else:
            nl = int(t[1:])
            o += [f's_bfm_b64 exec, {nl}, 0'] if nl < 64 else []
            o += [f'buffer_load_dword v{vTCH}, v{vPF}, s[{WSd}:{WSd+3}], s6 offen', 's_mov_b64 exec, -1', f's_addk_i32 s6, {nl*128}']
            vm.append('p')
    if out is not None: out += ['\n'.join(o)] if o else []
    else:
        for l in o: a(l)
def vwait(tag):
    idx = max(i for i, t in enumerate(vm) if t == tag)
    return f's_waitcnt vmcnt({len(vm)-1-idx})'
a('s_mov_b64 s[68:69], 0')
a('s_movk_i32 s3, 80')
a('s_movk_i32 s67, 96')
a('s_movk_i32 s7, 112')
a(f's_or_b32 s58, s{sBML}, s{sPASS}')
a('s_cselect_b64 s[0:1], -1, 0')
a('s_mov_b32 s58, 0x11111111')
a('s_mov_b32 s59, 0x11111111')
a('s_waitcnt lgkmcnt(0)')
st(1)
a('s_barrier')
slot(0)
st(0); st(1)
a('s_cmp_lg_u32 s0, 0')
a('s_cbranch_scc1 L_gen')
a(vwait('c0'))
st(1); st(2)
a(f'v_sub_u32_dpp v4, v{REC}, v{I4} quad_perm:[0,0,0,0] row_mask:0xf bank_mask:0xf')
a(f'v_cmp_lt_u32 vcc, 128, v{REC}')
for k in range(8): a(f'v_cmp_lt_i32 s[{XM+2*k}:{XM+2*k+1}], {[0,16,32,48,64,"s3","s67","s7"][k]}, v4')
a('s_and_b64 s[68:69], vcc, s[58:59]')
a(f's_andn2_b64 s[{XM}:{XM+1}], s[{XM}:{XM+1}], s[58:59]')
a.label('L_nohdr')
def dec(k):
    a(f'v_lshlrev_b32 v{PV+k}, 8, v{REC+k}')
    a(f'v_bfe_u32 v{EVv+k}, v{REC+k}, 14, 12')
    a(f'v_and_b32 v{PV+k}, 0x3fff00, v{PV+k}')
    a(f'v_lshl_add_u32 v{EVv+k}, v{EVv+k}, 5, v{CB}')
def hadr(k): a(f'v_and_b32_sdwa v{HA+k}, s39, v{REC+k} dst_sel:DWORD dst_unused:UNUSED_PAD src0_sel:DWORD src1_sel:BYTE_3')
for k in range(4): hadr(k)
slot(1)
for k in range(4):
    a(f's_mov_b64 exec, s[{XM+2*k}:{XM+2*k+1}]')
    a(f'ds_add_rtn_u32 v{RK+k}, v{HA+k}, v11 offset:{L_HIST}')
a(vwait('c1'))
for k in range(4, 8):
    a(f's_or_b64 s[58:59], s[{XM+2*k}:{XM+2*k+1}], s[0:1]')
    a('s_cbranch_scc0 L_h7')
    a(f's_mov_b64 exec, s[{XM+2*k}:{XM+2*k+1}]')
    hadr(k)
    a(f'ds_add_rtn_u32 v{RK+k}, v{HA+k}, v11 offset:{L_HIST}')
    dec(k)
    a.label('L_h%d' % k)
a('s_mov_b64 exec, s[68:69]')
a('s_cbranch_execz L_noovf')
a('v_lshrrev_b32 v4, 2, v0')
a('v_lshrrev_b32 v5, 5, v4')
a('v_lshlrev_b32 v5, 2, v5')
a('v_lshlrev_b32 v4, v4, 1')
a(f'ds_or_b32 v5, v4 offset:{L_MISC}')
a.label('L_noovf')
a('s_mov_b64 exec, -1')
slot(2)
for k in range(4): dec(k)
ET = opt('et', 0)
HB4 = AA + 16
if ET:
    for k in range(4): a(f'v_subrev_u32 v{HB4+k}, 4, v{HA+k}')
a(f's_mov_b32 m0, s{sM0A}')
a('s_waitcnt lgkmcnt(0)')
st(1); st(2)
def etouch(k):
    a(f'v_cmpx_gt_u32 vcc, 64, v{HB4+k}')
    a(f'buffer_load_dword v{vTCH}, v{EVv+k}, s[{Ed}:{Ed+3}], 0 offen'); vm.append('et')
    if ET >= 3: a(f'buffer_load_dword v{vTCH}, v{PV+k}, s[{PS}:{PS+3}], s{SO} offen'); vm.append('et')
if ET:
    for k in range(4): a(f'v_or_b32 v{HB4+k}, v{HB4+k}, v{RK+k}')
if ET in (1, 3):
    for k in range(4):
        a(f's_mov_b64 exec, s[{XM+2*k}:{XM+2*k+1}]')
        etouch(k)
    a('s_mov_b64 exec, -1')
for k in range(4): a(f'v_min_u32 v{4+k}, 256, v{RK+k}')
for k in range(4): a(f'v_mad_u32_u24 v{4+k}, v{HA+k}, s57, v{4+k}')
for k in range(4):
    a(f's_mov_b64 exec, s[{XM+2*k}:{XM+2*k+1}]')
    a(f'ds_write2st64_b32 v{4+k}, v{PV+k}, v{EVv+k} offset0:0 offset1:{L_EO//256}')
    if ET in (2, 4): etouch(k)
for k in range(4, 8):
    a(f's_or_b64 s[58:59], s[{XM+2*k}:{XM+2*k+1}], s[0:1]')
    a('s_cbranch_scc0 L_s7')
    a(f's_mov_b64 exec, s[{XM+2*k}:{XM+2*k+1}]')
    a(f'v_min_u32 v4, 256, v{RK+k}')
    a(f'v_mad_u32_u24 v4, v{HA+k}, s57, v4')
    a(f'ds_write2st64_b32 v4, v{PV+k}, v{EVv+k} offset0:0 offset1:{L_EO//256}')
a.label('L_s7')
a('s_mov_b64 exec, -1')
slot(3)
B2B = not X('nob2b')
if not B2B: a(vwait('x'))
a('s_waitcnt lgkmcnt(0)')
st(1); st(2)
a('s_barrier')
st(1); st(2)
a(f'ds_read_b32 v{EV}, v{SE} offset:{L_EO}')
a(f'ds_read_b32 v5, v14 offset:{L_HIST}')
a(f'ds_read_b128 v[{DA}:{DA+3}], v{SP}')
def xfr(s): return [f'ds_read_b128 v[{XF+16*s+4*nu}:{XF+16*s+4*nu+3}], v{vXF+s} offset:{L_XI+4096*nu}' for nu in range(4)]
a(f'v_and_b32 v4, 15, v{LANE}')
a(f'v_lshrrev_b32 v6, 4, v{LANE}')
a('v_xor_b32 v6, v6, v4')
a('v_lshlrev_b32 v6, 4, v6')
a(f'v_lshl_add_u32 v{vXF}, v4, 8, v6')
for s in range(1, 4): a(f'v_xor_b32 v{vXF+s}, {64*s}, v{vXF}')
a('s_waitcnt lgkmcnt(%d)' % (0 if FINE in (1, 2) else 2))
a(f'v_add_u32 v{EV}, v{EV}, v{H16}')
if 'e' not in ''.join(sched): a(eload(EC)); vm.append('e')
st(2)
if B2B:
    for l in mid[:3]: a(l)
    a('s_waitcnt lgkmcnt(0)')
    for i in range(4): a(f'v_add_u32 v{DA+i}, v{DA+i}, v{LC1 if i & 1 else LC}')
    slot(11)
    for l in mid[3:]: a(l)
    a(vwait('x'))
    a('s_barrier')
    for s in range(3):
        for l in xfr(s): a(l)
else:
    for s in range(3):
        for l in xfr(s): a(l)
    for l in mid: a(l)
    a('s_waitcnt lgkmcnt(%d)' % (0 if FINE == 2 else 12))
    for i in range(4): a(f'v_add_u32 v{DA+i}, v{DA+i}, v{LC1 if i & 1 else LC}')
slot(4)
a('v_lshrrev_b32 v5, 2, v5')
a('v_cmp_lt_u32 vcc, 64, v5')
a('v_min_u32 v5, 64, v5')
a(f'v_sub_u32 v5, v5, v{vHD} clamp')
a('v_add_u32 v5, 3, v5')
a('v_and_b32 v5, -4, v5')
a('v_mov_b32 v6, v5')
a('s_waitcnt lgkmcnt(10)')
fl = [[l] for l in xfr(3)] + [[], []]
o5 = []; slot(5, o5); fl[4] = o5
pre = ['s_cmp_lg_u64 vcc, 0', f's_cselect_b32 s{sMORE}, 1, 0']
for l in pre: a(l)
for n_, sh in enumerate(('row_shr:1 row_mask:0xf', 'row_shr:2 row_mask:0xf', 'row_shr:4 row_mask:0xf', 'row_shr:8 row_mask:0xf', 'row_bcast:15 row_mask:0xa', 'row_bcast:31 row_mask:0xc')):
    a(f'v_add_u32_dpp v6, v6, v6 {sh} bank_mask:0xf')
    if n_ < 5:
        if n_ < 4: a('s_nop 0')
        for l in fl[n_]: a(l)
        if n_ == 4: a.nop(2 if not fl[4] else 1)
a('v_sub_u32 v7, v6, v5')
a(f's_cmp_lg_u32 s{sMORE}, 0')
a(f'v_readlane_b32 s{sT}, v6, 63')
a('s_cbranch_scc0 L_nomore')
for k in range(8):
    a(f'v_cmp_lt_u32 vcc, 255, v{RK+k}')
    a(f's_and_b64 vcc, vcc, s[{XM+2*k}:{XM+2*k+1}]')
    a.nop(1)
    a(f'v_cndmask_b32 v{REC+k}, -1, v{REC+k}, vcc')
a.label('L_nomore')
st(2)
a(f's_add_u32 s{sN}, s{sT}, 255')
a(f's_lshr_b32 s{sN}, s{sN}, 8')
a(f's_max_u32 s{sN}, s{sN}, s3')
a(f'v_cvt_f32_u32 v6, s{sN}')
a(f's_lshl_b32 s58, s{sW}, 2')
a('v_rcp_f32 v6, v6')
a(vwait('W2'))
a('s_waitcnt lgkmcnt(0)')
L = []; m = L.append
slot(6, L)
m('v_cmp_lt_u32 s[68:69], s58, v5')
m('v_mul_f32 v6, 0x47800000, v6')
m('s_add_u32 s59, s58, 4')
m('v_cvt_u32_f32 v6, v6')
m('v_add_u32 v4, s58, v7')
m('v_add_u32 v7, 2, v6')
m('v_cmp_eq_u32 vcc, s59, v5')
m('s_mov_b32 s39, 0x100000')
m(f'v_add_u32 v{SP}, 32, v4')
m(f'v_cndmask_b32 v6, v9, v{vF}, vcc')
m('v_mad_u32_u24 v11, v4, v7, s39')
m(f'v_mad_u32_u24 v7, v{SP}, v7, s39')
m('s_add_u32 s59, s58, 36')
m('v_cmp_eq_u32 vcc, s59, v5')
m('v_lshrrev_b32 v11, 20, v11')
m('v_lshrrev_b32 v7, 20, v7')
m(f'v_cndmask_b32 v{I1+1}, v9, v{vF}, vcc')
m('v_lshl_add_u32 v4, v11, 4, v4')
m(f'v_lshl_add_u32 v{SP}, v7, 4, v{SP}')
m('s_cmp_eq_u32 s58, 0\ns_cselect_b32 s59, 0, s67')
m('v_lshl_add_u32 v12, s58, 2, v12')
m('v_mov_b32 v11, s59')
m('s_add_u32 s58, s58, 32')
m('v_cmp_lt_u32 vcc, s58, v5')
m(f'v_add_u32 v{SE}, 128, v12')
m(f'v_mov_b32 v{MK}, s67')
m(f's_lshl_b32 s57, s{sN}, 5\ns_lshl_b32 s7, s{sN}, 4\ns_add_u32 s7, s7, 16')
m(f'v_mad_u32_u24 v13, s7, v{cH1}, v{I4}')
blk = [f'ds_write2st64_b32 v13, v{vHW}, v{vHK} offset0:{L_QW//256} offset1:{L_QK//256}',
       's_mov_b64 exec, s[68:69]',
       f'ds_write2st64_b32 v4, v12, v8 offset0:{L_QS//256} offset1:{L_QT//256}',
       f'ds_write2st64_b32 v4, v6, v11 offset0:{L_QW//256} offset1:{L_QK//256}',
       's_mov_b64 exec, vcc',
       f'ds_write2st64_b32 v{SP}, v{SE}, v8 offset0:{L_QS//256} offset1:{L_QT//256}',
       f'ds_write2st64_b32 v{SP}, v{I1+1}, v{MK} offset0:{L_QW//256} offset1:{L_QK//256}',
       's_mov_b64 exec, -1']
m('\n'.join(blk))
slot(7, L)
L += mid2
m(f's_mul_i32 s59, s7, s{sW}')
m('s_lshl_b32 s59, s59, 1')
m(f'v_mul_u32_u24 v4, s7, v{HH}')
m(f'v_add_u32 v{vQA}, s59, v4')
m(f'v_add_u32 v{vQ1}, v{vQA}, v{cP1}')
m(f'v_add_u32 v{vQP}, v{vQA}, v{cP2}')
m(f'v_mad_u32_u24 v4, s7, v{cP3}, v{cP4}')
m(f'v_add_u32 v{vQE}, s59, v4')
m(f'v_add_u32 v14, s7, v{vQA}')
qm = []
for s in range(4):
    for nu in range(4):
        c = '0' if s == 0 else f'v[{QACC+4*nu}:{QACC+4*nu+3}]'
        qm.append(f'v_mfma_f32_16x16x32_bf16 v[{QACC+4*nu}:{QACC+4*nu+3}], v[{W2F+4*s}:{W2F+4*s+3}], v[{XF+16*s+4*nu}:{XF+16*s+4*nu+3}], {c}')
QSP = opt('qsp', 3)
for n_, l in enumerate(L):
    if n_ % QSP == 0 and qm: a(qm.pop(0))
    a(l)
for l in qm: a(l)
slot(8)
a('s_mov_b32 s58, 0x00010001')
a(f's_and_b32 s58, s58, s{sQM}')
a('s_mov_b32 s59, s58')
if W3L: a(f'v_add_u32 v4, {L_STG+HB}, v{vW}')
a(f's_mov_b64 exec, s[{sQM}:{sQM+1}]')
if W3L:
    for s in range(4): a(f'ds_read_b128 v[{W3+4*s}:{W3+4*s+3}], v4 offset:{1024*s}')
else: a.nop(1)
for nu in range(4):
    if nu == 3: a('s_mov_b64 exec, s[58:59]')
    for r in range(4): a(f'v_mul_f32 v{QACC+4*nu+r}, {NEGLOG2E:#x}, v{QACC+4*nu+r}')
    for r in range(2): a(f'v_cvt_pk_bf16_f32 v{QACC+4*nu+r}, v{QACC+4*nu+2*r}, v{QACC+4*nu+2*r+1}')
    a(f'ds_write_b64 v{vQW}, v[{QACC+4*nu}:{QACC+4*nu+1}] offset:{16*NSTR*nu}')
a('s_mov_b64 exec, -1')
slot(9)
a('s_waitcnt lgkmcnt(0)')
st(0); st(2)
a('s_barrier')
st(2); st(4)
def qbread(buf, beta):
    return [f'ds_read_b64_tr_b16 v[{QB[buf]}:{QB[buf]+1}], v{TA} offset:{64*beta}']
def paread(half):
    return [f'ds_read_b64_tr_b16 v[{PA[b]+4*q+2*j}:{PA[b]+4*q+2*j+1}], v{RA+b} offset:{HB*half+2048*j+128*q}' for b in range(2) for q in range(4) for j in range(2)]
def mfmas(beta):
    z = ZB[beta & 1]; zz = f'v[{z}:{z+15}]'
    q = QB[beta & 1]; p = PA[beta & 1]
    return [f'v_mfma_f32_32x32x8_bf16 {zz}, v[{TM}:{TM+1}], v[{q}:{q+1}], v[{p}:{p+15}]',
            f'v_mfma_f32_32x32x16_bf16 {zz}, v[{EC}:{EC+3}], v[{W3+4*beta}:{W3+4*beta+3}], {zz}']
a(f'ds_read_b32 v6, v{vQE} offset:{L_QS+16}')
a(f'ds_read_b32 v7, v{vQP} offset:{L_QS+16}')
a(f'ds_read_b32 v{SE}, v{vQE} offset:{L_QS+32}')
a(f'ds_read_b32 v{SP}, v{vQP} offset:{L_QS+32}')
a(f'ds_read_b32 v12, v14 offset:{L_QT-4}')
a(f'ds_read_b32 v13, v14 offset:{L_QW-4}')
a('v_mov_b32 v5, 0')
a(f'ds_write_b32 v{vQA}, v5 offset:{L_QK+16}')
a(f'ds_read_b128 v[{EN}:{EN+3}], v5 offset:{L_MISC}')
for l in qbread(0, 0) + qbread(1, 1): a(l)
rest = [(l, 'h0') for l in hq] + [(f's_mov_b32 m0, s{sM0B}\ns_nop 0', None)] + [(l, 'h1') for l in dma(1)]
def hiss(n):
    while rest and (n > 0 or rest[0][1] is None):
        l, t = rest.pop(0); a(l)
        if t: vm.append(t); n -= 1
HP = [int(c) for c in str(opt('hp', 121))]
hiss(HP[0])
st(2); st(4)
slot(10)
assert not wq
a(f's_cmp_eq_u32 s{sFIRST}, 0')
a(vwait('WU1'))
a('s_cbranch_scc1 L_noq')
for s in range(4):
    for nu in range(4):
        c = '0' if s == 0 else f'v[{R+4*nu}:{R+4*nu+3}]'
        a(f'v_mfma_f32_16x16x32_bf16 v[{R+4*nu}:{R+4*nu+3}], v[{WU1F+4*s}:{WU1F+4*s+3}], v[{XF+16*s+4*nu}:{XF+16*s+4*nu+3}], {c}')
        for l in late_c[:2]: a(l)
        late_c = late_c[2:]
for l in late_c: a(l)
a(f's_mov_b32 s{sFIRST}, 0')
a.nop(4)
for r in range(16): a(f'v_mul_f32 v{R+r}, {NEGLOG2E:#x}, v{R+r}')
a.label('L_noq')
a(f'v_ashrrev_i32 v{MK}, 31, v{EV}')
for i in range(2): a(f'v_bitop3_b32 v{TM+i}, v{TC+i}, v{MK}, v{MK} bitop3:0x30')
hiss(HP[1])
a('s_waitcnt lgkmcnt(0)')
a(f'v_add_u32 v6, v6, v{I4}')
a(f'ds_read_b32 v{EOr}, v6 offset:{L_EO}')
a(f'ds_read_b128 v[{PTr}:{PTr+3}], v7')
T1 = opt('t1', 0)
if T1: a(f'ds_read_b32 v{CIr}, v6')
a('v_cmp_eq_u32 vcc, 0, v13')
a(f's_lshl_b32 s58, s{sW}, 10')
a(f's_add_u32 s58, s58, {L_CARRY-L_ZERO}')
a(f'v_lshl_add_u32 v4, v{HH}, 9, s58')
a('s_mov_b64 exec, vcc')
a(f'ds_write_b32 v12, v4 offset:{L_NODE+768}')
a('s_mov_b64 exec, -1')
a(f's_mul_i32 s58, s57, s{sW}')
a(f's_sub_i32 s58, s{sT}, s58')
a('s_max_i32 s58, s58, 0')
a('s_add_u32 s58, s58, 15')
a('s_lshr_b32 s58, s58, 4')
a(f's_min_u32 s{sN}, s{sN}, s58')
a(f's_add_u32 s{sN}, s{sN}, 1')
a(f's_mov_b32 s{sPASS}, 1')
a(f's_mov_b32 s{sTC}, 2')
tA1, tA2, tC1, tC2, tW1, tW2, tH, tF, tCY, tO = 4, 5, 6, 7, 8, 9, 11, 12, 13, 14
a(f's_cmp_lt_u32 s{sW}, 4')
a('s_cselect_b32 s58, 48, 16')
a('v_lshrrev_b32 v15, 4, v0')
a(f'v_mul_u32_u24 v{tC1}, {NSTR}, v15')
a(f's_mul_i32 s59, s58, {NSTR}')
a(f'v_add_u32 v{tC1}, {L_NODE+NSTR}, v{tC1}')
a(f'v_add_u32 v{tC2}, s59, v{tC1}')
a(f'v_and_b32 v{tF}, 15, v0')
a(f'v_lshlrev_b32 v250, 4, v{tF}')
a(f'v_add_u32 v{tA1}, v250, v{tC1}')
a(f'v_add_u32 v{tA2}, v250, v{tC2}')
a(f'v_and_b32 v{tW1}, 15, v15')
a(f'v_xor_b32 v{tW1}, v{tW1}, v{tF}')
a(f'v_lshlrev_b32 v{tW1}, 4, v{tW1}')
a(f'v_lshl_add_u32 v{tW1}, v15, 8, v{tW1}')
a(f'v_add_u32 v{tW1}, {L_STG}, v{tW1}')
a('s_lshl_b32 s59, s58, 8')
a(f'v_add_u32 v{tW2}, s59, v{tW1}')
a(f'v_lshl_add_u32 v{tH}, v15, 9, v250')
a(f'v_lshlrev_b32 v{tCY}, 4, v0')
a(f'v_lshl_add_u32 v{tO}, v15, 16, v250')
a(f's_lshl_b32 s3, s58, 16')
a(f's_add_u32 s3, s3, s{sNODE0}')
hiss(HP[2])
a(f's_cmp_eq_u32 s{sW}, 0')
a('s_cselect_b32 s6, 0xffff, 0')
a('s_mov_b32 s7, 0')
a(f's_cmp_lt_u32 s{sW}, 4')
a('s_cselect_b64 s[6:7], s[6:7], -1')
a('s_add_u32 s56, s56, 0x10000')
tOW, tO3, KV = I1, vPF, 15
a(f'v_lshrrev_b32 v{tOW}, 1, v15')
a(f'v_xor_b32 v{tOW}, v{tOW}, v{tF}')
a(f'v_lshlrev_b32 v{tOW}, 4, v{tOW}')
a(f'v_lshl_add_u32 v{tOW}, v{tF}, 8, v{tOW}')
a(f'v_and_b32 v{tO3}, 1, v15')
a(f'v_lshl_add_u32 v{tOW}, v{tO3}, 3, v{tOW}')
a(f'v_add_u32 v{tOW}, {L_STG+16384}, v{tOW}')
a(f'v_lshlrev_b32 v{tO3}, 3, v15')
a(f'v_lshl_add_u32 v{tO3}, v{tF}, 1, v{tO3}')
a(f'v_add_u32 v{tO3}, {L_STG+16384+48*256}, v{tO3}')
a(f'v_mov_b32 v{KV}, {NEGLOG2E:#x}')
a('s_movk_i32 s39, 0x207')
a(f'v_add_u32 v{tF}, {L_STG}, v{vXF}')
a(f's_cmp_eq_u32 s{sBML}, 0')
a('s_cbranch_scc0 L_np2')
a(f's_mov_b32 s{sBML}, 1')
for i in range(4): a(f'v_readfirstlane_b32 s{BM+i}, v{EN+i}')
a.label('L_np2')
a(f's_or_b64 s[58:59], s[{BM}:{BM+1}], s[{BM+2}:{BM+3}]')
a(f's_cselect_b32 s5, 1, s{sMORE}')
a(f's_lshl_b32 s4, s{sSAFE}, 3')
a(f's_add_u32 s4, s4, s{sW}')
for i in range(4):
    a(f'v_mov_b32 v{AA+i}, 0')
    a(f'v_mov_b32 v{KK+i}, 0')
    a(f'v_mov_b32 v{MB+12+i}, 0')
    a(f'v_mov_b32 v{NF+i}, 0')
    a(f'v_mov_b32 v{D+i}, 1.0')
a('s_waitcnt lgkmcnt(0)')
a(f'v_add_u32 v{EV}, v{EOr}, v{H16}')
if T1: a(f'v_lshl_add_u32 v{CIr}, v{H16}, 3, v{CIr}')
a(f'v_ashrrev_i32 v{MK}, 31, v{EV}')
if BENCH: a(f's_mov_b32 s{sN}, {opt("bn", 50)}')
if opt('unp', 0): a(f'v_mov_b32 v{I0}, 0xffff0000')
st(4)
a(f's_bitcmp1_b32 s{sW}, {opt("wbit", 2)}')
a('s_cbranch_scc%d L_prime_B' % opt('wsel', 1))
PEEL = opt('peel', 1)
EL = not X('eearly')
def nxt(): return dma(0) + [eload(EN)] if EL else [eload(EN)] + dma(0)
def prime2(tag):
    ns = nstamp[0]
    for l, t in rest: a(l)
    st(4)
    a(f's_cmp_gt_u32 s{sN}, 1')
    a(f's_cselect_b32 s{PS+2}, s{PS+2}, 0')
    a(f's_cselect_b32 s{Ed+2}, s{Ed+2}, 0')
    for i in range(4): a(f'v_add_u32 v{DA+i}, v{PTr+i}, v{LC1 if i & 1 else LC}')
    a(f's_mov_b32 m0, s{sM0A}')
    mf0 = mfmas(0)
    tch = f'buffer_load_dword v{CIr+1}, v{CIr}, s[{PS}:{PS+3}], s{SO} offen'
    def b4():
        a('s_barrier')
        st(4)
        a(f'ds_read_b32 v{tC1}, v{tC1} offset:768')
        a(f'ds_read_b32 v{tC2}, v{tC2} offset:768')
    if T1 in (1, 3) or X('b4e'): b4()
    if T1 in (1, 2): a(eload(EN)); a(tch)
    if T1 == 3: a(eload(EN))
    a('s_waitcnt vmcnt(%d)' % {0: 4, 1: 6, 2: 6, 3: 5}[T1])
    for l in paread(0): a(l)
    a('s_waitcnt lgkmcnt(%d)' % (0 if STAMP else 8))
    a(mf0[0])
    a(mf0[1])
    a('s_waitcnt lgkmcnt(0)')
    if X('nb4'):
        for l in nxt(): a(l)
    if T1 in (0, 2) and not X('b4e'): b4()
    st(0); st(2); st(4)
    if FINE == 9: a('s_memtime s[84:85]')
    if STAMP and FINE == 0: a('s_memrealtime s[88:89]')
    if not PEEL and not X('nb4'):
        for l in nxt(): a(l)
    else: a.nop(4)
    a('s_waitcnt lgkmcnt(0)')
    a(f'v_add_u32 v{tC1}, v250, v{tC1}')
    a(f'v_add_u32 v{tC2}, v250, v{tC2}')
    a.nop(3)
    st(4)
    if tag == 'A': nstamp[0] = ns
    a(f's_cmp_lg_u32 s{sSLOW}, 0')
    a('s_cbranch_scc1 L_pre_s')

def aadd():
    if not X('mask'): return [f'v_add_u32 v{AA+q}, v{AA+q}, v{CA2}' for q in range(4)]
    return [f'v_add_co_u32 v{AA+q}, s[{XM+2*q}:{XM+2*q+1}], v{AA+q}, v{CA2}' for q in range(4)]
def dswr(safe):
    if not safe and not X('mask'): return [f'ds_write_b128 v{AA+q}, v[{MB+4*q}:{MB+4*q+3}]' for q in range(4)]
    if not safe: return sum(([f's_mov_b64 exec, s[{XM+2*q}:{XM+2*q+1}]', f'ds_write_b128 v{AA+q}, v[{MB+4*q}:{MB+4*q+3}]'] for q in range(4)), []) + ['s_mov_b64 exec, -1']
    o = []
    for q in range(4):
        o += [f'ds_add_f32 v{AA+q}, v{MB+4*q+b} offset:{4*b}' for b in range(4)] + ['s_waitcnt lgkmcnt(0)']
    return o
def guard():
    if not X('g4'): return [f'v_bitop3_b32 v{G+i}, v{G+i}, v{RC+2*i}, v{RC+2*i+1} bitop3:0x80' for i in range(2)]
    return [f'v_and_b32 v{G+(q&1)}, v{G+(q&1)}, v{RC+q}' for q in range(4)]
def mchain(beta):
    m = [MB+4*q+beta for q in range(4)]
    o = []
    for q in range(4):
        o += [f'v_and_b32 v{m[q]}, v{m[(q-1)&3]}, v{KK+q}', f'v_fmac_f32 v{m[q]}, v{NF+q}, v{RCq(q)}']
    return o
def loop(safe, mode):
    sfx = '_s' if safe else '_' + mode
    if safe:
        a.label('L_pre_s')
        if PEEL:
            for l in nxt(): a(l)
        for i in range(12): a(f'v_mov_b32 v{MB+i}, 0')
    bz = 0 if BENCH else 16
    TPs = []; PPs = []
    for beta in range(4):
        body = []; e = body.append
        z = ZB[beta & 1]
        tr = [f'v_rcp_f32 v{RCq(q)}, v{D+q}' for q in range(4)] + [f'v_exp_f32 v{Uq(r>>2,r&3)}, v{z+r}' for r in range(16)]
        mf = mfmas((beta+1) & 3)
        if X('m16'):
            b1 = (beta+1) & 3; zn = ZB[b1 & 1]; q_ = QB[b1 & 1]; p_ = PA[b1 >> 1] + 8*(b1 & 1)
            m1 = [f'v_mfma_f32_16x16x16_bf16 v[{zn+4*i}:{zn+4*i+3}], v[{TM}:{TM+1}], v[{q_}:{q_+1}], 0' for i in range(4)]
            m2 = [f'v_mfma_f32_16x16x32_bf16 v[{zn+4*i}:{zn+4*i+3}], v[{p_+4*(i&1)}:{p_+4*(i&1)+3}], v[{(W3+4*b1) if i&2 else I0}:{(W3+4*b1+3) if i&2 else I0+3}], v[{zn+4*i}:{zn+4*i+3}]' for i in range(4)]
            mf = m1 + m2
            if X('m16b'): mf = [l.replace(f', v[{zn+4*i}:{zn+4*i+3}]', ', 0') if False else l for i, l in enumerate(m2)]
        if X('noq'): mf = [mf[1].rsplit(',', 1)[0] + ', 0'] + mf[2:] + ['s_nop 0']
        if X('nomf2'): mf = mf[:2] + ['s_nop 0', 's_nop 0']
        if X('nomf3'): mf = mf[:1] + ['s_nop 0']*3
        if X('noexp'): tr = [t.replace('v_exp_f32', 'v_lshlrev_b32').replace(', v', ', 0, v') if 'exp' in t else t for t in tr]
        qb = qbread(beta & 1, (beta+2) & 3)
        early = []; late = []; post = []
        if beta == 0:
            fill = qb + [f'ds_read_b128 v[{PTr}:{PTr+3}], v{SP}', f'ds_read_b32 v{TAr}, v{vQ1} offset:{L_QT+16}', 's_waitcnt vmcnt(5)'] + paread(1)
            ext = aadd() + [f'v_add_u32 v{SE}, v{SE}, v{I4}']
        if beta == 1:
            early = [f's_mov_b32 m0, s{sM0B}', f'ds_read_b128 v[{KK}:{KK+3}], v{vQA} offset:{L_QK}']
            fill = dma(1) + qb + [f'ds_read_b32 v{EOr}, v{SE} offset:{L_EO}'] + dswr(safe)
            if not X('dswl'): fill = qb + [f'ds_read_b32 v{EOr}, v{SE} offset:{L_EO}'] + dswr(safe) + dma(1)
            late = ['s_waitcnt lgkmcnt(6)']
            ext = [f'v_add_u32 v{DA+i}, v{PTr+i}, v{LC1 if i & 1 else LC}' for i in range(4)] + [f'v_add_u32 v{TA}, v{TAr}, v{CT}']
        if beta == 2:
            fill = qb + [f's_cmp_lt_u32 s{sTC}, s{sN}', f's_cselect_b32 s{PS+2}, s{PS+2}, 0', f's_cselect_b32 s{Ed+2}, s{Ed+2}, 0', f's_add_u32 s{sTC}, s{sTC}, 1',
                         's_waitcnt vmcnt(%d)' % (5 if EL else 4)] + paread(0)
            ext = [f'v_bitop3_b32 v{TM+i}, v{TC+i}, v{MK}, v{MK} bitop3:0x30' for i in range(2)] + [f'v_add_u32 v{EV}, v{EOr}, v{H16}']
            post = (['s_waitcnt vmcnt(4)'] if EL else []) + [f'v_mov_b32 v{EC+i}, v{EN+i}' for i in range(4)]
        if beta == 3:
            fill = [f's_mov_b32 m0, s{sM0A}'] + qb + ([] if (not X('rdl')) else nxt()) + [f'ds_read_b128 v[{AA}:{AA+3}], v{vQA} offset:{L_QW}',
                    f'ds_read_b32 v{SP}, v{vQP} offset:{L_QS+48}', f'ds_read_b32 v{SE}, v{vQE} offset:{L_QS+48}',
                    f's_sub_u32 s58, s{sTC}, 2', f's_cmp_lt_u32 s58, s{sN}'] + (nxt() if (not X('rdl')) else [])
            tr = tr + [f'v_ashrrev_i32 v{MK}, 31, v{EV}']
            ext = [f'v_add_u32 v{p}, {bz}, v{p}' for p in (vQA, vQ1, vQP, vQE)]
        if X('it'):
            fill = fill + ['s_memtime s[100:101]']
            early = early + [f's_mov_b32 s91, m0', f's_mov_b32 m0, s90', 'v_writelane_b32 v250, s100, m0', 's_mov_b32 m0, s91', 's_add_u32 s90, s90, 1'] if beta != 0 else [f's_mov_b32 s91, m0', f's_mov_b32 m0, s90', 'v_writelane_b32 v250, s100, m0', 's_mov_b32 m0, s91', 's_add_u32 s90, s90, 1']
        if X('mvs'):
            sc = [f's_cmp_lt_u32 s{sTC}, s{sN}', f's_cselect_b32 s{PS+2}, s{PS+2}, 0', f's_cselect_b32 s{Ed+2}, s{Ed+2}, 0', f's_add_u32 s{sTC}, s{sTC}, 1']
            if beta == 2: fill = [l for l in fill if l not in sc]
            if beta == 3: fill = sc + fill
        if X('ashp') and beta == 3:
            ext = ext + [tr.pop()]
        if X('nowl') and mode == 'A' and beta == 1: late = []; fill = fill + ['s_waitcnt lgkmcnt(6)']
        if FINE == 9:
            if beta == opt('tb', 3): fill = fill + ['s_memtime s[84:85]']
            if beta == (opt('tb', 3)+1) % 4: fill = ['s_lshl_b64 s[76:77], s[76:77], 16', 's_lshr_b32 s82, s79, 16', 's_or_b32 s76, s76, s82', 's_lshl_b64 s[78:79], s[78:79], 16', 's_sub_u32 s82, s84, s70', 's_and_b32 s82, s82, 0xffff', 's_or_b32 s78, s78, s82'] + fill
        if X('halftr') and beta in (0, 2): fill = fill[:-8]
        if X('mvtr'):
            if beta in (0, 2): fill = fill[:-8]
            else: fill = paread(0)[8:] + fill
        if X('nodsw'): fill = [l for l in fill if not l.startswith('ds_write')]
        if X('nords'): fill = [l for l in fill if not l.startswith('ds_read')]
        if X('nodma'): fill = [l for l in fill if not l.startswith('buffer_')]
        if opt('unp', 0) and not safe:
            zn = ZB[(beta+1) & 1]
            mf = [mf[0].rsplit(',', 1)[0] + f', v[{zn}:{zn+15}]', mf[1]]
            b2 = (beta+2) & 3; p_ = PA[b2 >> 1] + 8*(b2 & 1)
            lo = {1: 'v_lshlrev_b32 v{d}, 16, v{s}', 2: 'v_mov_b32_sdwa v{d}, v{s} dst_sel:WORD_1 dst_unused:UNUSED_PAD src0_sel:WORD_0', 3: 'v_and_b32 v{d}, v{k}, v{s}',
                  4: 'v_cvt_f32_bf16 v{d}, v{s}'}[opt('unp', 0)]
            ext = ext + [f'v_and_b32 v{z+2*i+1}, v{I0}, v{p_+i}' for i in range(8)] + [lo.format(d=z+2*i, s=p_+i, k=I0) for i in range(8)]
        MSP = opt('msp', 6)
        FAT = opt('fatA', 0) if mode == 'A' else len(tr) - opt('fatB', 0)
        if X('noext'): ext = []
        e('s_setprio %d' % (opt('pA', 1) if mode == 'A' else opt('pB', 2)))
        e('s_waitcnt lgkmcnt(0)')
        for l in early: e(l)
        mi = 0
        ilv = {}
        ILA = [int(c, 36) for c in (([x.split('=')[1] for x in sys.argv if x.startswith('--ila=')] or ['0000'])[0])]
        ILB = [int(c, 36) for c in (([x.split('=')[1] for x in sys.argv if x.startswith('--ilb=')] or ['0000'])[0])]
        if not safe:
            if mode == 'A' and ILA[beta]:
                k_ = ILA[beta]; mv = fill[-k_:]; fill = fill[:-k_]
                for n_, l in enumerate(mv): ilv.setdefault(n_ // opt('ipt', 1), []).append(l)
            if mode == 'B' and ILB[beta]:
                k_ = ILB[beta]; mv = fill[:k_]; fill = fill[k_:]
                st_ = len(tr) - 1 - (k_ + opt('ipt', 1) - 1) // opt('ipt', 1)
                for n_, l in enumerate(mv): ilv.setdefault(max(0, st_) + n_ // opt('ipt', 1), []).append(l)
        if FAT == 0:
            if beta in (0, 2) or X('mfirst'): e(mf[0]); mi = 1
            for l in fill: e(l)
        for idx, t in enumerate(tr):
            e(t)
            if idx % MSP == 0 and mi < len(mf): e(mf[mi]); mi += 1
            for l in ilv.get(idx, []): e(l)
            if idx == FAT - 1:
                for l in fill: e(l)
        for l in late: e(l)
        TPs.append(body); body = []; e = body.append
        e('s_setprio %d' % (opt('qA', 3) if mode == 'A' else opt('qB', 0)))
        mc = mchain((beta-1) & 3)
        if not safe:
            pl = [f'v_add_f32 v{D+q}, 1.0, v{Uq(q,0)}' for q in range(4)]
            for stp in range(1, 4):
                for q in range(4):
                    dst = NF+q if stp == 3 else z+4*q+stp
                    pl.append(f'v_fma_f32 v{dst}, v{z+4*q+stp}, v{D+q}, v{z+4*q+stp-1}')
                for q in range(4):
                    dst = NF+q if stp == 3 else z+4*q+stp
                    pl.append(f'v_fmac_f32 v{dst}, v{z+4*q+stp-1}, v{Uq(q,stp)}')
                for q in range(4): pl.append(f'v_fmac_f32 v{D+q}, v{D+q}, v{Uq(q,stp)}')
            gd = guard()
            if X('pk'):
                P2 = lambda r: f'v[{r}:{r+1}]'
                pl = [f'v_pk_add_f32 {P2(D+2*p)}, {P2(U+8*p)}, 1.0 op_sel_hi:[1,0]' for p in range(2)]
                for stp in range(1, 4):
                    for p in range(2):
                        dst = NF+2*p if stp == 3 else z+8*p+2*stp
                        pl.append(f'v_pk_fma_f32 {P2(dst)}, {P2(z+8*p+2*stp)}, {P2(D+2*p)}, {P2(z+8*p+2*stp-2)}')
                    for p in range(2): pl.append(f'v_pk_fma_f32 {P2(D+2*p)}, {P2(D+2*p)}, {P2(U+8*p+2*stp)}, {P2(D+2*p)}')
                    for p in range(2):
                        dst = NF+2*p if stp == 3 else z+8*p+2*stp
                        pl.append(f'v_pk_fma_f32 {P2(dst)}, {P2(z+8*p+2*stp-2)}, {P2(U+8*p+2*stp)}, {P2(dst)}')
                if X('pk2'):
                    xs = mc[:]; ex = ext + [] ; o = []
                    while xs or ex:
                        if xs: o.append(xs.pop(0))
                        if ex: o.append(ex.pop(0))
                    pl = o + pl; mc = []; ext = []
                else:
                    o = []
                    for n_, l in enumerate(pl):
                        if n_ % 2 == 0 and mc: o.append(mc.pop(0))
                        o.append(l)
                    pl = o
            ci = 0
            for idx, l in enumerate(pl):
                if idx % 3 == 0 and ci < len(mc): e(mc[ci]); ci += 1
                e(l)
            for l in ext + gd + post: e(l)
            if mode == 'A' and opt('qt', 0): body.insert(len(body) - opt('qt', 0), 's_setprio 3')
        else:
            for l in mc: e(l)
            for r in range(16): e(f'v_add_f32 v{U+r}, 1.0, v{U+r}')
            for r in range(16): e(f'v_rcp_f32 v{U+r}, v{U+r}')
            for q in range(4): e(f'v_mul_f32 v{NF+q}, v{z+4*q}, v{Uq(q,0)}')
            for stp in range(1, 4):
                for q in range(4): e(f'v_fmac_f32 v{NF+q}, v{z+4*q+stp}, v{Uq(q,stp)}')
            for l in ext + post: e(l)
        PPs.append(body)
    if not safe and T1 in (1, 2):
        for l in TPs[0]: a(l.replace('vmcnt(5)', 'vmcnt(6)'))
        a(f's_branch L_pp0{sfx}')
    elif not safe and PEEL >= 3:
        pa1 = paread(1)
        for l in TPs[0] + PPs[0]:
            if l in pa1 or 'vmcnt' in l: continue
            a(l)
        if PEEL == 3: seq_ = ['s_waitcnt vmcnt(0)'] + pa1 + nxt()
        if PEEL == 4: seq_ = nxt() + ['s_waitcnt vmcnt(5)'] + pa1
        if PEEL == 5: seq_ = (nxt() + ['s_waitcnt vmcnt(5)'] + pa1) if mode == 'A' else (['s_waitcnt vmcnt(0)'] + pa1 + nxt())
        for l in seq_: a(l)
        a(f's_branch L_tp1{sfx}')
    elif not safe and PEEL:
        ld = nxt()
        pa1 = paread(1)[-1]
        for l in TPs[0]:
            if PEEL == 1 and l == qbread(0, 2)[0]:
                for x in ld: a(x)
            if PEEL == 2 and 'vmcnt(5)' in l: l = 's_waitcnt vmcnt(0)'
            a(l)
            if PEEL == 2 and l == pa1:
                for x in ld: a(x)
        a(f's_branch L_pp0{sfx}')
    elif mode == 'B': a('s_branch L_mid_B')
    if mode == 'A':
        if not safe: a('.p2align 6')
        a.label('L_loop' + sfx)
        for b in range(4):
            for l in ([f'L_tp1{sfx}:'] if b == 1 else []) + TPs[b] + ([f'L_pp0{sfx}:'] if b == 0 else []) + PPs[b]: a(l)
        a(f's_cbranch_scc1 L_loop{sfx}')
        for s_ in range(4): a(fragl(WU2, 56, s_))
    else:
        a('.p2align 6')
        a.label('L_loop' + sfx)
        for l in PPs[3]: a(l)
        a.label('L_mid' + sfx)
        for b in range(4):
            for l in ([f'L_tp1{sfx}:'] if b == 1 else []) + TPs[b] + ([f'L_pp0{sfx}:'] if b == 0 else []) + (PPs[b] if b < 3 else []): a(l)
        a(f's_cbranch_scc1 L_loop{sfx}')
        for s_ in range(4): a(fragl(WU2, 56, s_))
        for l in PPs[3]: a(l)
    if mode == 'B':
        a.label('L_drain'); a('s_setprio 0')
    if mode == 'A' and not safe:
        a('s_branch L_drain'); return
    for q in range(4): a(f'v_rcp_f32 v{RCq(q)}, v{D+q}')
    a('s_waitcnt lgkmcnt(0)')
    for l in aadd(): a(l)
    for l in mchain(3): a(l)
    for l in dswr(safe): a(l)
    for l in guard(): a(l)
    if not safe:
        a(f'ds_write_b128 v{tCY}, v[{MB+12}:{MB+15}] offset:{L_CARRY}')
prime2('A')
loop(False, 'A')
loop(True, 'A')
a('s_branch L_done')
a.label('L_prime_B')
prime2('B')
loop(False, 'B')
a.label('L_done')
st(0); st(3)
if STAMP and FINE == 0: a('s_memrealtime s[90:91]')
a('s_cmp_lg_u32 s5, 0')
a('s_waitcnt vmcnt(4) lgkmcnt(0)')
st(3)
a('s_barrier')
st(0); st(3)
a('s_cbranch_scc1 L_again')
AG = 16
def rd2(dst, adr, off):
    for u in range(2): a(f'ds_read_b128 v[{dst+4*u}:{dst+4*u+3}], v{adr} offset:{off+256*u}')
rd2(AG, tA1, 0); rd2(AG+8, tC1, L_ZERO)
a('s_cmp_lt_u32 s4, 4')
a('s_mov_b64 exec, s[6:7]')
rd2(AG+16, tA2, 0); rd2(AG+24, tC2, L_ZERO)
a('s_mov_b64 exec, -1')
a(f'v_and_b32 v250, v{G}, v{G+1}')
fa = [tF, tA1, tA2, tC1]
for s in range(1, 4): a(f'v_xor_b32 v{fa[s]}, {64*s}, v{tF}')
a('v_cmp_gt_u32 vcc, 0x20000000, v250')
a('s_mov_b32 s58, 0x00010001')
a('s_mov_b32 s59, 0x00010001')
a('v_mov_b32 v250, 0')
a('s_mov_b64 s[68:69], vcc')
a('s_cbranch_scc0 L_nohead')
rd2(AG+32, tH, L_HEAD)
a('s_waitcnt lgkmcnt(0)')
for r in range(8): a(f'v_add_f32 v{AG+r}, v{AG+r}, v{AG+32+r}')
a.label('L_nohead')
a('s_waitcnt lgkmcnt(%d)' % (0 if STAMP else 4))
for r in range(8): a(f'v_add_f32 v{AG+r}, v{AG+r}, v{AG+8+r}')
for r in range(4): a(f'v_cvt_pk_bf16_f32 v{AG+8+r}, v{AG+2*r}, v{AG+2*r+1}')
a(f'ds_write_b128 v{tW1}, v[{AG+8}:{AG+11}]')
a('s_mov_b64 exec, s[6:7]')
a('s_cbranch_execz L_cv2')
a('s_waitcnt lgkmcnt(1)')
for r in range(8): a(f'v_add_f32 v{AG+16+r}, v{AG+16+r}, v{AG+24+r}')
for r in range(4): a(f'v_cvt_pk_bf16_f32 v{AG+24+r}, v{AG+16+2*r}, v{AG+16+2*r+1}')
a(f'ds_write_b128 v{tW2}, v[{AG+24}:{AG+27}]')
a.label('L_cv2')
a('s_mov_b64 exec, -1')
a('s_waitcnt lgkmcnt(0)')
st(3)
a('s_barrier')
st(3)
EACC = 96
def frd(s, nu): a(f'ds_read_b128 v[{XF+16*s+4*nu}:{XF+16*s+4*nu+3}], v{fa[s]} offset:{4096*nu}')
def fmm(s, nu):
    c = f'v[{R+4*nu}:{R+4*nu+3}]' if s == 0 else f'v[{EACC+4*nu}:{EACC+4*nu+3}]'
    return f'v_mfma_f32_16x16x32_bf16 v[{EACC+4*nu}:{EACC+4*nu+3}], v[{WU2+4*s}:{WU2+4*s+3}], v[{XF+16*s+4*nu}:{XF+16*s+4*nu+3}], {c}'
if STAMP: a('s_waitcnt lgkmcnt(0)')
for s in range(4): frd(s, 0); frd(s, 1)
for s in range(4): frd(s, 2)
a('s_mov_b64 exec, s[58:59]')
for s in range(3): frd(s, 3)
a('s_waitcnt lgkmcnt(13) vmcnt(0)')
frd(3, 3)
a('s_mov_b64 exec, -1')
Y = 112
a('s_mov_b32 s58, 0x000f000f')
a('s_mov_b32 s59, 0x000f000f')
for s in range(4):
    if s: a(f's_waitcnt lgkmcnt({14-2*s})')
    for nu in range(2): a(fmm(s, nu))
def silu(regs, tmp):
    o = [[f'v_exp_f32 v{tmp+i}, v{r}' for i, r in enumerate(regs)],
         [f'v_fma_f32 v{tmp+i}, v{tmp+i}, v{KV}, v{KV}' for i, r in enumerate(regs)],
         [f'v_rcp_f32 v{tmp+i}, v{tmp+i}' for i, r in enumerate(regs)],
         [f'v_mul_f32 v{tmp+i}, v{r}, v{tmp+i}' for i, r in enumerate(regs)]]
    return sum(o, [])
def fin(nu, tmp):
    return [f'v_cvt_pk_bf16_f32 v{tmp}, v{tmp}, v{tmp+1}', f'v_cvt_pk_bf16_f32 v{tmp+1}, v{tmp+2}, v{tmp+3}',
            f'ds_write_b64 v{tOW}, v[{tmp}:{tmp+1}] offset:{4096*nu}']
a('s_waitcnt lgkmcnt(0)')
st(3)
L = silu(list(range(EACC, EACC+8)), Y)
mq = [fmm(s, nu) for s in range(4) for nu in (2, 3)]
a(mq.pop(0)); a(mq.pop(0)); a.nop(5)
for n_, l in enumerate(L):
    a(l)
    if n_ < 6: a(mq.pop(0))
f01 = fin(0, Y) + fin(1, Y+4)
E3 = EACC + 12
for r in range(1, 4):
    a(f'v_mov_b32_dpp v{E3}, v{E3+r} row_shr:{r} row_mask:0xf bank_mask:0xf')
    for l in f01[:2]: a(l)
    f01 = f01[2:]
a(f'v_add_f32 v{EACC}, v{EACC}, v{EACC+4}')
a(f'v_add_f32 v{EACC}, v{EACC}, v{EACC+8}')
for l in silu(list(range(EACC+8, EACC+13)), Y+8): a(l)
a(f'v_cmp_class_f32 vcc, v{EACC}, s39')
for l in fin(2, Y+8): a(l)
a('s_or_b64 s[68:69], s[68:69], vcc')
a('s_mov_b64 exec, s[58:59]')
a(f'v_cmp_class_f32 vcc, v{E3}, s39')
a(f'v_cvt_pk_bf16_f32 v{Y+12}, v{Y+12}, v{Y+12}')
a(f'ds_write_b16 v{tO3}, v{Y+12}')
a('s_or_b64 exec, s[68:69], vcc')
a(f'ds_write_b32 v250, v{KV} offset:{L_MISC+16}')
a('s_mov_b64 exec, -1')
a('s_waitcnt lgkmcnt(0)')
st(3)
a('s_barrier')
a(f'ds_read_b128 v[16:19], v{tW1} offset:16384')
a('s_mov_b64 exec, s[6:7]')
a(f'ds_read_b128 v[20:23], v{tW2} offset:16384')
a('s_mov_b64 exec, -1')
a(f'ds_read_b32 v24, v250 offset:{L_MISC+16}')
OSC = '' if X('onosc1') else ' sc1'
a('s_waitcnt lgkmcnt(%d)' % (0 if STAMP else 2))
a(f'buffer_store_dwordx4 v[16:19], v{tO}, s[{Od}:{Od+3}], s{sNODE0} offen' + OSC)
a('s_mov_b64 exec, s[6:7]')
a('s_cbranch_execz L_st2')
a('s_waitcnt lgkmcnt(1)')
a(f'buffer_store_dwordx4 v[20:23], v{tO}, s[{Od}:{Od+3}], s3 offen' + OSC)
a.label('L_st2')
a('s_mov_b64 exec, -1')
st(0); st(3)
if STAMP:
    a('s_waitcnt vmcnt(0) lgkmcnt(0)')
    stamp()
    a('s_waitcnt lgkmcnt(0)')
    a(f's_lshl_b32 s58, s2, 3')
    a(f's_add_u32 s58, s58, s{sW}')
    a('s_lshl_b32 s58, s58, 7')
    a(f's_add_u32 s58, s58, {WS_STAMP:#x}')
    a('v_mov_b32 v4, 0')
    a('s_mov_b64 exec, 1')
    if FINE == 9:
        for i in range(8):
            a(f's_bfe_u32 s82, s{[77,76,79,78][i>>1]}, {0x100000 + (0 if i & 1 else 16):#x}'); a('s_add_u32 s82, s82, s70'); a('v_mov_b32 v6, s82'); a(f'buffer_store_dword v6, v4, s[{WSd}:{WSd+3}], s58 offen offset:{8+4*i}')
    for i in range(nstamp[0]):
        a(f'v_mov_b32 v6, s{70+2*i}')
        a(f'buffer_store_dword v6, v4, s[{WSd}:{WSd+3}], s58 offen offset:{4*i}')
    if FINE == 0:
        a('s_memrealtime s[40:41]'); a('s_waitcnt lgkmcnt(0)')
        for r_, o_ in ((86, 27), (88, 28), (90, 29), (40, 30)): a(f'v_mov_b32 v6, s{r_}'); a(f'buffer_store_dword v6, v4, s[{WSd}:{WSd+3}], s58 offen offset:{4*o_}')
        a('s_sub_u32 s90, s90, s88'); a('v_mov_b32 v6, s90'); a(f'buffer_store_dword v6, v4, s[{WSd}:{WSd+3}], s58 offen offset:{4*31}')
    a('s_mov_b64 exec, -1')
    if X('it'):
        a('s_mov_b64 exec, 0x7fffffff'); a(f'v_lshlrev_b32 v4, 2, v{LANE}'); a(f'buffer_store_dword v250, v4, s[{WSd}:{WSd+3}], s58 offen offset:4'); a('s_mov_b64 exec, -1')
    print('nstamps', nstamp[0])
if BENCH: a('s_endpgm')
a(f's_cmp_lg_u32 s{sSAFE}, 0')
a('s_cbranch_scc1 L_main_end')
a('s_waitcnt lgkmcnt(0)')
a('v_readfirstlane_b32 s58, v24')
a('s_cmp_eq_u32 s58, 0')
a('s_cbranch_scc1 L_main_end')
a(f's_mov_b32 s{sSAFE}, 1')
a('s_waitcnt vmcnt(0)')
a('s_barrier')
celladdr()
a('s_branch L_cells')
a.label('L_gen')
for k in range(8): a(f'v_cmp_ne_u32 s[{XM+2*k}:{XM+2*k+1}], -1, v{REC+k}')
a('s_branch L_nohdr')
a.label('L_again')
a(f's_cmp_lg_u32 s{sMORE}, 0')
a('s_cbranch_scc1 L_reinit')
a(f's_ff1_i32_b64 s58, s[{BM}:{BM+1}]')
a('s_cmp_eq_i32 s58, -1')
a('s_cbranch_scc1 L_pophi')
a(f's_bitset0_b64 s[{BM}:{BM+1}], s58')
a('s_branch L_popped')
a.label('L_pophi')
a(f's_ff1_i32_b64 s58, s[{BM+2}:{BM+3}]')
a(f's_bitset0_b64 s[{BM+2}:{BM+3}], s58')
a('s_add_u32 s58, s58, 64')
a.label('L_popped')
a(f's_mul_i32 s59, s58, {CH*32}')
a(f'v_mov_b32 v{CB}, s59')
a(f's_mul_i32 s59, s58, {CH*4}')
a('s_lshl_b32 s58, s58, 2')
a(f's_add_u32 s58, s58, {WS_OVFLEN:#x}')
a('v_mov_b32 v4, 0')
a('v_lshlrev_b32 v5, 5, v0')
a(f'buffer_load_dword v6, v4, s[{WSd}:{WSd+3}], s58 offen')
a(f's_add_u32 s58, s59, {WS_OVFREC:#x}')
a(f'buffer_load_dwordx4 v[{REC}:{REC+3}], v5, s[{WSd}:{WSd+3}], s58 offen')
a(f'buffer_load_dwordx4 v[{REC+4}:{REC+7}], v5, s[{WSd}:{WSd+3}], s58 offen offset:16')
a(f's_add_u32 s58, s59, {WS_OVFBKT:#x}')
a(f'buffer_load_dwordx4 v[{U}:{U+3}], v5, s[{WSd}:{WSd+3}], s58 offen')
a(f'buffer_load_dwordx4 v[{U+4}:{U+7}], v5, s[{WSd}:{WSd+3}], s58 offen offset:16')
a(f's_mul_i32 s57, s2, {CS}')
a('s_waitcnt vmcnt(0)')
for k in range(8):
    a(f'v_add_u32 v8, {4*k}, v5')
    a('v_cmp_lt_u32 vcc, v8, v6')
    a(f'v_cmp_eq_u32 s[58:59], s57, v{U+k}')
    a('s_and_b64 vcc, vcc, s[58:59]')
    a.nop(1)
    a(f'v_cndmask_b32 v{REC+k}, -1, v{REC+k}, vcc')
a('s_branch L_reinit')
a.label('L_main_end')
a('s_endpgm')
print('vgprs', NVG, 'lds', LDS_MAIN)

hdr = open('gather_scatter__mpnn_edge_mlp__graph.s.ref').read().split('; Override')[0]
hdr += f'; @launch kernel=pre_kernel grid=({PRE_WGS},1,1) block=(512,1,1) lds={LDS_PRE}\n'
hdr += f'; @launch kernel=main_kernel grid=(256,1,1) block=(512,1,1) lds={LDS_MAIN}\n'
hdr += '.amdgcn_target "amdgcn-amd-amdhsa--gfx950"\n.text\n'
def kd(name, vg):
    return f'''.amdhsa_kernel {name}
  .amdhsa_next_free_vgpr {vg}
  .amdhsa_next_free_sgpr 102
  .amdhsa_accum_offset {vg}
  .amdhsa_group_segment_fixed_size 0
  .amdhsa_kernarg_size 72
  .amdhsa_user_sgpr_count 2
  .amdhsa_user_sgpr_kernarg_segment_ptr 1
  .amdhsa_system_sgpr_workgroup_id_x 1
  .amdhsa_float_denorm_mode_32 3
.end_amdhsa_kernel
'''
tail = '.section .rodata,"a"\n.p2align 6\n' + kd('pre_kernel', 160) + '.p2align 6\n' + kd('main_kernel', 256)
open(OUTF, 'w').write(hdr + a.text() + tail)
for e in check(a.lines): print(e)
print('lines', len(a.lines))
```
